```python
import torch

def _softmax(x, axis=-1):
    return torch.softmax(x, dim=axis)
def _gelu(x):
    return torch.nn.functional.gelu(x, approximate="tanh")
def _silu(x):
    return torch.nn.functional.silu(x)
def _sigmoid(x):
    return torch.sigmoid(x)
def _layernorm(x, axis=-1, eps=1e-5):
    m = x.mean(dim=axis, keepdim=True)
    v = x.var(dim=axis, keepdim=True, unbiased=False)
    return (x - m) / torch.sqrt(v + eps)
def _scatter_add(tgt, idx, src, axis=0):
    return tgt.clone().index_add_(axis, idx, src)
def _segment_sum(src, seg, n):
    out = torch.zeros((n,) + src.shape[1:], dtype=src.dtype)
    return out.index_add_(0, seg, src)
def _pad(x, pw):
    flat = tuple(v for pair in reversed(pw) for v in pair)
    return torch.nn.functional.pad(x, flat)

kernel_name = 'interleave_layers__sliding_block__dense_activation_silu__prompt'

def setup_inputs():

    _w = (lambda a: (lambda t: t.to(torch.bfloat16) if t.is_floating_point() else t)(torch.as_tensor(a)))
    def _A_setup():
        B, S, D = 1, 2048, 512
        return {
            "x": _w((lambda *s: torch.randn(*s, dtype=torch.bfloat16) * 0.05)(B, S, D)),
            "wqkv": _w((lambda *s: torch.randn(*s, dtype=torch.bfloat16) * 0.05)(D, 3 * D)),
            "wo": _w((lambda *s: torch.randn(*s, dtype=torch.bfloat16) * 0.05)(D, D)),
        }
    _A_in = _A_setup()

    def _B_setup():
        B, S, D, F = 1, 2048, 512, 1792
        return {
            "x": _w((lambda *s: torch.randn(*s, dtype=torch.bfloat16) * 0.05)(B, S, D)),
            "w1": _w((lambda *s: torch.randn(*s, dtype=torch.bfloat16) * 0.8)(D, F) * (D ** -0.5)),
            "w2": _w((lambda *s: torch.randn(*s, dtype=torch.bfloat16) * 0.8)(F, D) * (F ** -0.5)),
        }
    _B_in = _B_setup()

    return {
        "A_x": _A_in["x"],
        "A_wqkv": _A_in["wqkv"],
        "A_wo": _A_in["wo"],
        "B_x": _B_in["x"],
        "B_w1": _B_in["w1"],
        "B_w2": _B_in["w2"],
    }

def reference(A_x, A_wqkv, A_wo, B_x, B_w1, B_w2):
    def _A_ref(x, wqkv, wo):
        B, S, D = x.shape
        H = 32; Dh = D // H; W = 256
        qkv = (lambda x, *d: x.permute(*d))((x @ wqkv).reshape(B, S, 3, H, Dh), 2, 0, 3, 1, 4)
        q, k, v = qkv[0], qkv[1], qkv[2]
        scores = torch.einsum("bhqd,bhkd->bhqk", q, k) * (Dh ** -0.5)
        idx = torch.arange(S)
        mask = (idx[:, None] - idx[None, :] >= 0) & (idx[:, None] - idx[None, :] < W)
        scores = torch.where(mask[None, None], scores, -1e9)
        p = _softmax(scores, axis=-1)
        o = torch.einsum("bhqk,bhkd->bhqd", p, v)
        return (lambda x, *d: x.permute(*d))(o, 0, 2, 1, 3).reshape(B, S, D) @ wo

    def _B_ref(x, w1, w2):
        h = torch.einsum("bsd,df->bsf", x, w1)
        h = _silu(h)
        out = torch.einsum("bsf,fd->bsd", h, w2)
        return out

    x = A_x
    x = x + _A_ref(_layernorm(x, axis=-1), A_wqkv, A_wo)
    x = x + _B_ref(_layernorm(x, axis=-1), B_w1, B_w2)
    x = x + _A_ref(_layernorm(x, axis=-1), A_wqkv, A_wo)
    x = x + _B_ref(_layernorm(x, axis=-1), B_w1, B_w2)
    return x
```

```python
import re

_RANGE = re.compile(r'\b([vas])\[(\d+):(\d+)\]')
_SINGLE = re.compile(r'\b([vas])(\d+)\b')
TRANS = ('v_exp_f32', 'v_log_f32', 'v_rcp_f32', 'v_rsq_f32', 'v_sqrt_f32', 'v_sin_f32', 'v_cos_f32')

def regs_of(op):
    out = set()
    s = op
    for m in _RANGE.finditer(op):
        for k in range(int(m.group(2)), int(m.group(3)) + 1):
            out.add(m.group(1) + str(k))
    s = _RANGE.sub(' ', op)
    for m in _SINGLE.finditer(s):
        out.add(m.group(1) + m.group(2))
    for sp in ('vcc', 'exec', 'm0'):
        if re.search(r'\b' + sp + r'\b', s):
            out.add(sp)
    return out

def split_ops(rest):
    ops, cur, depth = [], '', 0
    for ch in rest:
        if ch in '[(': depth += 1
        if ch in '])': depth -= 1
        if ch == ',' and depth == 0:
            ops.append(cur.strip()); cur = ''
        else:
            cur += ch
    if cur.strip(): ops.append(cur.strip())
    return ops

class Ins:
    __slots__ = ('text', 'mn', 'kind', 'wr', 'rd', 'srcc', 'ab', 'data', 'optional', 'passes', 'alt', 'tok', 'ws', 'wide')
    def __init__(self, text):
        self.text = text; self.kind = 'misc'; self.wr = set(); self.rd = set(); self.srcc = set(); self.ab = set()
        self.data = set(); self.optional = False; self.passes = 0; self.alt = None; self.tok = None; self.ws = 1; self.wide = False
        self.mn = ''

def V(n, cnt=1):
    return f'v{n}' if cnt == 1 else f'v[{n}:{n+cnt-1}]'
def Areg(n, cnt=1):
    return f'a{n}' if cnt == 1 else f'a[{n}:{n+cnt-1}]'
def S(n, cnt=1):
    return f's{n}' if cnt == 1 else f's[{n}:{n+cnt-1}]'

def parse(text):
    ins = Ins(text)
    t = text.split(';')[0].strip()
    parts = t.split(None, 1)
    mn = parts[0]; rest = parts[1] if len(parts) > 1 else ''
    ins.mn = mn
    ops = split_ops(rest)
    def R(i):
        if i >= len(ops): return set()
        o = ops[i]
        o = re.sub(r'\b(op_sel|op_sel_hi|neg_lo|neg_hi|offset|offset0|offset1|row_shr|row_bcast|row_mask|bank_mask|bitop3|quad_perm|row_ror|row_shl|cbsz|abid|blgp):\S+', ' ', o)
        o = re.sub(r'\b(sc0|sc1|nt|offen|idxen|lds|off|clamp)\b', ' ', o)
        return regs_of(o)
    allr = lambda a: set().union(*[R(i) for i in range(a, len(ops))]) if len(ops) > a else set()
    if mn.startswith('v_mfma'):
        ins.kind = 'mfma'; ins.wr = R(0); ins.ab = R(1) | R(2); ins.srcc = R(3); ins.rd = ins.ab | ins.srcc
        ins.passes = 8 if '32x32' in mn else 4
    elif mn.startswith('v_'):
        ins.kind = 'trans' if mn.replace('_e32', '').replace('_e64', '') in TRANS else 'valu'
        ins.wr = R(0); ins.rd = allr(1)
        if mn.startswith('v_permlane') and 'swap' in mn:
            ins.wr = R(0) | R(1); ins.rd = R(0) | R(1)
        if mn.startswith(('v_fmac', 'v_dot2c', 'v_pk_fmac', 'v_writelane')):
            ins.rd |= R(0)
        if mn.startswith(('v_add_co', 'v_sub_co', 'v_addc_co')):
            ins.wr |= R(1); ins.rd = allr(2)
    elif mn.startswith('buffer_load') or mn.startswith('global_load'):
        if re.search(r'\blds\b', rest) or '_lds_' in mn:
            ins.kind = 'dma'; ins.rd = allr(0) | {'m0'}
        else:
            ins.kind = 'vload'; ins.wr = R(0); ins.rd = allr(1)
    elif mn.startswith(('buffer_store', 'buffer_atomic')):
        ins.kind = 'vstore'; ins.rd = allr(0); ins.data = R(0); ins.wide = 'x4' in mn or 'x3' in mn
    elif mn.startswith(('global_store', 'global_atomic')):
        ins.kind = 'vstore'; ins.rd = allr(0); ins.data = R(1); ins.wide = 'x4' in mn or 'x3' in mn
    elif mn.startswith('ds_read') or mn.startswith('ds_bpermute') or mn.startswith('ds_swizzle'):
        ins.kind = 'dsread'; ins.wr = R(0); ins.rd = allr(1)
    elif mn.startswith('ds_write'):
        ins.kind = 'dswrite'; ins.rd = allr(0)
    elif mn == 's_nop':
        ins.kind = 'nop'; ins.ws = int(ops[0], 0) + 1
    elif mn in ('s_barrier', 's_endpgm', 's_setprio', 's_sleep', 's_waitcnt', 's_branch') or mn.startswith('s_cbranch'):
        ins.kind = 'misc'
    elif mn.startswith('s_cmp') or mn.startswith('s_bitcmp'):
        ins.kind = 'salu'; ins.rd = allr(0)
    elif mn.startswith(('s_load', 's_memtime', 's_memrealtime')):
        ins.kind = 'smem'; ins.wr = R(0); ins.rd = allr(1)
    elif mn.startswith('s_'):
        ins.kind = 'salu'; ins.wr = R(0); ins.rd = allr(1)
        if 'saveexec' in mn: ins.wr |= {'exec'}
    else:
        raise ValueError('unknown instruction: ' + text)
    return ins

def isv(r): return r[0] in 'va' and r not in ('vcc',)
def iss(r): return r[0] == 's' or r == 'vcc'

def need(P, C):
    n = 0
    pk, ck = P.kind, C.kind
    cvalu = ck in ('valu', 'trans')
    cmem = ck in ('vload', 'vstore', 'dma', 'dsread', 'dswrite')
    if pk in ('valu', 'trans'):
        vw = {r for r in P.wr if isv(r)}; sw = {r for r in P.wr if iss(r)}
        if ck == 'mfma' and vw & C.rd: n = max(n, 2)
        if pk == 'trans' and ck != 'trans' and vw & C.rd: n = max(n, 1)
        if P.mn.startswith('v_dot') and C.mn != P.mn and vw & (C.rd | C.wr): n = max(n, 3)
        if sw:
            if cvalu and sw & C.rd: n = max(n, 4 if 'lane' in C.mn else 2)
            if ck in ('vload', 'vstore', 'dma') and sw & C.rd: n = max(n, 5)
            if ck == 'salu' and sw & C.rd: n = max(n, 1)
        if cvalu and vw & C.rd:
            if C.mn.startswith(('v_readfirstlane', 'v_readlane')): n = max(n, 1)
            if C.mn.startswith('v_permlane') or '_dpp' in C.mn: n = max(n, 2)
    elif pk == 'mfma':
        full = {8: 12, 4: 8}[P.passes]
        if ck == 'mfma':
            if P.wr & C.ab: n = max(n, full)
            if P.wr & C.srcc and not (P.wr == C.srcc and P.passes == C.passes): n = max(n, full - 2)
        elif cvalu:
            if P.wr & (C.rd | C.wr): n = max(n, full)
            if P.srcc & C.wr: n = max(n, {8: 7, 4: 3}[P.passes])
        elif cmem:
            if P.wr & (C.rd | C.wr): n = max(n, full)
    elif pk == 'vstore':
        if P.wide and P.data & C.wr: n = max(n, 2)
    elif pk == 'salu':
        if 'm0' in P.wr and ck == 'dma': n = max(n, 1)
    return n

class Asm:
    def __init__(self):
        self.items = []
        self._opt = False
        self._lbl = 0
    def i(self, text):
        ins = parse(text); ins.optional = self._opt
        self.items.append(ins); return ins
    def __call__(self, text): return self.i(text)
    def label(self, name): self.items.append(('label', name))
    def newlabel(self, base='L'):
        self._lbl += 1; return f'{base}_{self._lbl}'
    def raw(self, text): self.items.append(('raw', text))
    def comment(self, text): self.items.append(('raw', '    ; ' + text))
    def wait_vm(self, tok=None): self.items.append(('wait', 'vm', tok))
    def wait_lgkm(self, tok=None): self.items.append(('wait', 'lgkm', tok))
    def assume_drained(self): self.items.append(('drained',))
    def optional(self, on): self._opt = on
    def dual(self, cond_sreg, fast, slow):
        self.items.append(('dual', cond_sreg, [parse(t) for t in fast], [parse(t) for t in slow]))

    def finalize(self):
        out = []
        hist = []
        vmq, lq = [], []
        def emit_plain(text, ws=1, ins=None):
            out.append('    ' + text)
            if ins is None:
                ins = Ins(text); ins.ws = ws
            hist.append(ins)
            if len(hist) > 40: del hist[0]
        def do_wait(nvm, nl):
            parts = []
            if nvm is not None: parts.append(f'vmcnt({min(nvm, 63)})')
            if nl is not None: parts.append(f'lgkmcnt({min(nl, 15)})')
            if parts: emit_plain('s_waitcnt ' + ' '.join(parts))
        def prewait(inss):
            nvm = nl = None
            for ins in inss:
                touch = ins.rd | ins.wr
                for k in range(len(vmq) - 1, -1, -1):
                    o = vmq[k]
                    if o.wr & touch and not (ins.kind == 'vload' and not (o.wr & ins.rd)):
                        n = len(vmq) - 1 - k
                        nvm = n if nvm is None else min(nvm, n); break
                for k in range(len(lq) - 1, -1, -1):
                    o = lq[k]
                    if o.wr & touch and not (ins.kind == 'dsread' and o.kind == 'dsread' and not (o.wr & ins.rd)):
                        n = len(lq) - 1 - k
                        if o.kind == 'smem' or any(x.kind == 'smem' for x in lq): n = 0
                        nl = n if nl is None else min(nl, n); break
            if nvm is not None: del vmq[:len(vmq) - min(nvm, 63)]
            if nl is not None: del lq[:len(lq) - min(nl, 15)]
            do_wait(nvm, nl)
        def pad(inss):
            req = 0
            for ins in inss:
                d = 0
                for P in reversed(hist):
                    n = need(P, ins)
                    if n - d > req: req = n - d
                    if not P.optional: d += P.ws
                    if d >= 20: break
            while req > 0:
                k = min(req, 16)
                emit_plain(f's_nop {k-1}', ws=k); req -= k
        def track(ins):
            if ins.kind in ('vload', 'vstore', 'dma'): vmq.append(ins)
            if ins.kind in ('dsread', 'dswrite', 'smem'): lq.append(ins)
        for it in self.items:
            if isinstance(it, Ins):
                prewait([it]); pad([it])
                emit_plain(it.text, ins=it); track(it)
                if it.mn == 's_waitcnt':
                    m = re.search(r'vmcnt\((\d+)\)', it.text)
                    if m: del vmq[:max(0, len(vmq) - int(m.group(1)))]
                    m = re.search(r'lgkmcnt\((\d+)\)', it.text)
                    if m: del lq[:max(0, len(lq) - int(m.group(1)))]
            elif it[0] == 'label': out.append(it[1] + ':')
            elif it[0] == 'raw': out.append(it[1])
            elif it[0] == 'drained': vmq.clear(); lq.clear()
            elif it[0] == 'wait':
                q = vmq if it[1] == 'vm' else lq
                tok = it[2]
                if tok is None: n = 0; hit = True
                else:
                    hit = tok in q
                    n = len(q) - 1 - q.index(tok) if hit else None
                    if hit and it[1] == 'lgkm' and any(x.kind == 'smem' for x in q): n = 0
                if hit:
                    lim = 63 if it[1] == 'vm' else 15
                    del q[:len(q) - min(n, lim)]
                    do_wait(n if it[1] == 'vm' else None, n if it[1] == 'lgkm' else None)
            elif it[0] == 'dual':
                _, cond, fast, slow = it
                prewait(fast); pad(fast)
                self._lbl += 1; ls, le = f'Lslow_{self._lbl}', f'Ldual_{self._lbl}'
                emit_plain(f's_cmp_eq_u32 {cond}, 0'); emit_plain(f's_cbranch_scc1 {ls}')
                for f in fast:
                    pad([f]); emit_plain(f.text, ins=f); track(f)
                out.append(f'    s_branch {le}')
                out.append(ls + ':')
                for f in slow: out.append('    ' + f.text)
                out.append(le + ':')
        return '\n'.join(out) + '\n'
```

```python
FLG_OFF   = 0x0
KVF_OFF   = 0x8000
O_OFF     = 0x100000
X1_OFF    = 0x300000
X2_OFF    = 0x500000
H_OFF     = 0x700000
KV_OFF    = 0x1000000
KV_LAYER  = 0x400000
ST1_OFF   = 0x1800000
ST2_OFF   = 0x1840000
STAMP_OFF = 0x2000000
```

```python
import sys, math
from asmlib import Asm, V, Areg, S
import layout as LY

NAME = "interleave_layers__sliding_block__dense_activation_silu__prompt"
STOP = 99
STAMPS = False
FORCE_SLOW = False
for arg in sys.argv[1:]:
    if arg.startswith('stop='): STOP = int(arg[5:])
    if arg == 'stamps': STAMPS = True
    if arg == 'slow': FORCE_SLOW = True

A = Asm()
MFMA = 'v_mfma_f32_32x32x16_bf16'
LOG2E = 1.4426950408889634
def f32(x):
    import struct
    return '0x%08x' % struct.unpack('<I', struct.pack('<f', x))[0]

SWS, SX, SWQKV, SWO, SW1, SW2, SOUT, SDBG = 's[4:7]', 's[8:11]', 's[12:15]', 's[16:19]', 's[20:23]', 's[24:27]', 's[28:31]', 's[32:35]'
sC, sJ, sW, sFAST, sRH, sCB = 's36', 's37', 's38', 's39', 's40', 's41'
sT = ['s42', 's43', 's44', 's45', 's46', 's47', 's48', 's49']
sFO, sFX1, sFH, sFX2, sFKV = 's50', 's51', 's52', 's53', 's54'
sSPIN = 's55'
sRBG = 's56'
sOFF, sOFF2 = 's57', 's58'
sMASKA, sMASKB = 's[92:93]', 's[94:95]'
SMASK0 = 60
vLANE, vL16, vTR = 0, 1, 2
vRES = 4
vNM, vRS = 12, 14
vT0, vT1, vT2, vT3 = 16, 17, 18, 19
WORK = 20
def W1REG(ks):
    return Areg(224 + 4 * ks, 4) if ks < 8 else V(160 + 4 * (ks - 8), 4)
def W2REG(i, nh): return Areg((i * 2 + nh) * 4, 4)
L_WQ = 0
L_S = 98304
KVSLOT = 4112
L_KV = L_S
L_MISC = L_S + 49408
L_CSQ = L_MISC
L_CS1 = L_MISC + 512
L_STAT = L_MISC + 1024
L_BNC = L_MISC + 2048
L_PMASK = L_MISC + 10240
LDS_BYTES = 163840

nstamp = [0]
vSTAMP = 3
def stamp():
    if not STAMPS: return
    k = nstamp[0]; nstamp[0] += 1
    assert k < 64
    A('s_memrealtime s[96:97]')
    A('s_waitcnt lgkmcnt(0)')
    A(f'v_writelane_b32 {V(vSTAMP)}, s96, {k}')

def finish():
    A.label('L_end')
    if STAMPS:
        A('s_waitcnt vmcnt(0) lgkmcnt(0)')
        stamp()
        A(f's_lshl_b32 {sT[0]}, s2, 2'); A(f's_add_u32 {sT[0]}, {sT[0]}, {sW}'); A(f's_lshl_b32 {sT[0]}, {sT[0]}, 8')
        A(f's_add_u32 {sT[0]}, {sT[0]}, {LY.STAMP_OFF}')
        A(f'v_lshlrev_b32 v20, 2, {V(vLANE)}')
        A(f'buffer_store_dword {V(vSTAMP)}, v20, {SWS}, {sT[0]} offen')
    A.label('L_exit')
    A('s_endpgm')

def poll(vaddr, soff, expect, vtmp, width=1, custom=None):
    lp = A.newlabel('Lpoll'); ok = A.newlabel('Lpok')
    A(f's_mov_b32 {sSPIN}, 0')
    A.label(lp)
    A(f'buffer_load_dword {V(vtmp)}, {V(vaddr)}, {SWS}, {soff} offen sc1')
    A(f's_add_u32 {sSPIN}, {sSPIN}, 1')
    A(f's_cmp_gt_u32 {sSPIN}, 0x40000')
    A('s_cbranch_scc1 L_exit')
    A('s_waitcnt vmcnt(0)')
    A(f'v_cmp_gt_u32 vcc, {expect}, {V(vtmp)}')
    A(f's_cbranch_vccnz {lp}')

def publish(flag_soff, val, fastok=True):
    A(f'v_mov_b32 {V(vT0)}, {val}'); A(f'v_mov_b32 {V(vT1)}, 0')
    A.wait_vm()
    A('s_mov_b64 exec, 1')
    slow = [f'buffer_store_dword {V(vT0)}, {V(vT1)}, {SWS}, {flag_soff} offen sc1']
    if fastok: A.dual(sFAST, [f'buffer_store_dword {V(vT0)}, {V(vT1)}, {SWS}, {flag_soff} offen'], slow)
    else: A(slow[0])
    A('s_mov_b64 exec, -1')

def store_dual(lines):
    A.dual(sFAST, lines, [l + ' sc1' for l in lines])

def startup():
    A('s_cmp_ge_u32 s2, 256'); A('s_cbranch_scc1 L_exit')
    for sreg, off in ((8, 0), (12, 8), (16, 16), (20, 32), (24, 40), (28, 48), (32, 56), (4, 64)):
        A(f's_load_dwordx2 s[{sreg}:{sreg+1}], s[0:1], {off}')
    A(f'v_mov_b32 v3, 0')
    stamp()
    A(f'v_lshrrev_b32 {V(vT0)}, 6, v0')
    A(f'v_and_b32 {V(vLANE)}, 63, v0')
    A(f'v_readfirstlane_b32 {sW}, {V(vT0)}')
    A(f'v_lshlrev_b32 {V(vL16)}, 4, {V(vLANE)}')
    A(f's_and_b32 {sT[0]}, s2, 7'); A(f's_lshl_b32 {sT[0]}, {sT[0]}, 1')
    A(f's_bfe_u32 {sT[1]}, s2, 0x10003')
    A(f's_or_b32 {sC}, {sT[0]}, {sT[1]}')
    A(f's_lshr_b32 {sJ}, s2, 4')
    A(f's_and_b32 {sRH}, {sJ}, 1'); A(f's_lshr_b32 {sCB}, {sJ}, 1')
    A(f's_lshl_b32 {sRBG}, {sC}, 2'); A(f's_add_u32 {sRBG}, {sRBG}, {sW}')
    for sreg, nbytes in ((8, 2048*512*2), (12, 512*1536*2), (16, 512*512*2), (20, 512*1792*2), (24, 1792*512*2), (28, 2048*512*2), (32, 256), (4, 0x10000000)):
        A(f's_mov_b32 s{sreg+2}, {nbytes}'); A(f's_mov_b32 s{sreg+3}, 0x20000')
    A(f'v_lshrrev_b32 {V(vT0)}, 5, {V(vLANE)}'); A(f'v_lshlrev_b32 {V(vTR)}, 9, {V(vT0)}')
    A(f'v_bfe_u32 {V(vT0)}, {V(vLANE)}, 2, 2'); A(f'v_lshl_add_u32 {V(vTR)}, {V(vT0)}, 6, {V(vTR)}')
    A(f'v_bfe_u32 {V(vT0)}, {V(vLANE)}, 4, 1'); A(f'v_lshl_add_u32 {V(vTR)}, {V(vT0)}, 5, {V(vTR)}')
    A(f'v_and_b32 {V(vT0)}, 1, {V(vLANE)}'); A(f'v_lshl_add_u32 {V(vTR)}, {V(vT0)}, 4, {V(vTR)}')
    A(f'v_bfe_u32 {V(vT0)}, {V(vLANE)}, 1, 1'); A(f'v_lshl_add_u32 {V(vTR)}, {V(vT0)}, 3, {V(vTR)}')
    A(f's_lshl_b32 {sT[0]}, {sC}, 11')
    A(f's_lshl_b32 {sT[1]}, {sW}, 4'); A(f's_add_u32 {sT[1]}, {sT[1]}, {sJ}'); A(f's_lshl_b32 {sT[1]}, {sT[1]}, 2')
    A(f's_add_u32 {sFO}, {sT[0]}, {sT[1]}')
    A(f's_lshr_b32 {sT[1]}, {sW}, 1'); A(f's_lshl_b32 {sT[2]}, {sRH}, 1'); A(f's_add_u32 {sT[1]}, {sT[1]}, {sT[2]}')
    A(f's_lshl_b32 {sT[1]}, {sT[1]}, 4'); A(f's_lshl_b32 {sT[2]}, {sCB}, 1'); A(f's_add_u32 {sT[1]}, {sT[1]}, {sT[2]}')
    A(f's_and_b32 {sT[2]}, {sW}, 1'); A(f's_add_u32 {sT[1]}, {sT[1]}, {sT[2]}'); A(f's_lshl_b32 {sT[1]}, {sT[1]}, 2')
    A(f's_add_u32 {sFX1}, {sT[0]}, {sT[1]}'); A(f's_add_u32 {sFX2}, {sFX1}, 1024'); A(f's_add_u32 {sFX1}, {sFX1}, 256')
    A(f's_lshl_b32 {sT[1]}, {sJ}, 2'); A(f's_add_u32 {sT[1]}, {sT[1]}, {sW}'); A(f's_lshl_b32 {sT[1]}, {sT[1]}, 2')
    A(f's_add_u32 {sFH}, {sT[0]}, {sT[1]}'); A(f's_add_u32 {sFH}, {sFH}, 512')
    A(f's_lshl_b32 {sT[1]}, {sJ}, 8'); A(f's_lshl_b32 {sT[2]}, {sRBG}, 2'); A(f's_add_u32 {sFKV}, {sT[1]}, {sT[2]}')
    A(f's_add_u32 {sFKV}, {sFKV}, {LY.KVF_OFF}')
    A(f's_mov_b32 {sFAST}, 0')
    A('s_waitcnt lgkmcnt(0)')
    A(f'v_mov_b32 {V(vT0)}, {sFO}')
    A(f's_add_u32 {sT[0]}, {sFH}, 256')
    for k, sr in enumerate((sFX1, sFH, sT[0], sFX2, sFKV)):
        A(f'v_writelane_b32 {V(vT0)}, {sr}, {k+1}')
    A(f'v_mov_b32 {V(vT1)}, 0')
    A('s_mov_b64 exec, 0x3f')
    A(f'buffer_store_dword {V(vT1)}, {V(vT0)}, {SWS}, 0 offen sc1')
    A('s_mov_b64 exec, -1')

def s0_signal():
    A(f's_getreg_b32 {sT[0]}, hwreg(HW_REG_XCC_ID)'); A(f's_and_b32 {sT[0]}, {sT[0]}, 7')
    A(f's_mul_i32 {sT[0]}, {sT[0]}, 7')
    A(f's_mov_b64 s[44:45], 1'); A(f's_lshl_b64 s[44:45], s[44:45], {sT[0]}')
    A(f's_add_u32 s45, s45, 0x1000000')
    A(f'v_mov_b32 {V(vT0)}, s44'); A(f'v_mov_b32 {V(vT1)}, s45')
    A(f's_lshl_b32 {sT[0]}, {sC}, 3'); A(f'v_mov_b32 {V(vT2)}, {sT[0]}')
    A('s_mov_b64 exec, 1')
    A(f'buffer_atomic_add_x2 v[{vT0}:{vT1}], {V(vT2)}, {SDBG}, 0 offen sc1')
    A('s_mov_b64 exec, -1')

def s0_wait():
    A(f'v_min_u32 {V(vT2)}, 2, {V(vLANE)}')
    A(f'v_sub_u32 {V(vT2)}, {sC}, {V(vT2)}'); A(f'v_max_i32 {V(vT2)}, 0, {V(vT2)}'); A(f'v_lshlrev_b32 {V(vT2)}, 3, {V(vT2)}')
    lp = A.newlabel('Ls0')
    A(f's_mov_b32 {sSPIN}, 0')
    A.label(lp)
    A(f'buffer_load_dwordx2 v[{vT0}:{vT1}], {V(vT2)}, {SDBG}, 0 offen sc1')
    A(f's_add_u32 {sSPIN}, {sSPIN}, 1'); A(f's_cmp_gt_u32 {sSPIN}, 0x40000'); A('s_cbranch_scc1 L_exit')
    A('s_waitcnt vmcnt(0)')
    A(f'v_lshrrev_b32 {V(vT3)}, 24, {V(vT1)}')
    A(f'v_cmp_gt_u32 vcc, 64, {V(vT3)}')
    A(f's_cbranch_vccnz {lp}')
    A(f'v_readfirstlane_b32 s44, {V(vT0)}'); A(f'v_readfirstlane_b32 s45, {V(vT1)}')
    A(f's_getreg_b32 {sT[0]}, hwreg(HW_REG_XCC_ID)'); A(f's_and_b32 {sT[0]}, {sT[0]}, 7'); A(f's_mul_i32 {sT[0]}, {sT[0]}, 7')
    A(f's_lshr_b64 s[44:45], s[44:45], {sT[0]}'); A(f's_and_b32 s44, s44, 127')
    A(f's_cmp_eq_u32 s44, 64'); A(f's_cselect_b32 {sFAST}, {0 if FORCE_SLOW else 1}, 0')

def stats_finish(vS1, vS2):
    A(f'v_mov_b32 {V(vT0)}, {V(vS1)}'); A(f'v_mov_b32 {V(vT1)}, {V(vS2)}')
    A(f'v_permlane32_swap_b32 {V(vT0)}, {V(vS1)}'); A(f'v_permlane32_swap_b32 {V(vT1)}, {V(vS2)}')
    A(f'v_add_f32 {V(vS1)}, {V(vS1)}, {V(vT0)}'); A(f'v_add_f32 {V(vS2)}, {V(vS2)}, {V(vT1)}')
    A(f'v_mul_f32 {V(vNM)}, {f32(-1.0/512)}, {V(vS1)}')
    A(f'v_mul_f32 {V(vT0)}, {f32(1.0/512)}, {V(vS2)}')
    A(f'v_fma_f32 {V(vT0)}, -{V(vNM)}, {V(vNM)}, {V(vT0)}')
    A(f'v_max_f32 {V(vT0)}, 0, {V(vT0)}')
    A(f'v_add_f32 {V(vT0)}, {f32(1e-5)}, {V(vT0)}')
    A(f'v_rsq_f32 {V(vRS)}, {V(vT0)}')

def stat_addr(v):
    A(f'v_lshrrev_b32 {V(v)}, 5, {V(vLANE)}'); A(f'v_lshlrev_b32 {V(v)}, 11, {V(v)}')
    A(f'v_and_b32 {V(vT1)}, 31, {V(vLANE)}'); A(f'v_lshl_add_u32 {V(v)}, {V(vT1)}, 3, {V(v)}')
def stat_load(base, vaddr, soff):
    for i in range(8):
        A(f'buffer_load_dwordx2 {V(base + 2*i, 2)}, {V(vaddr)}, {SWS}, {soff} offen offset:{256*i} sc1')
def stat_reduce(b, s1, s2):
    for st in (8, 4):
        for i in range(0, st, 2):
            A(f'v_pk_add_f32 {V(b+i,2)}, {V(b+i,2)}, {V(b+st+i,2)}')
    A(f'v_add_f32 {V(s1)}, {V(b)}, {V(b+2)}'); A(f'v_add_f32 {V(s2)}, {V(b+1)}, {V(b+3)}')

def make_masks():
    A(f'v_and_b32 {V(vT0)}, 31, {V(vLANE)}'); A(f'v_lshrrev_b32 {V(vT1)}, 5, {V(vLANE)}'); A(f'v_lshlrev_b32 {V(vT1)}, 2, {V(vT1)}')
    A(f'v_sub_u32 {V(vT0)}, {V(vT0)}, {V(vT1)}')
    for r in range(16):
        A(f'v_cmp_le_i32 s[{SMASK0+2*r}:{SMASK0+2*r+1}], {(r & 3) + 8 * (r >> 2)}, {V(vT0)}')
    A(f'v_mov_b32 {V(vT0)}, 0xffff'); A(f'v_mov_b32 {V(vT1)}, 0xffff0000')
    B = 160
    for t in range(8):
        A(f'v_cndmask_b32 {V(B+t)}, 0, {V(vT0)}, s[{SMASK0+4*t}:{SMASK0+4*t+1}]')
        A(f'v_cndmask_b32 {V(vT2)}, 0, {V(vT1)}, s[{SMASK0+4*t+2}:{SMASK0+4*t+3}]')
        A(f'v_or_b32 {V(B+t)}, {V(B+t)}, {V(vT2)}')
    A(f'v_add_u32 {V(vT0)}, {L_PMASK}, {V(vL16)}')
    A(f'ds_write_b128 {V(vT0)}, {V(B,4)}'); A(f'ds_write_b128 {V(vT0)}, {V(B+4,4)} offset:1024')

def p1(L):
    first = (L == 0)
    if first:
        XB = 32; ACC = 160; CSA = 208; WB = 224; NW = 4
        xreg = lambda ks: XB + 4 * ks
    else:
        XB = 20; ACC = 84; WB = 132; NW = 3
        xreg = lambda ks: XB + 4 * (ks % 16)
    aq, ak, av = ACC, ACC + 16, ACC + 32
    wreg = lambda ks, p: WB + ((ks & 1) * NW + p) * 4
    stage_tok = {}
    if first:
        vXA = 20
        A(f'v_bfe_u32 {V(21)}, {V(vLANE)}, 2, 3')
        A(f'v_lshlrev_b32 {V(vXA)}, 10, {V(21)}')
        A(f'v_lshrrev_b32 {V(22)}, 5, {V(vLANE)}'); A(f'v_lshl_add_u32 {V(vXA)}, {V(22)}, 6, {V(vXA)}')
        A(f'v_and_b32 {V(22)}, 3, {V(vLANE)}'); A(f'v_lshrrev_b32 {V(23)}, 2, {V(21)}'); A(f'v_xor_b32 {V(22)}, {V(22)}, {V(23)}')
        A(f'v_lshl_add_u32 {V(24)}, {V(22)}, 4, {V(vXA)}')
        A(f'v_xor_b32 {V(22)}, 2, {V(22)}')
        A(f'v_lshl_add_u32 {V(25)}, {V(22)}, 4, {V(vXA)}')
        A(f's_lshl_b32 {sOFF}, {sRBG}, 15')
        for g in range(1, 4): A(f's_add_u32 {sT[g]}, {sOFF}, {g*8192}')
        gs = [sOFF, sT[1], sT[2], sT[3]]
        A(f'v_lshrrev_b32 {V(26)}, 2, {V(vLANE)}'); A(f'v_mul_u32_u24 {V(26)}, 3072, {V(26)}')
        A(f'v_and_b32 {V(27)}, 3, {V(vLANE)}'); A(f'v_lshl_add_u32 {V(26)}, {V(27)}, 4, {V(26)}')
        A(f's_mul_i32 {sT[4]}, {sW}, {16*3072}'); A(f's_lshl_b32 {sT[5]}, {sJ}, 6'); A(f's_add_u32 {sT[4]}, {sT[4]}, {sT[5]}')
        A(f's_mul_i32 {sT[5]}, {sW}, 3072')
        def xload(s):
            for g in range(4):
                A(f'buffer_load_dwordx4 {V(XB + 16*s + 4*g, 4)}, {V(24 + (g & 1))}, {SX}, {gs[g]} offen offset:{128*s}')
        def wdma(i):
            A(f's_mov_b32 m0, {sT[5]}')
            t = None
            for p in range(3):
                t = A(f'buffer_load_dwordx4 {V(26)}, {SWQKV}, {sT[4]} offen offset:{1024*p} lds')
            A(f's_add_u32 {sT[4]}, {sT[4]}, {64*3072}'); A(f's_add_u32 {sT[5]}, {sT[5]}, {4*3072}')
            return t
        for s in range(8):
            xload(s)
            t = wdma(s)
            if s & 1: stage_tok[s >> 1] = t
        make_masks()
        resid_load()
        vBW, vBR = 28, 29
        A(f's_lshl_b32 {sT[0]}, {sW}, 13'); A(f's_add_u32 {sT[0]}, {sT[0]}, {L_S}')
        A(f'v_add_u32 {V(vBW)}, {sT[0]}, {V(vL16)}')
        A(f'v_bfe_u32 {V(21)}, {V(vLANE)}, 3, 2'); A(f'v_lshlrev_b32 {V(vBR)}, 10, {V(21)}')
        A(f'v_and_b32 {V(21)}, 7, {V(vLANE)}'); A(f'v_lshl_add_u32 {V(vBR)}, {V(21)}, 6, {V(vBR)}')
        A(f'v_add_u32 {V(vBR)}, {sT[0]}, {V(vBR)}')
        A(f'v_bfe_u32 {V(21)}, {V(vLANE)}, 2, 2'); A(f'v_lshrrev_b32 {V(22)}, 5, {V(vLANE)}'); A(f'v_xor_b32 {V(21)}, {V(21)}, {V(22)}')
        A(f'v_xor_b32 {V(22)}, 2, {V(21)}')
        A(f'v_lshl_add_u32 {V(30)}, {V(22)}, 4, {V(vBR)}')
        A(f'v_lshl_add_u32 {V(vBR)}, {V(21)}, 4, {V(vBR)}')
        vS1, vS2, vONE = 21, 22, 23
        A(f'v_mov_b32 {V(vS1)}, 0'); A(f'v_mov_b32 {V(vS2)}, 0'); A(f'v_mov_b32 {V(vONE)}, 0x3f803f80')
        def bounce(s):
            o = (s & 1) * 4096
            for g in range(4): A(f'ds_write_b128 {V(vBW)}, {V(XB + 16*s + 4*g, 4)} offset:{o + 1024*g}')
            for q in range(4):
                A(f'ds_read_b128 {V(XB + 16*s + 4*q, 4)}, {V(30 if q & 1 else vBR)} offset:{o + 512*(q>>1)}')
        def stat(s):
            for r in range(16):
                A(f'v_dot2_f32_bf16 {V(vS1)}, {V(XB+16*s+r)}, {V(vONE)}, {V(vS1)}')
                A(f'v_dot2_f32_bf16 {V(vS2)}, {V(XB+16*s+r)}, {V(XB+16*s+r)}, {V(vS2)}')
        bounce(0)
        for s in range(8):
            if s + 1 < 8: bounce(s + 1)
            stat(s)
        stats_finish(vS1, vS2)
        ONES = 24
        for r in range(4): A(f'v_mov_b32 {V(ONES + r)}, 0x3f803f80')
        vTRC = 28
        A(f's_min_u32 {sT[0]}, {sW}, 2'); A(f's_lshl_b32 {sT[0]}, {sT[0]}, 10')
        A(f'v_add_u32 {V(vTRC)}, {sT[0]}, {V(vTR)}')
        A(f'v_add_u32 {V(29)}, {16*3072}, {V(vTRC)}')
    else:
        A(f'v_and_b32 {V(vT2)}, 15, {V(vLANE)}'); A(f'v_lshlrev_b32 {V(vT2)}, 2, {V(vT2)}')
        A(f's_lshl_b32 {sOFF}, {sC}, 11'); A(f's_lshl_b32 {sT[0]}, {sW}, 6'); A(f's_add_u32 {sOFF}, {sOFF}, {sT[0]}'); A(f's_add_u32 {sOFF}, {sOFF}, 1024')
        stat_addr(156)
        A(f's_lshl_b32 {sOFF2}, {sRBG}, 12'); A(f's_add_u32 {sOFF2}, {sOFF2}, {LY.ST2_OFF}')
        A(f's_lshl_b32 {sT[4]}, {sRBG}, 15'); A(f's_add_u32 {sT[4]}, {sT[4]}, {LY.X2_OFF}')
        poll(vT2, sOFF, L, vT0)
        stamp()
        def xload(ks):
            A(f'buffer_load_dwordx4 {V(xreg(ks), 4)}, {V(vL16)}, {SWS}, {sT[4]} offen offset:{(ks & 3) * 1024} sc1')
            if ks & 3 == 3: A(f's_add_u32 {sT[4]}, {sT[4]}, 4096')
        SB = xreg(12)
        stat_load(SB, 156, sOFF2)
        for ks in range(12): xload(ks)
        stat_reduce(SB, 157, 158)
        for ks in range(12, 16): xload(ks)
        stats_finish(157, 158)
    stamp()
    vTRH = vT3
    A(f'v_add_u32 {V(vTRH)}, {16*3072}, {V(vTR)}')
    def wread(ks, parts, slot=None):
        base = vTR if ks < 16 else vTRH
        for p in parts:
            r = wreg(ks, p)
            o = L_WQ + (ks % 16) * 3072 + p * 1024
            A(f'ds_read_b64_tr_b16 {V(r, 2)}, {V(base)} offset:{o}')
            A(f'ds_read_b64_tr_b16 {V(r + 2, 2)}, {V(base)} offset:{o + 256}')
        if first and parts != [0]:
            r = wreg(ks, 3); b = 28 if ks < 16 else 29
            o = L_WQ + (ks % 16) * 3072
            A(f'ds_read_b64_tr_b16 {V(r, 2)}, {V(b)} offset:{o}')
            A(f'ds_read_b64_tr_b16 {V(r + 2, 2)}, {V(b)} offset:{o + 256}')
    def ready(ks):
        if first and ks % 8 == 0:
            if ks == 24:
                A.wait_vm();
            else:
                A.wait_vm(stage_tok[ks // 8])
            A('s_barrier')
            if ks == 24: s0_signal_needed.append(1)
    s0_signal_needed = []
    parts_of = lambda ks: [0, 1, 2] if ks < 16 else [1, 2]
    ready(0); wread(0, parts_of(0))
    for ks in range(32):
        if ks + 1 < 32:
            ready(ks + 1); wread(ks + 1, parts_of(ks + 1))
        else:
            wread(16, [0])
        c = lambda a: '0' if ks == 0 else V(a, 16)
        x = V(xreg(ks), 4)
        A(f'{MFMA} {V(ak,16)}, {V(wreg(ks,1),4)}, {x}, {c(ak)}')
        A(f'{MFMA} {V(av,16)}, {x}, {V(wreg(ks,2),4)}, {c(av)}')
        if ks < 16: A(f'{MFMA} {V(aq,16)}, {V(wreg(ks,0),4)}, {x}, {c(aq)}')
        if first: A(f'{MFMA} {V(CSA,16)}, {V(24,4)}, {V(wreg(ks,3),4)}, {c(CSA)}')
        if not first and ks < 16: xload(ks + 16)
    for ks in range(16, 32):
        if ks + 1 < 32: wread(ks + 1, [0])
        A(f'{MFMA} {V(aq,16)}, {V(wreg(ks,0),4)}, {V(xreg(ks),4)}, {V(aq,16)}')
    if first:
        A(f'v_and_b32 {V(20)}, 0x13, {V(vLANE)}'); A(f'v_bfe_u32 {V(21)}, {V(vLANE)}, 2, 1'); A(f'v_lshl_add_u32 {V(20)}, {V(21)}, 3, {V(20)}')
        A(f'v_bfe_u32 {V(21)}, {V(vLANE)}, 3, 1'); A(f'v_lshl_add_u32 {V(20)}, {V(21)}, 2, {V(20)}')
        A(f'v_lshlrev_b32 {V(20)}, 2, {V(20)}')
        A(f's_min_u32 {sT[0]}, {sW}, 2'); A(f's_lshl_b32 {sT[0]}, {sT[0]}, 7'); A(f's_add_u32 {sT[0]}, {sT[0]}, {L_CSQ}')
        A(f'v_add_u32 {V(21)}, {sT[0]}, {V(20)}')
        A(f'ds_write_b32 {V(21)}, {V(CSA)}')
        A.wait_lgkm(); A('s_barrier')
        s0_signal()
    T = XB
    A(f's_lshl_b32 {sT[0]}, {sW}, 8'); A(f's_add_u32 {sT[0]}, {sT[0]}, {L_STAT}')
    A(f'v_and_b32 {V(vT0)}, 31, {V(vLANE)}'); A(f'v_lshlrev_b32 {V(vT0)}, 2, {V(vT0)}'); A(f'v_add_u32 {V(vT0)}, {sT[0]}, {V(vT0)}')
    A(f'ds_write2_b32 {V(vT0)}, {V(vNM)}, {V(vRS)} offset0:0 offset1:32')
    A(f'v_lshrrev_b32 {V(vT1)}, 5, {V(vLANE)}')
    A(f'v_lshlrev_b32 {V(vT2)}, 4, {V(vT1)}'); A(f'v_add_u32 {V(vT2)}, {sT[0]}, {V(vT2)}')
    for g in range(4):
        A(f'ds_read_b128 {V(T + 4*g, 4)}, {V(vT2)} offset:{32*g}')
        A(f'ds_read_b128 {V(T + 16 + 4*g, 4)}, {V(vT2)} offset:{128 + 32*g}')
    A(f'v_lshlrev_b32 {V(vT1)}, 5, {V(vT1)}'); A(f'v_add_u32 {V(vT1)}, {L_CSQ}, {V(vT1)}')
    for g in range(4):
        o = 64 * (g >> 1) + 16 * (g & 1)
        A(f'ds_read_b128 {V(T + 32 + 4*g, 4)}, {V(vT1)} offset:{128 + o}')
        A(f'ds_read_b128 {V(T + 48 + 4*g, 4)}, {V(vT1)} offset:{o}')
    A(f'v_and_b32 {V(vT0)}, 0x13, {V(vLANE)}'); A(f'v_bfe_u32 {V(vT2)}, {V(vLANE)}, 2, 1'); A(f'v_lshl_add_u32 {V(vT0)}, {V(vT2)}, 3, {V(vT0)}')
    A(f'v_bfe_u32 {V(vT2)}, {V(vLANE)}, 3, 1'); A(f'v_lshl_add_u32 {V(vT0)}, {V(vT2)}, 2, {V(vT0)}')
    A(f'v_lshlrev_b32 {V(vT0)}, 2, {V(vT0)}')
    CSV = WB
    A(f'ds_read_b32 {V(CSV)}, {V(vT0)} offset:{L_CSQ + 256 - 65536*0}') if L_CSQ + 256 < 65536 else (
        A(f'v_add_u32 {V(vT0)}, {L_CSQ + 256}, {V(vT0)}'), A(f'ds_read_b32 {V(CSV)}, {V(vT0)}'))
    KP, VP = WB + 4, WB + 12
    for r in range(0, 16, 2):
        A(f'v_pk_fma_f32 {V(ak+r,2)}, {V(T+32+r,2)}, {V(vNM,2)}, {V(ak+r,2)} op_sel_hi:[1,0,1]')
        A(f'v_pk_mul_f32 {V(ak+r,2)}, {V(ak+r,2)}, {V(vRS,2)} op_sel_hi:[1,0]')
        A(f'v_cvt_pk_bf16_f32 {V(KP + r//2)}, {V(ak+r)}, {V(ak+r+1)}')
    for r in range(0, 16, 2):
        A(f'v_pk_fma_f32 {V(av+r,2)}, {V(T+r,2)}, {V(CSV,2)}, {V(av+r,2)} op_sel_hi:[1,0,1]')
        A(f'v_pk_mul_f32 {V(av+r,2)}, {V(av+r,2)}, {V(T+16+r,2)}')
        A(f'v_cvt_pk_bf16_f32 {V(VP + r//2)}, {V(av+r)}, {V(av+r+1)}')
    A(f's_lshl_b32 {sOFF}, {sJ}, 6'); A(f's_add_u32 {sOFF}, {sOFF}, {sRBG}'); A(f's_lshl_b32 {sOFF}, {sOFF}, 12')
    A(f's_add_u32 {sOFF}, {sOFF}, {LY.KV_OFF + L*LY.KV_LAYER}')
    for f in range(4):
        A(f'buffer_store_dwordx4 {V(KP + 4*f, 4)}, {V(vL16)}, {SWS}, {sOFF} offen offset:{1024*f} sc1')
    A(f's_add_u32 {sT[0]}, {sW}, 8'); A(f's_mul_i32 {sT[0]}, {sT[0]}, {KVSLOT}'); A(f's_add_u32 {sT[0]}, {sT[0]}, {L_KV}')
    A(f'v_add_u32 {V(vT0)}, {sT[0]}, {V(vL16)}')
    for f in range(4): A(f'ds_write_b128 {V(vT0)}, {V(KP + 4*f, 4)} offset:{1024*f}')
    A(f'v_min_u32 {V(vT1)}, 11, {V(vLANE)}')
    A(f's_lshl_b32 {sT[0]}, {sC}, 2'); A(f'v_add_u32 {V(vT2)}, {sT[0]}, {V(vT1)}')
    A(f'v_mov_b32 {V(T)}, 0x3f803f80')
    A(f'v_cmp_le_u32 vcc, 8, {V(vT2)}'); A(f'v_cndmask_b32 {V(T)}, 0, {V(T)}, vcc')
    for r in range(1, 4): A(f'v_mov_b32 {V(T+r)}, {V(T)}')
    A(f'v_mul_u32_u24 {V(vT1)}, {KVSLOT}, {V(vT1)}'); A(f'v_add_u32 {V(vT1)}, {L_KV + 4096}, {V(vT1)}')
    A(f'ds_write_b128 {V(vT1)}, {V(T,4)}')
    A(f'v_mul_f32 {V(vRS)}, {f32(0.25 * LOG2E)}, {V(vRS)}')
    CQ = T + 48
    QT = WB + 20 if not first else 224 + 24
    for r in range(0, 16, 2):
        A(f'v_pk_fma_f32 {V(aq+r,2)}, {V(CQ+r,2)}, {V(vNM,2)}, {V(aq+r,2)} op_sel_hi:[1,0,1]')
        A(f'v_pk_mul_f32 {V(aq+r,2)}, {V(aq+r,2)}, {V(vRS,2)} op_sel_hi:[1,0]')
    for r in range(0, 16, 2):
        A(f'v_cvt_pk_bf16_f32 {V(P2Q + r//2)}, {V(aq+r)}, {V(aq+r+1)}')
    publish(sFKV, L + 1, fastok=False)
    stamp()

def resid_load():
    A(f'v_and_b32 {V(vT0)}, 31, {V(vLANE)}'); A(f'v_lshlrev_b32 {V(vT0)}, 10, {V(vT0)}')
    A(f'v_lshrrev_b32 {V(vT1)}, 5, {V(vLANE)}'); A(f'v_lshl_add_u32 {V(vT0)}, {V(vT1)}, 4, {V(vT0)}')
    own_ids(sT[6], sT[7])
    A(f's_lshl_b32 {sT[6]}, {sT[6]}, 15'); A(f's_lshl_b32 {sT[7]}, {sT[7]}, 6'); A(f's_add_u32 {sT[6]}, {sT[6]}, {sT[7]}')
    for f in range(2):
        A(f'buffer_load_dwordx4 {V(vRES + 4*f, 4)}, {V(vT0)}, {SX}, {sT[6]} offen offset:{32*f}')

def own_ids(srbg, scb32):
    A(f's_lshl_b32 {srbg}, {sC}, 1'); A(f's_add_u32 {srbg}, {srbg}, {sRH}'); A(f's_lshl_b32 {srbg}, {srbg}, 1')
    A(f's_lshr_b32 {scb32}, {sW}, 1'); A(f's_add_u32 {srbg}, {srbg}, {scb32}')
    A(f's_and_b32 {scb32}, {sW}, 1'); A(f's_lshl1_add_u32 {scb32}, {sCB}, {scb32}')

P2Q, P2SA, P2SB, P2P, P2K, P2V, P2O = 20, 28, 44, 60, 68, 72, 80
WOB = 96
def WOREG(i, nh): return V(WOB + (i * 2 + nh) * 4, 4)

def wraw_addr(v0, rowbytes):
    A(f'v_lshrrev_b32 {V(v0)}, 2, {V(vLANE)}'); A(f'v_mul_u32_u24 {V(v0)}, {rowbytes}, {V(v0)}')
    A(f'v_and_b32 {V(v0+1)}, 3, {V(vLANE)}'); A(f'v_lshl_add_u32 {V(v0)}, {V(v0+1)}, 4, {V(v0)}')
    A(f's_and_b32 {sT[0]}, {sW}, 1'); A(f's_lshl_b32 {sT[0]}, {sT[0]}, 6')
    A(f'v_add_u32 {V(v0+1)}, {sT[0]}, {V(v0)}')
    A(f's_xor_b32 {sT[0]}, {sT[0]}, 64')
    A(f'v_add_u32 {V(v0)}, {sT[0]}, {V(v0)}')

def bounce_addr(vw, vr):
    A(f's_lshl_b32 {sT[0]}, {sW}, 11'); A(f's_add_u32 {sT[0]}, {sT[0]}, {L_BNC}')
    A(f'v_add_u32 {V(vw)}, {sT[0]}, {V(vL16)}'); A(f'v_add_u32 {V(vr)}, {sT[0]}, {V(vTR)}')
def sub(reg4, lo):
    k = reg4[0]; a = int(reg4[2:reg4.index(':')])
    return f'{k}[{a+lo}:{a+lo+1}]'
_bslot = [0]
def wtrans(reg4, vw, vr):
    o = (_bslot[0] & 1) * 1024; _bslot[0] += 1
    A(f'ds_write_b128 {V(vw)}, {reg4} offset:{o}')
    A(f'ds_read_b64_tr_b16 {sub(reg4,0)}, {V(vr)} offset:{o}')
    A(f'ds_read_b64_tr_b16 {sub(reg4,2)}, {V(vr)} offset:{o+256}')

def wo_load(va):
    wraw_addr(va, 1024)
    A(f's_lshl_b32 {sT[1]}, {sW}, 17'); A(f's_lshl_b32 {sT[2]}, {sCB}, 7'); A(f's_add_u32 {sT[1]}, {sT[1]}, {sT[2]}')
    for i in range(8):
        for nh in range(2):
            A(f'buffer_load_dwordx4 {WOREG(i, nh)}, {V(va + nh)}, {SWO}, {sT[1]} offen')
        A(f's_add_u32 {sT[1]}, {sT[1]}, 16384')

def p2(L):
    if L == 0: s0_wait()
    A(f's_lshl_b32 {sT[0]}, {sC}, 2'); A(f's_lshl1_add_u32 {sT[0]}, {sW}, {sT[0]}'); A(f's_sub_u32 {sT[0]}, {sT[0]}, 8')
    A(f's_lshl_b32 {sT[1]}, {sJ}, 6'); A(f's_add_u32 {sT[1]}, {sT[1]}, {sT[0]}')
    A(f's_lshl_b32 {sOFF}, {sT[1]}, 2'); A(f's_add_u32 {sOFF}, {sOFF}, {LY.KVF_OFF}')
    A(f's_lshl_b32 {sOFF2}, {sT[1]}, 12'); A(f's_add_u32 {sOFF2}, {sOFF2}, {LY.KV_OFF + L*LY.KV_LAYER}')
    A(f'v_and_b32 {V(vT2)}, 1, {V(vLANE)}'); A(f'v_lshlrev_b32 {V(vT2)}, 2, {V(vT2)}')
    skip = A.newlabel('Lnohalo'); go = A.newlabel('Lhalo')
    A(f's_cmp_lt_i32 {sT[0]}, 0'); A(f's_cbranch_scc1 {skip}')
    poll(vT2, sOFF, L + 1, vT0)
    A(f's_branch {go}')
    A.label(skip)
    A(f's_mov_b32 {sOFF2}, 0x7ff00000')
    A.label(go)
    stamp()
    A(f's_mul_i32 {sT[0]}, {sW}, {2*KVSLOT}'); A(f's_add_u32 {sT[0]}, {sT[0]}, {L_KV}')
    for b in range(2):
        A(f's_mov_b32 m0, {sT[0]}')
        for f in range(4):
            t = A(f'buffer_load_dwordx4 {V(vL16)}, {SWS}, {sOFF2} offen offset:{1024*f} sc1 lds')
        A(f's_add_u32 {sT[0]}, {sT[0]}, {KVSLOT}'); A(f's_add_u32 {sOFF2}, {sOFF2}, 4096')
    wo_load(vT0)
    vKA = 12; vVA = [13, 14]
    A(f's_mul_i32 {sT[0]}, {sW}, {KVSLOT}'); A(f's_add_u32 {sT[0]}, {sT[0]}, {L_KV}')
    A(f'v_add_u32 {V(vKA)}, {sT[0]}, {V(vL16)}')
    A(f'v_add_u32 {V(15)}, {L_PMASK}, {V(vL16)}')
    def vaddrs(hd):
        A(f'v_bfe_u32 {V(vT2)}, {V(vLANE)}, 4, 1'); A(f'v_cmp_eq_u32 vcc, {hd}, {V(vT2)}')
        A(f's_add_u32 {sT[1]}, {sT[0]}, 4096'); A(f'v_mov_b32 {V(vT2)}, {sT[1]}')
        for f in range(2):
            A(f'v_add_u32 {V(vT3)}, {2048 + 1024*f}, {V(vKA)}')
            A(f'v_cndmask_b32 {V(vVA[f])}, {V(vT2)}, {V(vT3)}, vcc')
    vaddrs(0)
    A.wait_vm(t); A.wait_lgkm(); A('s_barrier')
    stamp()
    A(f's_lshl_b32 {sOFF}, {sRBG}, 15'); A(f's_lshl_b32 {sT[1]}, {sJ}, 11'); A(f's_add_u32 {sOFF}, {sOFF}, {sT[1]}'); A(f's_add_u32 {sOFF}, {sOFF}, {LY.O_OFF}')
    for hd in range(2):
        if hd: vaddrs(1)
        Q = V(P2Q + 4*hd, 4)
        kread = lambda d: A(f'ds_read_b128 {V(P2K,4)}, {V(vKA)} offset:{d*KVSLOT + 1024*hd}')
        def vread(d, base=P2V):
            for f in range(2): A(f'ds_read_b128 {V(base + 4*f, 4)}, {V(vVA[f])} offset:{d*KVSLOT}')
        Sb = [P2SA, P2SB]
        qk = lambda s: A(f'{MFMA} {V(s,16)}, {V(P2K,4)}, {Q}, 0')
        def expcvt(s, lo, hi):
            for r in range(lo, hi): A(f'v_exp_f32 {V(s+r)}, {V(s+r)}')
        def cvt(s, lo, hi):
            for r in range(lo, hi, 2): A(f'v_cvt_pk_bf16_f32 {V(P2P + r//2)}, {V(s+r)}, {V(s+r+1)}')
        firstpv = [True]
        def pv(vb, pb):
            c = '0' if firstpv[0] else V(P2O, 16); firstpv[0] = False
            A(f'{MFMA} {V(P2O,16)}, {V(vb,4)}, {V(pb,4)}, {c}')
        order = [1, 2, 3, 4, 5, 6, 7]
        kread(1); vread(1); qk(Sb[0]); kread(2)
        for n, d in enumerate(order):
            s = Sb[n & 1]; nxt = Sb[(n + 1) & 1]
            qk(nxt)
            kread(d + 2 if d + 2 <= 8 else 0) if d < 7 else kread(0)
            expcvt(s, 0, 8); cvt(s, 0, 8); expcvt(s, 8, 10)
            pv(P2V, P2P)
            expcvt(s, 10, 16); cvt(s, 8, 16)
            if d == 7: qk(s)
            pv(P2V + 4, P2P + 4)
            vread(d + 1)
        sd, sf = Sb[1], Sb[0]
        for r in range(16):
            A(f'v_cndmask_b32 {V(sd+r)}, {V(sf+r)}, {V(sd+r)}, s[{SMASK0+2*r}:{SMASK0+2*r+1}]')
        A(f'ds_read_b128 {V(sf,4)}, {V(15)}'); A(f'ds_read_b128 {V(sf+4,4)}, {V(15)} offset:1024')
        vread(0, sf + 8)
        expcvt(sd, 0, 16); cvt(sd, 0, 16)
        for t in range(8): A(f'v_and_b32 {V(sf+t)}, {V(sf+t)}, {V(P2P+t)}')
        pv(P2V, sf)
        for t in range(8): A(f'v_xor_b32 {V(P2P+t)}, {V(sf+t)}, {V(P2P+t)}')
        pv(P2V + 4, sf + 4); pv(sf + 8, P2P); pv(sf + 12, P2P + 4)
        ob, lb = (P2O, P2O + 8) if hd == 0 else (P2O + 8, P2O)
        A(f'v_rcp_f32 {V(vT0)}, {V(lb)}')
        for r in range(0, 8, 2): A(f'v_pk_mul_f32 {V(ob+r,2)}, {V(ob+r,2)}, {V(vT0,2)} op_sel_hi:[1,0]')
        for r in range(0, 8, 2): A(f'v_cvt_pk_bf16_f32 {V(sd + r//2)}, {V(ob+r)}, {V(ob+r+1)}')
        store_dual([f'buffer_store_dwordx4 {V(sd,4)}, {V(vL16)}, {SWS}, {sOFF} offen offset:{1024*hd}'])
    publish(sFO, L + 1)
    A.wait_lgkm(); A('s_barrier')
    stamp()

def ksplit(L, which):
    p3 = which == 3
    nk = 8 if p3 else 28
    wr = WOREG if p3 else W2REG
    src_off, rbstride = (LY.O_OFF, 32768) if p3 else (LY.H_OFF, 112 * 1024)
    if p3: accs = [20, 20]; RING = 52; NR = 11; RD = 52
    else:  accs = [20, 52]; RING = 84; NR = 19; RD = 84
    if p3:
        bounce_addr(12, 13)
        for i in range(8):
            for nh in range(2): wtrans(WOREG(i, nh), 12, 13)
        A(f'v_bfe_u32 {V(vT2)}, {V(vLANE)}, 2, 1'); A(f'v_lshlrev_b32 {V(vT2)}, 6, {V(vT2)}')
        A(f'v_and_b32 {V(vT1)}, 3, {V(vLANE)}'); A(f'v_lshl_add_u32 {V(vT2)}, {V(vT1)}, 2, {V(vT2)}')
        A(f's_lshl_b32 {sOFF}, {sC}, 11'); A(f's_lshl_b32 {sT[0]}, {sRH}, 7'); A(f's_add_u32 {sOFF}, {sOFF}, {sT[0]}')
        A(f's_lshl_b32 {sT[0]}, {sW}, 4'); A(f's_add_u32 {sOFF}, {sOFF}, {sT[0]}')
    else:
        A(f'v_min_u32 {V(vT2)}, 13, {V(vLANE)}'); A(f'v_lshlrev_b32 {V(vT2)}, 2, {V(vT2)}')
        A(f's_lshl_b32 {sOFF}, {sC}, 11'); A(f's_lshl_b32 {sT[0]}, {sRH}, 8'); A(f's_add_u32 {sOFF}, {sOFF}, {sT[0]}')
        A(f's_mul_i32 {sT[0]}, {sW}, 56'); A(f's_add_u32 {sOFF}, {sOFF}, {sT[0]}'); A(f's_add_u32 {sOFF}, {sOFF}, 512')
    own_ids(sT[6], sT[7])
    A(f's_mul_i32 {sT[0]}, {sW}, {nk*1024}'); A(f's_add_u32 {sT[0]}, {sT[0]}, {src_off}')
    A(f's_mul_i32 {sT[5]}, {sT[6]}, {rbstride}'); A(f's_add_u32 {sT[5]}, {sT[5]}, {sT[0]}')
    A(f's_xor_b32 {sT[4]}, {sT[6]}, 1'); A(f's_mul_i32 {sT[4]}, {sT[4]}, {rbstride}'); A(f's_add_u32 {sT[4]}, {sT[4]}, {sT[0]}')
    for s_, x_ in enumerate((3, 2, 1)):
        A(f's_xor_b32 {sT[0]}, {sW}, {x_}'); A(f's_mul_i32 {sT[0]}, {sT[0]}, 12288'); A(f's_add_u32 {sT[0]}, {sT[0]}, {L_S + s_*4096}')
        A(f'v_add_u32 {V(12 + s_)}, {sT[0]}, {V(vL16)}')
    A(f's_mul_i32 {sT[0]}, {sW}, 12288'); A(f's_add_u32 {sT[0]}, {sT[0]}, {L_S}'); A(f'v_add_u32 {V(15)}, {sT[0]}, {V(vL16)}')
    poll(vT2, sOFF, L + 1, vT0)
    stamp()
    N = 2 * nk
    rreg = lambda n: V(RING + 4 * (n % NR), 4)
    def load(n):
        mh, i = divmod(n, nk); so = sT[4 + mh]
        A(f'buffer_load_dwordx4 {rreg(n)}, {V(vL16)}, {SWS}, {so} offen offset:{(i & 3) * 1024} sc1')
        if i & 3 == 3: A(f's_add_u32 {so}, {so}, 4096')
    def wout(reg, s_):
        for q in range(4): A(f'ds_write_b128 {V(12 + s_)}, {V(reg + 4*q, 4)} offset:{1024*q}')
    for n in range(min(NR, N)): load(n)
    for n in range(N):
        mh, i = divmod(n, nk); a = accs[mh]
        if n == nk and p3: wout(accs[0], 0); wout(accs[0] + 16, 1)
        for nh in range(2):
            c = '0' if i == 0 else V(a + 16*nh, 16)
            A(f'{MFMA} {V(a + 16*nh, 16)}, {wr(i, nh)}, {rreg(n)}, {c}')
        if n + NR < N: load(n + NR)
        if n == nk + 2 and not p3: wout(accs[0], 0)
        if n == nk + 4 and not p3: wout(accs[0] + 16, 1)
    a = accs[1]
    RT = RD + 48
    for t in range(8):
        A(f'v_lshlrev_b32 {V(RT + 2*t)}, 16, {V(vRES + t)}'); A(f'v_and_b32 {V(RT + 2*t + 1)}, 0xffff0000, {V(vRES + t)}')
    wout(a, 2)
    y = a + 16
    for r in range(0, 16, 2): A(f'v_pk_add_f32 {V(y+r,2)}, {V(y+r,2)}, {V(RT+r,2)}')
    A.wait_lgkm(); A('s_barrier')
    for s_ in range(3):
        for q in range(4): A(f'ds_read_b128 {V(RD + 16*s_ + 4*q, 4)}, {V(15)} offset:{s_*4096 + 1024*q}')
    for s_ in range(3):
        for r in range(0, 16, 2): A(f'v_pk_add_f32 {V(y+r,2)}, {V(y+r,2)}, {V(RD+16*s_+r,2)}')
    for r in range(0, 16, 2): A(f'v_cvt_pk_bf16_f32 {V(vRES + r//2)}, {V(y+r)}, {V(y+r+1)}')
    last = (L == 1 and not p3)
    if last:
        A(f'v_and_b32 {V(vT0)}, 31, {V(vLANE)}'); A(f'v_lshlrev_b32 {V(vT0)}, 10, {V(vT0)}')
        A(f'v_lshrrev_b32 {V(vT1)}, 5, {V(vLANE)}'); A(f'v_lshl_add_u32 {V(vT0)}, {V(vT1)}, 4, {V(vT0)}')
        A(f's_lshl_b32 {sT[6]}, {sT[6]}, 15'); A(f's_lshl_b32 {sT[7]}, {sT[7]}, 6'); A(f's_add_u32 {sT[6]}, {sT[6]}, {sT[7]}')
        for f in range(2):
            A(f'buffer_store_dwordx4 {V(vRES + 4*f, 4)}, {V(vT0)}, {SOUT}, {sT[6]} offen offset:{32*f}')
        stamp()
        return
    xoff, stoff = (LY.X1_OFF, LY.ST1_OFF) if p3 else (LY.X2_OFF, LY.ST2_OFF)
    A(f's_lshl_b32 {sOFF}, {sT[6]}, 15'); A(f's_lshl_b32 {sT[0]}, {sT[7]}, 11'); A(f's_add_u32 {sOFF}, {sOFF}, {sT[0]}'); A(f's_add_u32 {sOFF}, {sOFF}, {xoff}')
    store_dual([f'buffer_store_dwordx4 {V(vRES + 4*f, 4)}, {V(vL16)}, {SWS}, {sOFF} offen offset:{1024*f}' for f in range(2)])
    A(f'v_pk_mul_f32 {V(RD+16,2)}, {V(y,2)}, {V(y,2)}'); A(f'v_pk_add_f32 {V(RD,2)}, {V(y,2)}, {V(y+2,2)}')
    for r in range(2, 16, 2): A(f'v_pk_fma_f32 {V(RD+16,2)}, {V(y+r,2)}, {V(y+r,2)}, {V(RD+16,2)}')
    for r in range(4, 16, 2): A(f'v_pk_add_f32 {V(RD,2)}, {V(RD,2)}, {V(y+r,2)}')
    A(f'v_add_f32 {V(RD)}, {V(RD)}, {V(RD+1)}'); A(f'v_add_f32 {V(RD+1)}, {V(RD+16)}, {V(RD+17)}')
    A(f'v_mov_b32 {V(RD+2)}, {V(RD)}'); A(f'v_mov_b32 {V(RD+3)}, {V(RD+1)}')
    A(f'v_permlane32_swap_b32 {V(RD+2)}, {V(RD)}'); A(f'v_permlane32_swap_b32 {V(RD+3)}, {V(RD+1)}')
    A(f'v_pk_add_f32 {V(RD,2)}, {V(RD,2)}, {V(RD+2,2)}')
    A(f'v_and_b32 {V(vT2)}, 31, {V(vLANE)}'); A(f'v_lshlrev_b32 {V(vT2)}, 3, {V(vT2)}')
    A(f's_lshl_b32 {sOFF}, {sT[6]}, 12'); A(f's_lshl_b32 {sT[0]}, {sT[7]}, 8'); A(f's_add_u32 {sOFF}, {sOFF}, {sT[0]}'); A(f's_add_u32 {sOFF}, {sOFF}, {stoff}')
    store_dual([f'buffer_store_dwordx2 {V(RD,2)}, {V(vT2)}, {SWS}, {sOFF} offen'])
    publish(sFX1 if p3 else sFX2, L + 1)
    A('s_barrier')
    stamp()

def load_w1w2():
    bounce_addr(12, 13)
    A(f'v_lshrrev_b32 {V(14)}, 2, {V(vLANE)}'); A(f'v_mul_u32_u24 {V(14)}, 3584, {V(14)}')
    A(f'v_and_b32 {V(15)}, 3, {V(vLANE)}'); A(f'v_lshl_add_u32 {V(14)}, {V(15)}, 4, {V(14)}')
    A(f's_lshl2_add_u32 {sT[1]}, {sJ}, {sW}'); A(f's_lshl_b32 {sT[1]}, {sT[1]}, 6')
    for ks in range(32):
        A(f'buffer_load_dwordx4 {W1REG(ks)}, {V(14)}, {SW1}, {sT[1]} offen'); A(f's_add_u32 {sT[1]}, {sT[1]}, {16*3584}')
    wraw_addr(vT0, 1024)
    A(f's_mul_i32 {sT[1]}, {sW}, {28*16384}'); A(f's_lshl_b32 {sT[2]}, {sCB}, 7'); A(f's_add_u32 {sT[1]}, {sT[1]}, {sT[2]}')
    def w2l(i):
        for nh in range(2): A(f'buffer_load_dwordx4 {W2REG(i, nh)}, {V(vT0 + nh)}, {SW2}, {sT[1]} offen')
        A(f's_add_u32 {sT[1]}, {sT[1]}, 16384')
    for i in range(14): w2l(i)
    for ks in range(32): wtrans(W1REG(ks), 12, 13)
    for i in range(14, 28): w2l(i)
    for r in range(4): A(f'v_mov_b32 {V(20 + r)}, 0x3f803f80')
    for ks in range(32):
        A(f'{MFMA} {V(24,16)}, {W1REG(ks)}, {V(20,4)}, {"0" if ks == 0 else V(24,16)}')
    for i in range(28):
        for nh in range(2): wtrans(W2REG(i, nh), 12, 13)
    cs1_addr(14)
    for q in range(4): A(f'ds_write_b128 {V(14)}, {V(24 + 4*q, 4)} offset:{16*q}')
def cs1_addr(v):
    A(f's_lshl_b32 {sT[0]}, {sW}, 7'); A(f's_add_u32 {sT[0]}, {sT[0]}, {L_CS1}')
    A(f'v_lshrrev_b32 {V(v)}, 5, {V(vLANE)}'); A(f'v_lshlrev_b32 {V(v)}, 6, {V(v)}'); A(f'v_add_u32 {V(v)}, {sT[0]}, {V(v)}')

def p4(L):
    skip = A.newlabel('Lskip4')
    A(f's_cmp_ge_u32 {sJ}, 14'); A(f's_cbranch_scc1 {skip}')
    ACC = [20, 36]; CS = 52; XR = 68; NXR = 6; E = 92; HP = 108; ST = 116; SB = 124; vXA = 140; vSA = 141; vNL = 142
    cs1_addr(vXA)
    for q in range(4): A(f'ds_read_b128 {V(CS + 4*q, 4)}, {V(vXA)} offset:{16*q}')
    stat_addr(vSA)
    A(f'v_lshlrev_b32 {V(vT2)}, 2, {V(vLANE)}')
    A(f's_lshl_b32 {sOFF}, {sC}, 11'); A(f's_add_u32 {sOFF}, {sOFF}, 256')
    A(f's_lshl_b32 {sOFF2}, {sRBG}, 12'); A(f's_add_u32 {sOFF2}, {sOFF2}, {LY.ST1_OFF}')
    A(f's_lshl_b32 {sT[4]}, {sC}, 17'); A(f's_lshl_b32 {sT[0]}, {sW}, 11'); A(f's_add_u32 {sT[4]}, {sT[4]}, {sT[0]}'); A(f's_add_u32 {sT[4]}, {sT[4]}, {LY.X1_OFF}')
    A(f's_add_u32 {sT[5]}, {sT[0]}, {L_S}')
    A(f'v_add_u32 {V(vXA)}, {L_S}, {V(vL16)}')
    A(f'v_mov_b32 {V(vNL)}, {f32(-LOG2E)}')
    A(f's_mul_i32 {sT[6]}, {sC}, {4*112*1024}'); A(f's_lshl2_add_u32 {sT[7]}, {sJ}, {sW}'); A(f's_lshl_b32 {sT[7]}, {sT[7]}, 11')
    A(f's_add_u32 {sT[6]}, {sT[6]}, {sT[7]}'); A(f's_add_u32 {sT[6]}, {sT[6]}, {LY.H_OFF}')
    poll(vT2, sOFF, L + 1, vT0)
    stamp()
    NS = 6; tok = {}
    def dma(s):
        A(f's_add_u32 m0, {sT[5]}, {(s % NS) * 8192}')
        for f in range(2):
            tok[s] = A(f'buffer_load_dwordx4 {V(vL16)}, {SWS}, {sT[4]} offen offset:{1024*f} sc1 lds')
        A(f's_add_u32 {sT[4]}, {sT[4]}, 8192')
    dma(0)
    stat_load(SB, vSA, sOFF2)
    for s in range(1, 4): dma(s)
    stat_reduce(SB, 143, 144)
    stats_finish(143, 144)
    A(f'v_mul_f32 {V(vRS)}, {V(vNL)}, {V(vRS)}')
    A(f's_lshl_b32 {sT[0]}, {sW}, 8'); A(f's_add_u32 {sT[0]}, {sT[0]}, {L_STAT}')
    A(f'v_and_b32 {V(vSA)}, 31, {V(vLANE)}'); A(f'v_lshlrev_b32 {V(vSA)}, 2, {V(vSA)}'); A(f'v_add_u32 {V(vT0)}, {sT[0]}, {V(vSA)}')
    A(f'ds_write2_b32 {V(vT0)}, {V(vNM)}, {V(vRS)} offset0:0 offset1:32')
    A(f'v_add_u32 {V(vSA)}, {L_STAT}, {V(vSA)}')
    A.wait_lgkm()
    LA = 4
    xr = lambda n: V(XR + 4 * (n % NXR), 4)
    def xread(n):
        s, t = divmod(n, 8)
        if t == 0:
            A.wait_vm(tok[s]); A('s_barrier')
            if s + 4 < 16: dma(s + 4)
            if s == 0:
                for rb in range(4): A(f'ds_read2_b32 {V(ST + 2*rb, 2)}, {V(vSA)} offset0:{64*rb} offset1:{64*rb + 32}')
        A(f'ds_read_b128 {xr(n)}, {V(vXA)} offset:{(s % NS) * 8192 + t * 1024}')
    def epi_ops(rb):
        a = ACC[rb & 1]; nm, sa = ST + 2*rb, ST + 2*rb + 1
        ops = []
        for r in range(16): ops.append(f'v_fma_f32 {V(a+r)}, {V(CS+r)}, {V(nm)}, {V(a+r)}')
        for r in range(16): ops.append(f'v_mul_f32 {V(a+r)}, {V(a+r)}, {V(sa)}')
        for r in range(16): ops.append(f'v_exp_f32 {V(E+r)}, {V(a+r)}')
        for r in range(16): ops.append(f'v_fma_f32 {V(E+r)}, {V(E+r)}, {V(vNL)}, {V(vNL)}')
        for r in range(16): ops.append(f'v_rcp_f32 {V(E+r)}, {V(E+r)}')
        for r in range(16): ops.append(f'v_mul_f32 {V(a+r)}, {V(a+r)}, {V(E+r)}')
        for r in range(0, 16, 2): ops.append(f'v_cvt_pk_bf16_f32 {V(HP + r//2)}, {V(a+r)}, {V(a+r+1)}')
        ops.append(('store', rb))
        return ops
    def run(op):
        if isinstance(op, tuple):
            store_dual([f'buffer_store_dwordx4 {V(HP + 4*f, 4)}, {V(vL16)}, {SWS}, {sT[6]} offen offset:{1024*f}' for f in range(2)])
            A(f's_add_u32 {sT[6]}, {sT[6]}, {112*1024}')
        else: A(op)
    for n in range(LA): xread(n)
    pend = []
    for n in range(128):
        rb, ks = divmod(n, 32); a = ACC[rb & 1]
        if ks == 0 and rb > 0:
            for op in pend: run(op)
            pend = epi_ops(rb - 1)
        A(f'{MFMA} {V(a,16)}, {W1REG(ks)}, {xr(n)}, {"0" if ks == 0 else V(a,16)}')
        if n + LA < 128: xread(n + LA)
        if ks >= 2:
            budget = 20
            while pend and budget > 0:
                op = pend.pop(0); run(op)
                budget -= 8 if (isinstance(op, str) and op.startswith(('v_exp', 'v_rcp'))) else 4
    for op in pend: run(op)
    for op in epi_ops(3): run(op)
    A(f'v_mov_b32 {V(vT0)}, {L + 1}'); A(f'v_lshlrev_b32 {V(vT1)}, 8, {V(vLANE)}')
    A.wait_vm()
    A('s_mov_b64 exec, 3')
    store_dual([f'buffer_store_dword {V(vT0)}, {V(vT1)}, {SWS}, {sFH} offen'])
    A('s_mov_b64 exec, -1')
    A('s_barrier')
    A.label(skip)
    stamp()

def main():
    startup()
    ph = 0
    for L in range(2):
        for p in range(1, 6):
            ph += 1
            if p == 1: p1(L)
            elif p == 2:
                p2(L)
            elif p == 3:
                ksplit(L, 3)
                if L == 0: load_w1w2(); stamp()
            elif p == 4: p4(L)
            elif p == 5: ksplit(L, 5)
            if ph >= STOP: return
main()
finish()

hdr = open('cdna_kernels/' + NAME + '.s.ref').read().split('\n')
hdr = [l for l in hdr if l.startswith(';') and '@launch' not in l]
src = '\n'.join(hdr) + f'\n; @launch grid=(256,1,1) block=(256,1,1) lds={LDS_BYTES}\n'
src += f'''.amdgcn_target "amdgcn-amd-amdhsa--gfx950"
.text
.globl {NAME}_kernel
.p2align 8
.type {NAME}_kernel,@function
{NAME}_kernel:
'''
src += A.finalize()
src += f'''.section .rodata,"a"
.p2align 6
.amdhsa_kernel {NAME}_kernel
  .amdhsa_next_free_vgpr 512
  .amdhsa_next_free_sgpr 102
  .amdhsa_accum_offset 256
  .amdhsa_group_segment_fixed_size 0
  .amdhsa_kernarg_size 72
  .amdhsa_user_sgpr_count 2
  .amdhsa_user_sgpr_kernarg_segment_ptr 1
  .amdhsa_system_sgpr_workgroup_id_x 1
.end_amdhsa_kernel
'''
out = [a for a in sys.argv[1:] if a.endswith('.s')]
open(out[0] if out else 'k.s', 'w').write(src)
```

```python
import re

_RANGE = re.compile(r'\b([vas])\[(\d+):(\d+)\]')
_SINGLE = re.compile(r'\b([vas])(\d+)\b')
TRANS = ('v_exp_f32', 'v_log_f32', 'v_rcp_f32', 'v_rsq_f32', 'v_sqrt_f32', 'v_sin_f32', 'v_cos_f32')

def regs_of(op):
    out = set()
    s = op
    for m in _RANGE.finditer(op):
        for k in range(int(m.group(2)), int(m.group(3)) + 1):
            out.add(m.group(1) + str(k))
    s = _RANGE.sub(' ', op)
    for m in _SINGLE.finditer(s):
        out.add(m.group(1) + m.group(2))
    for sp in ('vcc', 'exec', 'm0'):
        if re.search(r'\b' + sp + r'\b', s):
            out.add(sp)
    return out

def split_ops(rest):
    ops, cur, depth = [], '', 0
    for ch in rest:
        if ch in '[(': depth += 1
        if ch in '])': depth -= 1
        if ch == ',' and depth == 0:
            ops.append(cur.strip()); cur = ''
        else:
            cur += ch
    if cur.strip(): ops.append(cur.strip())
    return ops

class Ins:
    __slots__ = ('text', 'mn', 'kind', 'wr', 'rd', 'srcc', 'ab', 'data', 'optional', 'passes', 'alt', 'tok', 'ws', 'wide')
    def __init__(self, text):
        self.text = text; self.kind = 'misc'; self.wr = set(); self.rd = set(); self.srcc = set(); self.ab = set()
        self.data = set(); self.optional = False; self.passes = 0; self.alt = None; self.tok = None; self.ws = 1; self.wide = False
        self.mn = ''

def V(n, cnt=1):
    return f'v{n}' if cnt == 1 else f'v[{n}:{n+cnt-1}]'
def Areg(n, cnt=1):
    return f'a{n}' if cnt == 1 else f'a[{n}:{n+cnt-1}]'
def S(n, cnt=1):
    return f's{n}' if cnt == 1 else f's[{n}:{n+cnt-1}]'

def parse(text):
    ins = Ins(text)
    t = text.split(';')[0].strip()
    parts = t.split(None, 1)
    mn = parts[0]; rest = parts[1] if len(parts) > 1 else ''
    ins.mn = mn
    ops = split_ops(rest)
    def R(i):
        if i >= len(ops): return set()
        o = ops[i]
        o = re.sub(r'\b(op_sel|op_sel_hi|neg_lo|neg_hi|offset|offset0|offset1|row_shr|row_bcast|row_mask|bank_mask|bitop3|quad_perm|row_ror|row_shl|cbsz|abid|blgp):\S+', ' ', o)
        o = re.sub(r'\b(sc0|sc1|nt|offen|idxen|lds|off|clamp)\b', ' ', o)
        return regs_of(o)
    allr = lambda a: set().union(*[R(i) for i in range(a, len(ops))]) if len(ops) > a else set()
    if mn.startswith('v_mfma'):
        ins.kind = 'mfma'; ins.wr = R(0); ins.ab = R(1) | R(2); ins.srcc = R(3); ins.rd = ins.ab | ins.srcc
        ins.passes = 8 if '32x32' in mn else 4
    elif mn.startswith('v_'):
        ins.kind = 'trans' if mn.replace('_e32', '').replace('_e64', '') in TRANS else 'valu'
        ins.wr = R(0); ins.rd = allr(1)
        if mn.startswith('v_permlane') and 'swap' in mn:
            ins.wr = R(0) | R(1); ins.rd = R(0) | R(1)
        if mn.startswith(('v_fmac', 'v_dot2c', 'v_pk_fmac', 'v_writelane')):
            ins.rd |= R(0)
        if mn.startswith(('v_add_co', 'v_sub_co', 'v_addc_co')):
            ins.wr |= R(1); ins.rd = allr(2)
    elif mn.startswith('buffer_load') or mn.startswith('global_load'):
        if re.search(r'\blds\b', rest) or '_lds_' in mn:
            ins.kind = 'dma'; ins.rd = allr(0) | {'m0'}
        else:
            ins.kind = 'vload'; ins.wr = R(0); ins.rd = allr(1)
    elif mn.startswith(('buffer_store', 'buffer_atomic')):
        ins.kind = 'vstore'; ins.rd = allr(0); ins.data = R(0); ins.wide = 'x4' in mn or 'x3' in mn
    elif mn.startswith(('global_store', 'global_atomic')):
        ins.kind = 'vstore'; ins.rd = allr(0); ins.data = R(1); ins.wide = 'x4' in mn or 'x3' in mn
    elif mn.startswith('ds_read') or mn.startswith('ds_bpermute') or mn.startswith('ds_swizzle'):
        ins.kind = 'dsread'; ins.wr = R(0); ins.rd = allr(1)
    elif mn.startswith('ds_write'):
        ins.kind = 'dswrite'; ins.rd = allr(0)
    elif mn == 's_nop':
        ins.kind = 'nop'; ins.ws = int(ops[0], 0) + 1
    elif mn in ('s_barrier', 's_endpgm', 's_setprio', 's_sleep', 's_waitcnt', 's_branch') or mn.startswith('s_cbranch'):
        ins.kind = 'misc'
    elif mn.startswith('s_cmp') or mn.startswith('s_bitcmp'):
        ins.kind = 'salu'; ins.rd = allr(0)
    elif mn.startswith(('s_load', 's_memtime', 's_memrealtime')):
        ins.kind = 'smem'; ins.wr = R(0); ins.rd = allr(1)
    elif mn.startswith('s_'):
        ins.kind = 'salu'; ins.wr = R(0); ins.rd = allr(1)
        if 'saveexec' in mn: ins.wr |= {'exec'}
    else:
        raise ValueError('unknown instruction: ' + text)
    return ins

def isv(r): return r[0] in 'va' and r not in ('vcc',)
def iss(r): return r[0] == 's' or r == 'vcc'

def need(P, C):
    n = 0
    pk, ck = P.kind, C.kind
    cvalu = ck in ('valu', 'trans')
    cmem = ck in ('vload', 'vstore', 'dma', 'dsread', 'dswrite')
    if pk in ('valu', 'trans'):
        vw = {r for r in P.wr if isv(r)}; sw = {r for r in P.wr if iss(r)}
        if ck == 'mfma' and vw & C.rd: n = max(n, 2)
        if pk == 'trans' and ck != 'trans' and vw & C.rd: n = max(n, 1)
        if P.mn.startswith('v_dot') and C.mn != P.mn and vw & (C.rd | C.wr): n = max(n, 3)
        if sw:
            if cvalu and sw & C.rd: n = max(n, 4 if 'lane' in C.mn else 2)
            if ck in ('vload', 'vstore', 'dma') and sw & C.rd: n = max(n, 5)
            if ck == 'salu' and sw & C.rd: n = max(n, 1)
        if cvalu and vw & C.rd:
            if C.mn.startswith(('v_readfirstlane', 'v_readlane')): n = max(n, 1)
            if C.mn.startswith('v_permlane') or '_dpp' in C.mn: n = max(n, 2)
    elif pk == 'mfma':
        full = {8: 12, 4: 8}[P.passes]
        if ck == 'mfma':
            if P.wr & C.ab: n = max(n, full)
            if P.wr & C.srcc and not (P.wr == C.srcc and P.passes == C.passes): n = max(n, full - 2)
        elif cvalu:
            if P.wr & (C.rd | C.wr): n = max(n, full)
            if P.srcc & C.wr: n = max(n, {8: 7, 4: 3}[P.passes])
        elif cmem:
            if P.wr & (C.rd | C.wr): n = max(n, full)
    elif pk == 'vstore':
        if P.wide and P.data & C.wr: n = max(n, 2)
    elif pk == 'salu':
        if 'm0' in P.wr and ck == 'dma': n = max(n, 1)
    return n

class Asm:
    def __init__(self):
        self.items = []
        self._opt = False
        self._lbl = 0
    def i(self, text):
        ins = parse(text); ins.optional = self._opt
        self.items.append(ins); return ins
    def __call__(self, text): return self.i(text)
    def label(self, name): self.items.append(('label', name))
    def newlabel(self, base='L'):
        self._lbl += 1; return f'{base}_{self._lbl}'
    def raw(self, text): self.items.append(('raw', text))
    def comment(self, text): self.items.append(('raw', '    ; ' + text))
    def wait_vm(self, tok=None): self.items.append(('wait', 'vm', tok))
    def wait_lgkm(self, tok=None): self.items.append(('wait', 'lgkm', tok))
    def assume_drained(self): self.items.append(('drained',))
    def place_ool(self): self.items.append(('ool',))
    def optional(self, on): self._opt = on
    def dual(self, cond_sreg, fast, slow):
        self.items.append(('dual', cond_sreg, [parse(t) for t in fast], [parse(t) for t in slow]))

    def finalize(self):
        out = []; ool = []
        hist = []
        vmq, lq = [], []
        def emit_plain(text, ws=1, ins=None):
            out.append('    ' + text)
            if ins is None:
                ins = Ins(text); ins.ws = ws
            hist.append(ins)
            if len(hist) > 40: del hist[0]
        def do_wait(nvm, nl):
            parts = []
            if nvm is not None: parts.append(f'vmcnt({min(nvm, 63)})')
            if nl is not None: parts.append(f'lgkmcnt({min(nl, 15)})')
            if parts: emit_plain('s_waitcnt ' + ' '.join(parts))
        def prewait(inss):
            nvm = nl = None
            for ins in inss:
                touch = ins.rd | ins.wr
                for k in range(len(vmq) - 1, -1, -1):
                    o = vmq[k]
                    if o.wr & touch and not (ins.kind == 'vload' and not (o.wr & ins.rd)):
                        n = len(vmq) - 1 - k
                        nvm = n if nvm is None else min(nvm, n); break
                for k in range(len(lq) - 1, -1, -1):
                    o = lq[k]
                    if o.wr & touch and not (ins.kind == 'dsread' and o.kind == 'dsread' and not (o.wr & ins.rd)):
                        n = len(lq) - 1 - k
                        if o.kind == 'smem' or any(x.kind == 'smem' for x in lq): n = 0
                        nl = n if nl is None else min(nl, n); break
            if nvm is not None: del vmq[:len(vmq) - min(nvm, 63)]
            if nl is not None: del lq[:len(lq) - min(nl, 15)]
            do_wait(nvm, nl)
        def pad(inss):
            req = 0
            for ins in inss:
                d = 0
                for P in reversed(hist):
                    n = need(P, ins)
                    if n - d > req: req = n - d
                    if not P.optional: d += P.ws
                    if d >= 20: break
            while req > 0:
                k = min(req, 16)
                emit_plain(f's_nop {k-1}', ws=k); req -= k
        def track(ins):
            if ins.kind in ('vload', 'vstore', 'dma'): vmq.append(ins)
            if ins.kind in ('dsread', 'dswrite', 'smem'): lq.append(ins)
        for it in self.items:
            if isinstance(it, Ins):
                prewait([it]); pad([it])
                emit_plain(it.text, ins=it); track(it)
                if it.mn == 's_waitcnt':
                    m = re.search(r'vmcnt\((\d+)\)', it.text)
                    if m: del vmq[:max(0, len(vmq) - int(m.group(1)))]
                    m = re.search(r'lgkmcnt\((\d+)\)', it.text)
                    if m: del lq[:max(0, len(lq) - int(m.group(1)))]
            elif it[0] == 'label': out.append(it[1] + ':')
            elif it[0] == 'raw': out.append(it[1])
            elif it[0] == 'drained': vmq.clear(); lq.clear()
            elif it[0] == 'wait':
                q = vmq if it[1] == 'vm' else lq
                tok = it[2]
                if tok is None: n = 0; hit = True
                else:
                    hit = tok in q
                    n = len(q) - 1 - q.index(tok) if hit else None
                    if hit and it[1] == 'lgkm' and any(x.kind == 'smem' for x in q): n = 0
                if hit:
                    lim = 63 if it[1] == 'vm' else 15
                    del q[:len(q) - min(n, lim)]
                    do_wait(n if it[1] == 'vm' else None, n if it[1] == 'lgkm' else None)
            elif it[0] == 'dual':
                _, cond, fast, slow = it
                prewait(fast); pad(fast)
                self._lbl += 1; ls, le = f'Lslow_{self._lbl}', f'Ldual_{self._lbl}'
                emit_plain(f's_cmp_eq_u32 {cond}, 0'); emit_plain(f's_cbranch_scc1 {ls}')
                for f in fast:
                    pad([f]); emit_plain(f.text, ins=f); track(f)
                out.append(le + ':')
                ool.append(ls + ':')
                for f in slow: ool.append('    ' + f.text)
                ool.append(f'    s_branch {le}')
            elif it[0] == 'ool':
                out.extend(ool); ool.clear()
        return '\n'.join(out) + '\n'
```

```python
FLG_STRIDE = 8192
F_O   = 0
F_X1  = 256
F_X2  = 768
F_H   = 1280
F_S1  = 2304
F_S2  = 2432
F_W   = 2560
F_KV  = 4096
O_OFF     = 0x100000
X1_OFF    = 0x300000
X2_OFF    = 0x500000
H_OFF     = 0x700000
KV_OFF    = 0x1000000
KV_LAYER  = 0x400000
ST1_OFF   = 0x1800000
ST2_OFF   = 0x1880000
WT_OFF    = 0x3000000
STAMP_OFF = 0x2000000
```

```python
import sys, struct
from asmlib import Asm, V, Areg, S
import layout as LY

NAME = "interleave_layers__sliding_block__dense_activation_silu__prompt"
STOP = 99; STAMPS = False; FORCE_SLOW = False; CYC = False; OPT = {}
for arg in sys.argv[1:]:
    if arg.startswith('stop='): STOP = int(arg[5:])
    elif '=' in arg: OPT[arg.split('=')[0]] = int(arg.split('=')[1])
    if arg == 'stamps': STAMPS = True
    if arg == 'slow': FORCE_SLOW = True
    if arg == 'cyc': STAMPS = True; CYC = True

A = Asm()
MFMA = 'v_mfma_f32_32x32x16_bf16'
LOG2E = 1.4426950408889634
def f32(x): return '0x%08x' % struct.unpack('<I', struct.pack('<f', x))[0]

SWS, SX, SWQKV, SWO, SW1, SW2, SOUT, SDBG = 's[4:7]', 's[8:11]', 's[12:15]', 's[16:19]', 's[20:23]', 's[24:27]', 's[28:31]', 's[32:35]'
sC, sJ, sW, sFAST, sRH, sCB = 's36', 's37', 's38', 's39', 's40', 's41'
sT = ['s42', 's43', 's44', 's45', 's46', 's47', 's48', 's49']
sFB = 's50'
sXCC = 's51'
sRBG = 's52'
sSPIN = 's53'
sROT = 's1'
sU = ['s54', 's55', 's56', 's57', 's58', 's59', 's92', 's93', 's94', 's95', 's98', 's99', 's100', 's101', 's0']
SMASK0 = 60
vLANE, vL16, vTR, vSTAMP = 0, 1, 2, 3
vRES = 4
vP = list(range(12, 20))
def W1REG(ks): return Areg(224 + 4 * ks, 4) if ks < 8 else V(160 + 4 * (ks - 8), 4)
def W2REG(i, nh): return Areg((i * 2 + nh) * 4, 4)
WOB = 96
def WOREG(i, nh): return V(WOB + (i * 2 + nh) * 4, 4)
L_WQ = 0
L_S = 98304
KVSLOT = 4112
L_KV = L_S
L_MISC = L_S + 49408
L_CSQ = L_MISC
L_CS1 = L_MISC + 1024
L_STAT = L_MISC + 2048
L_BNC = L_MISC + 3072
L_PMASK = L_MISC + 7168
L_SP = L_MISC + 9216
LDS_BYTES = 163840

TRANS = ('v_exp', 'v_rcp', 'v_rsq')
class Fill:
    def __init__(self): self.q = []
    def add(self, op, cost=None):
        if cost is None:
            cost = 4
            if isinstance(op, str):
                if op.startswith(TRANS): cost = 8
                if op.startswith('ds_write_b128'): cost = 8
        self.q.append((op, cost))
    def adds(self, ops):
        for o in ops: self.add(o)
    def _do(self, op):
        if isinstance(op, str): A(op)
        else: op()
    def run(self, budget):
        while self.q and self.q[0][1] <= budget:
            op, c = self.q.pop(0); self._do(op); budget -= c
        return budget
    def flush(self):
        while self.q: self._do(self.q.pop(0)[0])

nstamp = [0]; stamp_names = []
def stamp(name=''):
    if not STAMPS: return
    k = nstamp[0]; nstamp[0] += 1; stamp_names.append(name)
    assert k < 64
    A('s_memtime s[96:97]' if CYC else 's_memrealtime s[96:97]')
    A('s_waitcnt lgkmcnt(0)')
    A(f'v_writelane_b32 {V(vSTAMP)}, s96, {k}')

OOL = []
def flag_issue(vtmp, vaddr, soff, srd=SWS):
    return A(f'buffer_load_dword {V(vtmp)}, {V(vaddr)}, {srd}, {soff} offen sc1')
def flag_check(vtmp, vaddr, soff, expect, srd=SWS):
    sp = A.newlabel('Lspin'); bk = A.newlabel('Lback')
    A(f'v_cmp_gt_u32 vcc, {expect}, {V(vtmp)}')
    A(f's_cbranch_vccnz {sp}')
    A.label(bk)
    OOL.append(f'''{sp}:
    s_mov_b32 {sSPIN}, 0
{sp}_l:
    buffer_load_dword {V(vtmp)}, {V(vaddr)}, {srd}, {soff} offen sc1
    s_add_u32 {sSPIN}, {sSPIN}, 1
    s_cmp_gt_u32 {sSPIN}, 0x40000
    s_cbranch_scc1 L_exit
    s_waitcnt vmcnt(0)
    v_cmp_gt_u32 vcc, {expect}, {V(vtmp)}
    s_cbranch_vccnz {sp}_l
    s_branch {bk}''')
def poll(vtmp, vaddr, soff, expect, srd=SWS):
    flag_issue(vtmp, vaddr, soff, srd); flag_check(vtmp, vaddr, soff, expect, srd)

def store_dual(lines):
    A.dual(sFAST, lines, [l + ' sc1' for l in lines])
    return A.items[-1][2][-1]
def flag_set(vval, vzero, soff, fastok=True, imm=0, wave=None):
    if wave is None: A('s_mov_b64 exec, 1')
    else: A(f's_cmp_eq_u32 {sW}, {wave}'); A('s_cselect_b64 exec, 1, 0')
    ln = f'buffer_store_dword {V(vval)}, {V(vzero)}, {SWS}, {soff} offen offset:{imm}'
    if fastok: store_dual([ln])
    else: A(ln + ' sc1')
    A('s_mov_b64 exec, -1')

def finish():
    A.label('L_end')
    if STAMPS:
        A('s_waitcnt vmcnt(0) lgkmcnt(0)')
        stamp('end')
        A(f's_lshl_b32 {sT[0]}, s2, 2'); A(f's_add_u32 {sT[0]}, {sT[0]}, {sW}'); A(f's_lshl_b32 {sT[0]}, {sT[0]}, 8')
        A(f's_add_u32 {sT[0]}, {sT[0]}, {LY.STAMP_OFF}')
        A(f'v_lshlrev_b32 v20, 2, {V(vLANE)}')
        A(f'buffer_store_dword {V(vSTAMP)}, v20, {SWS}, {sT[0]} offen')
    A.label('L_exit')
    A('s_endpgm')
    for b in OOL: A.raw(b)
    A.place_ool()
    A.label('L_codeend')
    A.raw('    s_endpgm')

def startup():
    A('s_cmp_ge_u32 s2, 256'); A('s_cbranch_scc1 L_exit')
    for sreg, off in ((8, 0), (12, 8), (4, 64), (16, 16), (20, 32), (24, 40), (28, 48), (32, 56)):
        A(f's_load_dwordx2 s[{sreg}:{sreg+1}], s[0:1], {off}')
    if STAMPS: A(f'v_mov_b32 v3, 0')
    stamp('start')
    t0, t1 = vP[0], vP[1]
    A(f'v_lshrrev_b32 {V(t0)}, 6, v0')
    A(f'v_lshlrev_b32 {V(t1)}, 4, v0')
    A(f'v_readfirstlane_b32 {sW}, {V(t0)}')
    A(f'v_and_b32 {V(vLANE)}, 63, v0')
    A(f'v_lshlrev_b32 {V(vL16)}, 4, {V(vLANE)}')
    A(f's_and_b32 {sT[0]}, s2, 7'); A(f's_lshl_b32 {sT[0]}, {sT[0]}, 1')
    A(f's_bfe_u32 {sT[1]}, s2, 0x10003')
    A(f's_or_b32 {sC}, {sT[0]}, {sT[1]}')
    A(f's_lshr_b32 {sJ}, s2, 4')
    A(f's_and_b32 {sRH}, {sJ}, 1'); A(f's_lshr_b32 {sCB}, {sJ}, 1')
    A(f's_lshl2_add_u32 {sRBG}, {sC}, {sW}')
    A(f's_lshl_b32 {sFB}, {sC}, 13')
    A(f's_getreg_b32 {sXCC}, hwreg(HW_REG_XCC_ID)'); A(f's_and_b32 {sXCC}, {sXCC}, 15')
    A(f's_mov_b32 {sFAST}, 0')
    A(f's_lshl_b32 s3, {sRH}, 3'); A(f's_add_u32 s3, s3, {sCB}'); A(f's_lshl2_add_u32 s3, s3, {sFB}')
    A(f's_and_b32 {sT[0]}, {sJ}, 1'); A(f's_lshl_b32 {sT[0]}, {sT[0]}, 1'); A(f's_and_b32 {sT[1]}, {sC}, 1'); A(f's_lshl2_add_u32 {sT[0]}, {sT[1]}, {sT[0]}')
    for sreg, nbytes in ((8, 2048*512*2), (12, 512*1536*2), (4, 0x10000000), (16, 512*512*2), (20, 512*1792*2), (24, 1792*512*2), (28, 2048*512*2), (32, 256)):
        A(f's_mov_b32 s{sreg+2}, {nbytes}'); A(f's_mov_b32 s{sreg+3}, 0x20000')
    A('s_waitcnt lgkmcnt(0)')
    A(f's_and_b32 {sROT}, {sT[0]}, {OPT.get("rot", 2)}')
    if not OPT.get('nocode'):
        A('s_getpc_b64 s[96:97]')
        A(f's_lshr_b32 {sT[7]}, s2, 3'); A(f's_lshl2_add_u32 {sT[7]}, {sT[7]}, {sW}'); A(f's_lshl_b32 {sT[7]}, {sT[7]}, 9')
        A(f'v_and_b32 {V(t0)}, 3, {V(vLANE)}'); A(f'v_lshl_add_u32 {V(t0)}, {V(t0)}, 7, {sT[7]}'); A(f'v_min_u32 {V(t0)}, CODE_SPAN, {V(t0)}')
        A.label('L_pcref')
        A(f'global_load_dword {V(255)}, {V(t0)}, s[96:97]')
    nl = A.newlabel('Lnolead')
    A(f's_cmp_lg_u32 {sJ}, 15'); A(f's_cbranch_scc1 {nl}')
    A.optional(True)
    for r in range(4): A(f'v_mov_b32 {V(20 + r)}, 0')
    A(f'buffer_store_dwordx4 v[20:23], {V(t1)}, {SWS}, {sFB} offen sc1')
    A(f's_add_u32 {sT[0]}, {sFB}, 4096')
    A(f'buffer_store_dwordx4 v[20:23], {V(t1)}, {SWS}, {sT[0]} offen sc1')
    A(f's_lshl_b32 {sT[0]}, {sC}, 2'); A(f'v_mov_b32 {V(24)}, 1')
    A('s_waitcnt vmcnt(0)'); A('s_barrier')
    A('s_mov_b64 exec, 1')
    A(f'buffer_store_dword {V(24)}, {V(20)}, {SDBG}, {sT[0]} offen sc1')
    A('s_mov_b64 exec, -1')
    A.optional(False)
    A.label(nl)

def tr_addr():
    t0 = vP[0]
    A(f'v_lshrrev_b32 {V(t0)}, 5, {V(vLANE)}'); A(f'v_lshlrev_b32 {V(vTR)}, 9, {V(t0)}')
    A(f'v_bfe_u32 {V(t0)}, {V(vLANE)}, 2, 2'); A(f'v_lshl_add_u32 {V(vTR)}, {V(t0)}, 6, {V(vTR)}')
    A(f'v_bfe_u32 {V(t0)}, {V(vLANE)}, 4, 1'); A(f'v_lshl_add_u32 {V(vTR)}, {V(t0)}, 5, {V(vTR)}')
    A(f'v_and_b32 {V(t0)}, 1, {V(vLANE)}'); A(f'v_lshl_add_u32 {V(vTR)}, {V(t0)}, 4, {V(vTR)}')
    A(f'v_bfe_u32 {V(t0)}, {V(vLANE)}, 1, 1'); A(f'v_lshl_add_u32 {V(vTR)}, {V(t0)}, 3, {V(vTR)}')

def make_masks(B):
    t0, t1, t2 = vP[0], vP[1], vP[2]
    A(f'v_and_b32 {V(t0)}, 31, {V(vLANE)}'); A(f'v_lshrrev_b32 {V(t1)}, 5, {V(vLANE)}'); A(f'v_lshlrev_b32 {V(t1)}, 2, {V(t1)}')
    A(f'v_sub_u32 {V(t0)}, {V(t0)}, {V(t1)}')
    for r in range(16):
        A(f'v_cmp_le_i32 s[{SMASK0+2*r}:{SMASK0+2*r+1}], {(r & 3) + 8 * (r >> 2)}, {V(t0)}')
    A(f'v_mov_b32 {V(t0)}, 0xffff'); A(f'v_mov_b32 {V(t1)}, 0xffff0000')
    for t in range(8):
        A(f'v_cndmask_b32 {V(B+t)}, 0, {V(t0)}, s[{SMASK0+4*t}:{SMASK0+4*t+1}]')
        A(f'v_cndmask_b32 {V(t2)}, 0, {V(t1)}, s[{SMASK0+4*t+2}:{SMASK0+4*t+3}]')
        A(f'v_or_b32 {V(B+t)}, {V(B+t)}, {V(t2)}')
    A(f'v_add_u32 {V(t0)}, {L_PMASK}, {V(vL16)}')
    A(f'ds_write_b128 {V(t0)}, {V(B,4)}'); A(f'ds_write_b128 {V(t0)}, {V(B+4,4)} offset:1024')

def rowmajor_addr(v, vt):
    return [f'v_and_b32 {V(v)}, 31, {V(vLANE)}', f'v_lshlrev_b32 {V(v)}, 10, {V(v)}',
            f'v_lshrrev_b32 {V(vt)}, 5, {V(vLANE)}', f'v_lshl_add_u32 {V(v)}, {V(vt)}, 4, {V(v)}']
def own_tile_rowmajor(s):
    return [f's_lshl2_add_u32 {s}, {sC}, {sRH}', f's_lshl_b32 {s}, {s}, 15',
            f's_lshl2_add_u32 {sT[7]}, {sCB}, {sW}', f's_lshl_b32 {sT[7]}, {sT[7]}, 5', f's_add_u32 {s}, {s}, {sT[7]}']

def stats_finish_ops(s1, s2, ta, tb, nm, rs):
    return [f'v_mov_b32 {V(ta)}, {V(s1)}', f'v_mov_b32 {V(tb)}, {V(s2)}',
            f'v_permlane32_swap_b32 {V(ta)}, {V(s1)}', f'v_permlane32_swap_b32 {V(tb)}, {V(s2)}',
            f'v_add_f32 {V(s1)}, {V(s1)}, {V(ta)}', f'v_add_f32 {V(s2)}, {V(s2)}, {V(tb)}',
            f'v_mul_f32 {V(nm)}, {f32(-1.0/512)}, {V(s1)}', f'v_mul_f32 {V(ta)}, {f32(1.0/512)}, {V(s2)}',
            f'v_fma_f32 {V(ta)}, -{V(nm)}, {V(nm)}, {V(ta)}', f'v_max_f32 {V(ta)}, 0, {V(ta)}',
            f'v_add_f32 {V(ta)}, {f32(1e-5)}, {V(ta)}', f'v_rsq_f32 {V(rs)}, {V(ta)}']
def stat_addr_ops(v, vt):
    return [f'v_lshrrev_b32 {V(v)}, 5, {V(vLANE)}', f'v_lshlrev_b32 {V(v)}, 10, {V(v)}',
            f'v_and_b32 {V(vt)}, 31, {V(vLANE)}', f'v_lshl_add_u32 {V(v)}, {V(vt)}, 4, {V(v)}']
def stat_load_ops(b0, b1, vaddr, soff):
    return [f'buffer_load_dwordx4 {V(b, 4)}, {V(vaddr)}, {SWS}, {soff} offen offset:{512*i} sc1' for i, b in enumerate((b0, b1))]
def stat_reduce_ops(b0, b1, s1, s2):
    return [f'v_add_f32 {V(b0+i)}, {V(b0+i)}, {V(b1+i)}' for i in range(4)] + \
           [f'v_add_f32 {V(s1)}, {V(b0)}, {V(b0+2)}', f'v_add_f32 {V(s2)}, {V(b0+1)}, {V(b0+3)}']
def split_pack_ops(dst, x, t):
    return [f'v_cvt_pk_bf16_f32 {V(t)}, {V(x)}, {V(x)}', f'v_and_b32 {V(t)}, 0xffff0000, {V(t)}',
            f'v_sub_f32 {V(t)}, {V(x)}, {V(t)}', f'v_cvt_pk_bf16_f32 {V(dst)}, {V(x)}, {V(t)}']
def cs_pack_ops(dst, x, t):
    return [f'v_cvt_pk_bf16_f32 {V(dst)}, {V(x)}, {V(x)}', f'v_and_b32 {V(t)}, 0xffff0000, {V(dst)}',
            f'v_sub_f32 {V(t)}, {V(x)}, {V(t)}', f'v_cvt_pk_bf16_f32 {V(t)}, {V(t)}, {V(t)}',
            f'v_cndmask_b32 {V(dst)}, {V(t)}, {V(dst)}, vcc']
def spart_ops(y, p, X, pk):
    if pk:
        ops = [f'v_pk_mul_f32 {V(p+2,2)}, {V(y,2)}, {V(y,2)}', f'v_pk_add_f32 {V(p,2)}, {V(y,2)}, {V(y+2,2)}']
        ops += [f'v_pk_fma_f32 {V(p+2,2)}, {V(y+r,2)}, {V(y+r,2)}, {V(p+2,2)}' for r in (2, 4, 6)]
        ops += [f'v_pk_add_f32 {V(p,2)}, {V(p,2)}, {V(y+r,2)}' for r in (4, 6)]
        ops += [f'v_add_f32 {V(p)}, {V(p)}, {V(p+1)}', f'v_add_f32 {V(p+1)}, {V(p+2)}, {V(p+3)}']
    else:
        ops = [f'v_mul_f32 {V(p+1)}, {V(y)}, {V(y)}', f'v_add_f32 {V(p)}, {V(y)}, {V(y+1)}', f'v_fmac_f32 {V(p+1)}, {V(y+1)}, {V(y+1)}']
        for r in range(2, 8): ops += [f'v_add_f32 {V(p)}, {V(p)}, {V(y+r)}', f'v_fmac_f32 {V(p+1)}, {V(y+r)}, {V(y+r)}']
    ops += [f's_lshl_b32 {sT[7]}, {sW}, 9', f's_add_u32 {sT[7]}, {sT[7]}, {L_SP + 2048*X}',
            f'v_lshl_add_u32 {V(p+2)}, {V(vLANE)}, 3, {sT[7]}', f'ds_write_b64 {V(p+2)}, {V(p,2)}']
    return ops
def scomb_ops(t, X, stoff, toks):
    ops = [f'v_lshlrev_b32 {V(t+8)}, 3, {V(vLANE)}', f'v_add_u32 {V(t+8)}, {L_SP + 2048*X}, {V(t+8)}',
           f'ds_read2st64_b64 {V(t,4)}, {V(t+8)} offset0:0 offset1:1', f'ds_read2st64_b64 {V(t+4,4)}, {V(t+8)} offset0:2 offset1:3',
           f's_lshl2_add_u32 {sT[6]}, {sC}, {sRH}', f's_lshl_b32 {sT[6]}, {sT[6]}, 11', f's_lshr_b32 {sT[7]}, {sCB}, 1', f's_lshl_b32 {sT[7]}, {sT[7]}, 9',
           f's_add_u32 {sT[6]}, {sT[6]}, {sT[7]}', f's_and_b32 {sT[7]}, {sCB}, 1', f's_lshl_b32 {sT[7]}, {sT[7]}, 3', f's_add_u32 {sT[6]}, {sT[6]}, {sT[7]}',
           f's_add_u32 {sT[6]}, {sT[6]}, {stoff + 4096*X}',
           f'v_and_b32 {V(t+9)}, 31, {V(vLANE)}', f'v_lshlrev_b32 {V(t+9)}, 4, {V(t+9)}']
    ops += [f'v_add_f32 {V(t+i)}, {V(t+i)}, {V(t+4+i)}' for i in range(4)]
    ops += [f'v_add_f32 {V(t)}, {V(t)}, {V(t+2)}', f'v_add_f32 {V(t+1)}, {V(t+1)}, {V(t+3)}',
            f'v_mov_b32 {V(t+2)}, {V(t)}', f'v_mov_b32 {V(t+3)}, {V(t+1)}',
            f'v_permlane32_swap_b32 {V(t+2)}, {V(t)}', f'v_permlane32_swap_b32 {V(t+3)}, {V(t+1)}',
            f'v_add_f32 {V(t)}, {V(t)}, {V(t+2)}', f'v_add_f32 {V(t+1)}, {V(t+1)}, {V(t+3)}']
    def st():
        A(f's_cmp_eq_u32 {sW}, {X}'); A('s_cselect_b64 exec, -1, 0')
        toks.append(store_dual([f'buffer_store_dwordx2 {V(t,2)}, {V(t+9)}, {SWS}, {sT[6]} offen']))
        A('s_mov_b64 exec, -1')
    ops.append(st)
    return ops
sSFL = 's3'
def sflag(vval, vzero, toks, foff, X):
    A.wait_vm(toks[-1]); flag_set(vval, vzero, sSFL, imm=foff + 64*X, wave=X)

def raw_addr_ops(v, vt, rowbytes):
    return [f'v_lshrrev_b32 {V(v)}, 2, {V(vLANE)}', f'v_mul_u32_u24 {V(v)}, {rowbytes}, {V(v)}',
            f'v_and_b32 {V(vt)}, 3, {V(vLANE)}', f'v_lshl_add_u32 {V(v)}, {V(vt)}, 4, {V(v)}']
def raw64_addr_ops(v0):
    return [f'v_lshrrev_b32 {V(v0)}, 2, {V(vLANE)}', f'v_lshlrev_b32 {V(v0)}, 10, {V(v0)}',
            f'v_and_b32 {V(v0+1)}, 3, {V(vLANE)}', f'v_lshl_add_u32 {V(v0)}, {V(v0+1)}, 4, {V(v0)}',
            f's_lshl_b32 {sT[7]}, {sW}, 5', f'v_xor_b32 {V(v0)}, {sT[7]}, {V(v0)}', f'v_xor_b32 {V(v0+1)}, 64, {V(v0)}']
def bounce_addr_ops(vw, vr):
    return [f's_lshl_b32 {sT[7]}, {sW}, 10', f's_add_u32 {sT[7]}, {sT[7]}, {L_BNC}',
            f'v_add_u32 {V(vw)}, {sT[7]}, {V(vL16)}', f'v_add_u32 {V(vr)}, {sT[7]}, {V(vTR)}']
def sub(reg4, lo):
    k = reg4[0]; a = int(reg4[2:reg4.index(':')])
    return f'{k}[{a+lo}:{a+lo+1}]'
_bslot = [0]
def wtrans_ops(reg4, vw, vr):
    o = 0
    return [f'ds_write_b128 {V(vw)}, {reg4} offset:{o}',
            f'ds_read_b64_tr_b16 {sub(reg4,0)}, {V(vr)} offset:{o}',
            f'ds_read_b64_tr_b16 {sub(reg4,2)}, {V(vr)} offset:{o+256}']
def emit(ops):
    for o in ops:
        if isinstance(o, str): A(o)
        else: o()

sW1O, sW2O, sWOO = sU[10], sU[11], sU[12]
def w1_setup_ops(va, vt):
    return raw_addr_ops(va, vt, 3584) + [f's_lshl2_add_u32 {sW1O}, {sJ}, {sW}', f's_lshl_b32 {sW1O}, {sW1O}, 6',
            f's_cmp_ge_u32 {sJ}, 14', f's_cselect_b32 {sW1O}, 0x7000000, {sW1O}']
def w1_load_ops(ks, va):
    return [f'buffer_load_dwordx4 {W1REG(ks)}, {V(va)}, {SW1}, {sW1O} offen', f's_add_u32 {sW1O}, {sW1O}, {16*3584}']
def w2_setup_ops():
    return [f's_mul_i32 {sW2O}, {sW}, {28*16384}', f's_lshl_b32 {sT[7]}, {sCB}, 7', f's_add_u32 {sW2O}, {sW2O}, {sT[7]}']
def w2_load_ops(i, va):
    return [f'buffer_load_dwordx4 {W2REG(i, 0)}, {V(va)}, {SW2}, {sW2O} offen',
            f'buffer_load_dwordx4 {W2REG(i, 1)}, {V(va+1)}, {SW2}, {sW2O} offen', f's_add_u32 {sW2O}, {sW2O}, 16384']
def wo_setup_ops():
    return [f's_lshl_b32 {sWOO}, {sW}, 17', f's_lshl_b32 {sT[7]}, {sCB}, 7', f's_add_u32 {sWOO}, {sWOO}, {sT[7]}']
def wo_load_ops(i, va):
    return [f's_add_u32 {sT[7]}, {sWOO}, {16384*i}',
            f'buffer_load_dwordx4 {WOREG(i, 0)}, {V(va)}, {SWO}, {sT[7]} offen',
            f'buffer_load_dwordx4 {WOREG(i, 1)}, {V(va+1)}, {SWO}, {sT[7]} offen']

P2Q, P2SA, P2SB, P2P, P2K, P2V, P2O, P2SC = 20, 28, 44, 60, 68, 72, 80, 96

def p1(L):
    first = (L == 0)
    XR = 20; aq, ak, av = 84, 100, 116; WB = 132; NMW = 156
    xop = lambda ks: V(XR + 4 * (ks % 16), 4)
    wreg = lambda ks, p: WB + ((ks & 1) * 3 + p) * 4
    vNM, vRS, vS1, vS2, vTRH, vA, vB, vC = vP
    F = Fill()
    stage_tok = {}
    sXB, sXK, sXS, sSTO, sSF = sU[0], sU[1], sU[2], sU[5], sU[6]
    CK, CV = wreg(0, 0), wreg(1, 0)
    if first:
        vXG, vWA, vBR0, vBR1, vTRC, TT = 224, 228, 229, 230, 231, 234
        ONES, CSA, CW = 0, 16, 8
        sXL, sWB, sWK, sWS, sWL = sU[3], sU[4], sU[7], sU[8], sU[9]
        emit(rowmajor_addr(vA, vB)); emit(own_tile_rowmajor(sT[6]))
        A(f'buffer_load_dwordx4 {V(vRES, 4)}, {V(vA)}, {SX}, {sT[6]} offen'); A(f's_add_u32 {sT[6]}, {sT[6]}, 65536')
        A(f'buffer_load_dwordx4 {V(vRES + 4, 4)}, {V(vA)}, {SX}, {sT[6]} offen')
        A(f'v_bfe_u32 {V(21)}, {V(vLANE)}, 2, 3')
        A(f'v_lshlrev_b32 {V(20)}, 10, {V(21)}')
        A(f'v_lshrrev_b32 {V(22)}, 5, {V(vLANE)}'); A(f'v_lshl_add_u32 {V(20)}, {V(22)}, 6, {V(20)}')
        A(f'v_and_b32 {V(22)}, 3, {V(vLANE)}'); A(f'v_lshrrev_b32 {V(23)}, 2, {V(21)}'); A(f'v_xor_b32 {V(22)}, {V(22)}, {V(23)}')
        A(f'v_lshl_add_u32 {V(vXG)}, {V(22)}, 4, {V(20)}')
        A(f'v_xor_b32 {V(22)}, 2, {V(22)}')
        A(f'v_lshl_add_u32 {V(vXG+1)}, {V(22)}, 4, {V(20)}')
        A(f'v_add_u32 {V(vXG+2)}, {2*7168}, {V(vXG)}'); A(f'v_add_u32 {V(vXG+3)}, {3*7168}, {V(vXG+1)}'); A(f'v_add_u32 {V(vXG+1)}, 7168, {V(vXG+1)}')
        A(f's_lshl_b32 {sXB}, {sRBG}, 15')
        A(f's_mul_i32 {sXL}, {sW}, 12288'); A(f's_add_u32 {sXL}, {sXL}, {L_S}')
        emit(raw_addr_ops(vWA, 20, 3072))
        A(f's_mul_i32 {sWB}, {sW}, {16*3072}'); A(f's_lshl_b32 {sT[5]}, {sJ}, 6'); A(f's_add_u32 {sWB}, {sWB}, {sT[5]}')
        A(f's_mul_i32 {sWL}, {sW}, 3072')
        def xdma_ops(s):
            ops = [f's_xor_b32 {sXK}, {sROT}, {s}', f's_add_u32 m0, {sXL}, {(s % 3) * 4096}', f's_lshl_b32 {sXS}, {sXK}, 7', f's_add_u32 {sXS}, {sXS}, {sXB}']
            for g in range(4):
                ops.append(lambda g=g: stage_tok.__setitem__(('x', s), A(f'buffer_load_dwordx4 {V(vXG + g)}, {SX}, {sXS} offen offset:{1024*g} lds')))
            return ops
        def wdma_ops(s):
            ops = [f's_mul_i32 {sWS}, {sXK}, {64*3072}', f's_add_u32 m0, {sWL}, {s*4*3072}', f's_add_u32 {sWS}, {sWS}, {sWB}']
            for p in (1, 2, 0):
                ops.append(lambda p=p: stage_tok.__setitem__(('w', s), A(f'buffer_load_dwordx4 {V(vWA)}, {SWQKV}, {sWS} offen offset:{1024*p} lds')))
            return ops
        for s_ in range(2): emit(xdma_ops(s_)); emit(wdma_ops(s_))
        if OPT.get('s0st'): stamp('iss')
        tr_addr()
        make_masks(32)
        A(f'v_bfe_u32 {V(21)}, {V(vLANE)}, 3, 2'); A(f'v_lshlrev_b32 {V(vBR0)}, 10, {V(21)}')
        A(f'v_and_b32 {V(21)}, 7, {V(vLANE)}'); A(f'v_lshl_add_u32 {V(vBR0)}, {V(21)}, 6, {V(vBR0)}')
        A(f'v_add_u32 {V(vBR0)}, {sXL}, {V(vBR0)}')
        A(f'v_bfe_u32 {V(21)}, {V(vLANE)}, 2, 2'); A(f'v_lshrrev_b32 {V(22)}, 5, {V(vLANE)}'); A(f'v_xor_b32 {V(21)}, {V(21)}, {V(22)}')
        A(f'v_xor_b32 {V(22)}, 2, {V(21)}')
        A(f'v_lshl_add_u32 {V(vBR1)}, {V(22)}, 4, {V(vBR0)}')
        A(f'v_lshl_add_u32 {V(vBR0)}, {V(21)}, 4, {V(vBR0)}')
        A(f'v_mov_b32 {V(21)}, 0x3f803f80')
        for r in range(4): A(f'v_accvgpr_write_b32 {Areg(ONES + r)}, {V(21)}')
        A(f's_min_u32 {sT[0]}, {sW}, 2'); A(f's_lshl_b32 {sT[0]}, {sT[0]}, 10')
        A(f'v_add_u32 {V(vTRC)}, {sT[0]}, {V(vTR)}'); A(f'v_add_u32 {V(vTRC+1)}, {16*3072}, {V(vTRC)}')
        A(f'v_min_u32 {V(vB)}, 2, {V(vLANE)}'); A(f'v_sub_u32 {V(vB)}, {sC}, {V(vB)}'); A(f'v_max_i32 {V(vB)}, 0, {V(vB)}'); A(f'v_lshlrev_b32 {V(vB)}, 2, {V(vB)}')
        for X in range(2):
            emit(unpack_ops(TT, X)); emit(spart_ops(TT, TT + 8, X, True))
        A(f'v_mov_b32 {V(TT+20)}, 1'); A(f'v_mov_b32 {V(TT+21)}, 0')
        A.wait_lgkm()
    else:
        A(f'v_and_b32 {V(vA)}, 31, {V(vLANE)}'); A(f'v_lshlrev_b32 {V(vA)}, 2, {V(vA)}')
        A(f's_lshl_b32 {sT[0]}, {sW}, 7'); A(f's_add_u32 {sT[0]}, {sT[0]}, {sFB}'); A(f's_add_u32 {sT[0]}, {sT[0]}, {LY.F_X2}')
        flag_issue(vB, vA, sT[0])
        A(f's_lshl_b32 {sXB}, {sRBG}, 15'); A(f's_add_u32 {sXB}, {sXB}, {LY.X2_OFF}'); A(f's_lshl_b32 {sXK}, {sROT}, 12')
    A(f'v_add_u32 {V(vTRH)}, {16*3072}, {V(vTR)}')
    def wread(ks, parts):
        base = vTR if ks < 16 else vTRH
        for p in parts:
            r = wreg(ks, p); o = L_WQ + (ks % 16) * 3072 + p * 1024
            A(f'ds_read_b64_tr_b16 {V(r, 2)}, {V(base)} offset:{o}')
            A(f'ds_read_b64_tr_b16 {V(r + 2, 2)}, {V(base)} offset:{o + 256}')
    def ready(ks):
        if first and ks % 4 == 0:
            st_ = ks // 4
            A.wait_vm(stage_tok[('x', st_)]); A.wait_vm(stage_tok[('w', st_)]); A('s_barrier')
            for q in range(4):
                A(f'ds_read_b128 {xop(ks + q)}, {V(vBR1 if q & 1 else vBR0)} offset:{(st_ % 3) * 4096 + 512*(q>>1)}')
    def xload_op(ks):
        ops = []
        if ks & 3 == 0: ops += [f's_xor_b32 {sXS}, {sXK}, {(ks >> 2) << 12}', f's_add_u32 {sXS}, {sXS}, {sXB}']
        return ops + [f'buffer_load_dwordx4 {xop(ks)}, {V(vL16)}, {SWS}, {sXS} offen offset:{(ks & 3) * 1024} sc1']
    SB0, SB1 = CK, CV
    def cread(ks):
        r = CW + 4 * (ks & 1); b_ = vTRC + (ks >= 16); o = L_WQ + (ks % 16) * 3072
        A(f'ds_read_b64_tr_b16 {Areg(r, 2)}, {V(b_)} offset:{o}'); A(f'ds_read_b64_tr_b16 {Areg(r + 2, 2)}, {V(b_)} offset:{o + 256}')
    xq = list(range(32))
    def xissue(limit):
        if xq and xq[0] < limit: emit(xload_op(xq.pop(0)))
    sflag_ops = [f'v_and_b32 {V(vA)}, 7, {V(vLANE)}', f'v_lshlrev_b32 {V(vA)}, 2, {V(vA)}',
                 f's_lshl_b32 {sSF}, {sW}, 5', f's_add_u32 {sSF}, {sSF}, {sFB}', f's_add_u32 {sSF}, {sSF}, {LY.F_S2}',
                 lambda: flag_issue(vB, vA, sSF)] + stat_addr_ops(vC, vS1) + \
                [f's_lshl_b32 {sSTO}, {sRBG}, 11', f's_add_u32 {sSTO}, {sSTO}, {LY.ST2_OFF}']
    sload_ops = [lambda: flag_check(vB, vA, sSF, L + 1)] + stat_load_ops(SB0, SB1, vC, sSTO)
    nm_ops = stat_reduce_ops(SB0, SB1, vS1, vS2) + stats_finish_ops(vS1, vS2, vA, vB, vNM, vRS) + split_pack_ops(NMW, vNM, vA) + \
             [f'v_mov_b32 {V(NMW+1)}, 0', f'v_mov_b32 {V(NMW+2)}, 0', f'v_mov_b32 {V(NMW+3)}, 0',
              f's_lshl_b32 {sT[0]}, {sW}, 8', f's_add_u32 {sT[0]}, {sT[0]}, {L_STAT}',
              f'v_and_b32 {V(vA)}, 31, {V(vLANE)}', f'v_lshl_add_u32 {V(vA)}, {V(vA)}, 2, {sT[0]}',
              f'ds_write_b32 {V(vA)}, {V(vRS)}',
              f'v_lshrrev_b32 {V(vB)}, 5, {V(vLANE)}', f'v_lshl_add_u32 {V(vB)}, {V(vB)}, 4, {sT[0]}',
              f'v_lshlrev_b32 {V(vA)}, 2, {V(vLANE)}', f'v_add_u32 {V(vA)}, {L_CSQ}, {V(vA)}']
    stoks = [[], []]
    sKV = sU[3]
    if not first:
        wread(0, [1, 2, 0])
        flag_check(vB, vA, sT[0], L)
        stamp('p1poll')
        for ks in range(OPT.get('p1pre', 12)): xissue(16)
        for p_ in PENDING: p_()
    else:
        ready(0); wread(0, [1, 2, 0]); cread(0)
        stamp('p1x')
        F.adds(xdma_ops(2)); F.adds(wdma_ops(2))
        F.add(lambda: flag_issue(vS1, vB, '0', SDBG))
        F.adds(scomb_ops(TT, 0, LY.ST2_OFF, stoks[0])); F.adds(scomb_ops(TT + 10, 1, LY.ST2_OFF, stoks[1]))
    fb = 12 if first else 8
    for ks in range(32):
        if OPT.get('p1st') and ks % 4 == 0: stamp(f'k{ks}')
        c = lambda a: '0' if ks == 0 else V(a, 16)
        x = xop(ks)
        nparts = [1, 2, 0] if ks + 1 < 16 else [1, 2]
        if ks + 1 < 32: ready(ks + 1)
        A(f'{MFMA} {V(ak,16)}, {V(wreg(ks,1),4)}, {x}, {c(ak)}')
        if ks + 1 < 32: wread(ks + 1, nparts[:1])
        else: wread(16, [0])
        if not first: xissue(ks + 16)
        F.run(fb)
        A(f'{MFMA} {V(av,16)}, {x}, {V(wreg(ks,2),4)}, {c(av)}')
        if ks + 1 < 32: wread(ks + 1, nparts[1:2])
        F.run(fb)
        if ks < 16:
            A(f'{MFMA} {V(aq,16)}, {V(wreg(ks,0),4)}, {x}, {c(aq)}')
            if len(nparts) > 2: wread(ks + 1, nparts[2:])
            if not first: xissue(ks + 17)
            F.run(fb)
        if first:
            A(f'{MFMA} {Areg(CSA,16)}, {Areg(ONES,4)}, {Areg(CW + 4*(ks&1),4)}, {"0" if ks == 0 else Areg(CSA,16)}')
            if ks + 1 < 32: cread(ks + 1)
            F.run(20)
        if first:
            if ks % 4 == 3 and ks // 4 + 3 < 8:
                F.flush(); F.adds(xdma_ops(ks // 4 + 3)); F.adds(wdma_ops(ks // 4 + 3))
            if ks == 8:
                F.add(lambda: flag_check(vS1, vB, '0', 1, SDBG), 8)
                F.add(lambda: (sflag(TT + 20, TT + 21, stoks[1], LY.F_S2, 0), sflag(TT + 20, TT + 21, stoks[1], LY.F_S2, 1)), 20)
            if ks == 17: F.adds(sflag_ops)
            if ks == 21: F.adds(sload_ops)
            if ks == 26: F.adds(nm_ops)
        else:
            if ks == 10: F.adds(sflag_ops)
            if ks == 15: F.flush(); F.adds(sload_ops)
            if ks == 20: F.adds(nm_ops)
            if ks == 27:
                F.flush()
                for r in (1, 2, 3): A(f'v_mov_b32 {V(CK + r)}, 0'); A(f'v_mov_b32 {V(CV + r)}, 0')
                A(f'ds_read_b32 {V(CK)}, {V(vA)} offset:256'); A(f'ds_read_b32 {V(CV)}, {V(vA)} offset:512'); A(f'ds_read_b32 {V(CV + 2)}, {V(vA)}')
            if ks == 29: A(f'{MFMA} {V(ak,16)}, {V(CK,4)}, {V(NMW,4)}, {V(ak,16)}')
            if ks == 30:
                A(f'{MFMA} {V(av,16)}, {V(NMW,4)}, {V(CV,4)}, {V(av,16)}')
                A(f'{MFMA} {V(aq,16)}, {V(CV+2,4)}, {V(NMW,4)}, {V(aq,16)}')
        if ks == 28:
            F.adds([f's_lshl_b32 {sKV}, {sJ}, 6', f's_add_u32 {sKV}, {sKV}, {sRBG}', f's_lshl_b32 {sKV}, {sKV}, 12',
                    f's_add_u32 {sKV}, {sKV}, {LY.KV_OFF + L*LY.KV_LAYER}',
                    f's_add_u32 {sT[0]}, {sW}, 8', f's_mul_i32 {sT[0]}, {sT[0]}, {KVSLOT}', f's_add_u32 {sT[0]}, {sT[0]}, {L_KV}',
                    f'v_add_u32 {V(vC)}, {sT[0]}, {V(vL16)}'])
    F.flush()
    if OPT.get('p1st'): stamp('kend')
    RSR = [wreg(0, 1), wreg(0, 2), wreg(1, 1), wreg(1, 2)]
    for g in range(4): F.add(f'ds_read_b128 {V(RSR[g], 4)}, {V(vB)} offset:{32*g}')
    if first:
        WK, WV, WQ = TT, TT + 2, TT + 4
        pre = [f'v_mov_b32 {V(TT + r)}, 0' for r in (1, 3, 5, 6, 7)]
        pre += [f'v_cmp_gt_u32 vcc, 32, {V(vLANE)}', f's_min_u32 {sT[1]}, {sW}, 2', f's_lshl_b32 {sT[1]}, {sT[1]}, 8', f'v_add_u32 {V(TT+11)}, {sT[1]}, {V(vA)}',
                f'v_accvgpr_read_b32 {V(TT+8)}, {Areg(CSA)}']
        pre += cs_pack_ops(TT + 9, TT + 8, TT + 10)
        pre += [f'ds_write_b32 {V(TT+11)}, {V(TT+9)}', lambda: (A.wait_lgkm(), A('s_barrier')),
                f'ds_read_b32 {V(WK)}, {V(vA)} offset:256', f'ds_read_b32 {V(WV)}, {V(vA)} offset:512', f'ds_read_b32 {V(WQ)}, {V(vA)}']
        F.q[0:0] = [(o, 4) for o in pre]
        F.adds([f'{MFMA} {V(ak,16)}, {V(WK,4)}, {V(NMW,4)}, {V(ak,16)}', f'{MFMA} {V(av,16)}, {V(NMW,4)}, {V(WV,4)}, {V(av,16)}',
                f'{MFMA} {V(aq,16)}, {V(WQ,4)}, {V(NMW,4)}, {V(aq,16)}'])
    kvtok = []
    for acc, isv in ((ak, False), (av, True)):
        for half in range(2):
            for r in range(8 * half, 8 * half + 8):
                sc = V(RSR[r >> 2] + (r & 3)) if isv else V(vRS)
                F.add(f'v_mul_f32 {V(acc+r)}, {V(acc+r)}, {sc}')
            for r in range(8 * half, 8 * half + 8, 2):
                F.add(f'v_cvt_pk_bf16_f32 {V(acc + r//2)}, {V(acc+r)}, {V(acc+r+1)}')
            f = 2 * isv + half
            F.add(lambda acc=acc, half=half, f=f: kvtok.append(A(f'buffer_store_dwordx4 {V(acc + 4*half, 4)}, {V(vL16)}, {SWS}, {sKV} offen offset:{1024*f} sc1')))
    for f, reg in enumerate((ak, ak + 4, av, av + 4)): F.add(f'ds_write_b128 {V(vC)}, {V(reg, 4)} offset:{1024*f}')
    for ks in range(16, 32):
        if ks + 1 < 32: wread(ks + 1, [0])
        A(f'{MFMA} {V(aq,16)}, {V(wreg(ks,0),4)}, {xop(ks)}, {V(aq,16)}')
        F.run(OPT.get('qtb', 56) if len(kvtok) < 4 else 16)
    F.flush()
    if OPT.get('p1st'): stamp('qtail')
    A(f's_lshl_b32 {sT[0]}, {sJ}, 7'); A(f's_lshl2_add_u32 {sT[0]}, {sW}, {sT[0]}'); A(f's_add_u32 {sT[0]}, {sT[0]}, {sFB}'); A(f's_add_u32 {sT[0]}, {sT[0]}, {LY.F_KV}')
    A(f's_add_u32 {sT[1]}, {sXCC}, {(L + 1) << 8}')
    A(f'v_mov_b32 {V(vS1)}, {sT[1]}'); A(f'v_mov_b32 {V(vC)}, 0')
    T = WB
    A(f'v_min_u32 {V(vA)}, 11, {V(vLANE)}')
    A(f's_lshl_b32 {sT[1]}, {sC}, 2'); A(f'v_add_u32 {V(vS2)}, {sT[1]}, {V(vA)}')
    A(f'v_mov_b32 {V(T)}, 0x3f803f80')
    A(f'v_cmp_le_u32 vcc, 8, {V(vS2)}')
    A(f'v_mul_u32_u24 {V(vA)}, {KVSLOT}, {V(vA)}'); A(f'v_add_u32 {V(vA)}, {L_KV + 4096}, {V(vA)}')
    A(f'v_cndmask_b32 {V(T)}, 0, {V(T)}, vcc')
    for r in range(1, 4): A(f'v_mov_b32 {V(T+r)}, {V(T)}')
    A(f'ds_write_b128 {V(vA)}, {V(T,4)}')
    A(f'v_mul_f32 {V(vNM)}, {f32(0.25 * LOG2E)}, {V(vRS)}')
    for r in range(0, 16, 2): A(f'v_pk_mul_f32 {V(aq+r,2)}, {V(aq+r,2)}, {V(vNM,2)} op_sel_hi:[1,0]')
    for r in range(0, 16, 2): A(f'v_cvt_pk_bf16_f32 {V(P2Q + r//2)}, {V(aq+r)}, {V(aq+r+1)}')
    if OPT.get('p1st'): stamp('qepi')
    A.wait_vm(kvtok[-1]); flag_set(vS1, vC, sT[0], fastok=False)
    stamp('p1end')

def p2(L):
    first = (L == 0)
    vKA, vV0, vV1, vPM, vA, vB, vC, vD = vP
    vVA = [vV0, vV1]
    sKVB, sO, sHF, sHD = sU[0], sU[1], sU[2], sU[3]
    A(f's_lshr_b32 {sT[0]}, {sW}, 1'); A(f's_add_u32 {sT[0]}, {sT[0]}, {sC}'); A(f's_sub_u32 {sT[0]}, {sT[0]}, 2')
    A(f's_and_b32 {sT[1]}, {sW}, 1'); A(f's_lshl_b32 {sT[1]}, {sT[1]}, 1')
    A(f's_lshl_b32 {sHF}, {sT[0]}, 13'); A(f's_lshl_b32 {sT[2]}, {sJ}, 7'); A(f's_add_u32 {sHF}, {sHF}, {sT[2]}')
    A(f's_lshl2_add_u32 {sHF}, {sT[1]}, {sHF}'); A(f's_add_u32 {sHF}, {sHF}, {LY.F_KV}')
    A(f's_lshl2_add_u32 {sT[1]}, {sT[0]}, {sT[1]}'); A(f's_lshl_b32 {sT[2]}, {sJ}, 6'); A(f's_add_u32 {sT[1]}, {sT[1]}, {sT[2]}')
    A(f's_lshl_b32 {sHD}, {sT[1]}, 12'); A(f's_add_u32 {sHD}, {sHD}, {LY.KV_OFF + L*LY.KV_LAYER}')
    A(f'v_and_b32 {V(vA)}, 1, {V(vLANE)}'); A(f'v_lshlrev_b32 {V(vA)}, 2, {V(vA)}')
    skip = A.newlabel('Lnohalo'); go = A.newlabel('Lhalo')
    A(f's_cmp_lt_i32 {sT[0]}, 0'); A(f's_cbranch_scc1 {skip}')
    poll(vB, vA, sHF, (L + 1) << 8)
    A(f's_branch {go}')
    A.label(skip)
    A(f's_mov_b32 {sHD}, 0x7ff00000')
    A.label(go)
    stamp('halopoll')
    A(f's_mul_i32 {sT[0]}, {sW}, {2*KVSLOT}'); A(f's_add_u32 {sT[0]}, {sT[0]}, {L_KV}')
    for b in range(2):
        A(f's_mov_b32 m0, {sT[0]}')
        for f in range(4):
            t = A(f'buffer_load_dwordx4 {V(vL16)}, {SWS}, {sHD} offen offset:{1024*f} sc1 lds')
        A(f's_add_u32 {sT[0]}, {sT[0]}, {KVSLOT}'); A(f's_add_u32 {sHD}, {sHD}, 4096')
    A(f's_mul_i32 {sKVB}, {sW}, {KVSLOT}'); A(f's_add_u32 {sKVB}, {sKVB}, {L_KV}')
    A(f'v_add_u32 {V(vKA)}, {sKVB}, {V(vL16)}')
    A(f'v_add_u32 {V(vPM)}, {L_PMASK}, {V(vL16)}')
    A(f's_add_u32 {sKVB}, {sKVB}, 4096')
    def vaddr_ops(hd, f):
        return [f'v_bfe_u32 {V(vA)}, {V(vLANE)}, 4, 1', f'v_cmp_eq_u32 vcc, {hd}, {V(vA)}', f'v_mov_b32 {V(vA)}, {sKVB}',
                f'v_add_u32 {V(vB)}, {2048 + 1024*f}, {V(vKA)}', f'v_cndmask_b32 {V(vVA[f])}, {V(vA)}, {V(vB)}, vcc']
    emit(vaddr_ops(0, 0)); emit(vaddr_ops(0, 1))
    A(f's_lshl_b32 {sO}, {sRBG}, 15'); A(f's_lshl_b32 {sT[1]}, {sJ}, 11'); A(f's_add_u32 {sO}, {sO}, {sT[1]}'); A(f's_add_u32 {sO}, {sO}, {LY.O_OFF}')
    emit(raw64_addr_ops(vC)); emit(wo_setup_ops())
    BG = Fill()
    for i in range(2, 8): BG.adds(wo_load_ops(i, vC))
    if first:
        A(f'v_lshrrev_b32 {V(P2P)}, 2, {V(vLANE)}'); A(f'v_lshlrev_b32 {V(P2P)}, 7, {V(P2P)}'); A(f'v_and_b32 {V(P2P+1)}, 3, {V(vLANE)}')
        A(f'v_lshl_add_u32 {V(P2O)}, {V(P2P+1)}, 2, {V(P2P)}')
        A(f's_add_u32 {sHF}, {sFB}, {LY.F_KV}')
        flag_issue(P2O + 1, P2O, sHF)
        emit(w1_setup_ops(255, 254))
        for ks in range(32): BG.adds(w1_load_ops(ks, 255))
    A.wait_vm(t); A.wait_lgkm(); A('s_barrier')
    stamp('halodma')
    Sb = [P2SA, P2SB]
    units = []
    for hd in range(2): units += [(hd, 'm', 8)] + [(hd, 'f', d) for d in range(1, 8)]
    kread = lambda hd, d: A(f'ds_read_b128 {V(P2K,4)}, {V(vKA)} offset:{d*KVSLOT + 1024*hd}')
    vread = lambda f, d, base: A(f'ds_read_b128 {V(base,4)}, {V(vVA[f])} offset:{d*KVSLOT}')
    qk = lambda hd, s: A(f'{MFMA} {V(s,16)}, {V(P2K,4)}, {V(P2Q + 4*hd, 4)}, 0')
    def pv(vb, pb, start=False):
        A(f'{MFMA} {V(P2O,16)}, {V(vb,4)}, {V(pb,4)}, {"0" if start else V(P2O,16)}')
    otok = []
    def o_epilogue_ops(hd, tmp):
        ob, lb = (P2O, P2O + 8) if hd == 0 else (P2O + 8, P2O)
        ops = [f'v_rcp_f32 {V(vA)}, {V(lb)}', f's_nop 0']
        ops += [f'v_mul_f32 {V(ob+r)}, {V(ob+r)}, {V(vA)}' for r in range(8)]
        ops += [f'v_cvt_pk_bf16_f32 {V(tmp + r//2)}, {V(ob+r)}, {V(ob+r+1)}' for r in range(0, 8, 2)]
        ops.append(lambda: otok.append(store_dual([f'buffer_store_dwordx4 {V(tmp,4)}, {V(vL16)}, {SWS}, {sO} offen offset:{1024*hd}'])))
        return ops
    kread(0, 8); qk(0, Sb[0]); kread(0, 0); qk(0, P2SC); kread(0, 1)
    vread(0, 8, P2V); vread(1, 8, P2V + 4)
    if first:
        flag_check(P2O + 1, P2O, sHF, 256)
        A(f'v_and_b32 {V(P2O+1)}, 255, {V(P2O+1)}'); A(f'v_cmp_ne_u32 vcc, {sXCC}, {V(P2O+1)}')
        A(f's_cmp_eq_u64 vcc, 0'); A(f's_cselect_b32 {sFAST}, {0 if FORCE_SLOW else 1}, 0')
    bgb = 8 if first else 4
    pendPV1 = None
    for n, (hd, kind, d) in enumerate(units):
        if OPT.get('p2st') and L == 1 and n % 2 == 0: stamp(f'u{n}')
        s = Sb[n & 1]; nxt = Sb[(n + 1) & 1]
        nu = units[n + 1] if n + 1 < len(units) else None
        nu2 = units[n + 2] if n + 2 < len(units) else None
        E = lambda r: A(f'v_exp_f32 {V(s+r)}, {V(s+r)}')
        C = lambda t: A(f'v_cvt_pk_bf16_f32 {V(P2P + t)}, {V(s+2*t)}, {V(s+2*t+1)}')
        def posA():
            if pendPV1:
                pv(*pendPV1)
            if n > 0:
                if nu is not None or True:
                    if kind == 'm': emit(vaddr_ops(hd, 1))
                    vread(1, d, P2V + 4)
        def posB():
            if nu:
                qk(nu[0], nxt)
                if nu[1] == 'm': kread(nu[0], 0)
                elif nu2: kread(nu2[0], nu2[2])
        def posB2():
            if nu and nu[1] == 'm':
                qk(nu[0], P2SC); kread(nu2[0], nu2[2])
        def posC_next_v0():
            if nu:
                if nu[1] == 'm': emit(vaddr_ops(nu[0], 0))
                vread(0, nu[2], P2V)
        if kind == 'f':
            E(0); E(1); posA(); E(2); E(3); C(0); E(4); E(5); BG.run(bgb); C(1); posB(); E(6); E(7); C(2); E(8); C(3); E(9); E(10)
            pv(P2V, P2P); posC_next_v0()
            E(11); C(4); E(12); E(13); BG.run(bgb); C(5); posB2(); E(14); E(15); C(6); BG.run(bgb); C(7)
            pendPV1 = (P2V + 4, P2P + 4)
        else:
            M = lambda r: A(f'v_cndmask_b32 {V(s+r)}, {V(P2SC+r)}, {V(s+r)}, s[{SMASK0+2*r}:{SMASK0+2*r+1}]')
            M(0); M(1); posA()
            for r in range(2, 16): M(r)
            A(f'ds_read_b128 {V(P2SC,4)}, {V(vPM)}'); A(f'ds_read_b128 {V(P2SC+4,4)}, {V(vPM)} offset:1024')
            vread(0, 0, P2SC + 8); vread(1, 0, P2SC + 12)
            posB()
            if hd == 1: emit(o_epilogue_ops(0, P2K + 0) if False else o_epilogue_ops(0, P2O + 8))
            E(0); E(1); E(2); E(3); C(0); E(4); E(5); C(1); E(6); E(7); C(2); E(8); C(3); E(9)
            for t in range(4): A(f'v_and_b32 {V(P2SC+t)}, {V(P2SC+t)}, {V(P2P+t)}')
            E(10); E(11)
            pv(P2V, P2SC, start=True); posC_next_v0()
            for t in range(4): A(f'v_xor_b32 {V(P2P+t)}, {V(P2SC+t)}, {V(P2P+t)}')
            C(4); E(12); E(13)
            pv(P2SC + 8, P2P)
            C(5); E(14); E(15); C(6); BG.run(bgb); C(7)
            for t in range(4, 8): A(f'v_and_b32 {V(P2SC+t)}, {V(P2SC+t)}, {V(P2P+t)}')
            for t in range(4, 6): A(f'v_xor_b32 {V(P2P+t)}, {V(P2SC+t)}, {V(P2P+t)}')
            pv(P2V + 4, P2SC + 4)
            for t in range(6, 8): A(f'v_xor_b32 {V(P2P+t)}, {V(P2SC+t)}, {V(P2P+t)}')
            pendPV1 = (P2SC + 12, P2P + 4)
        if n == 9:
            for i in range(2): BG.adds(wo_load_ops(i, vC))
    pv(*pendPV1)
    BG.flush()
    A(f's_lshl_b32 {sT[0]}, {sW}, 6'); A(f's_lshl2_add_u32 {sT[0]}, {sJ}, {sT[0]}'); A(f's_add_u32 {sT[0]}, {sT[0]}, {sFB}')
    A(f'v_mov_b32 {V(vB)}, {L + 1}'); A(f'v_mov_b32 {V(vD)}, 0')
    emit(o_epilogue_ops(1, P2SA))
    A('s_barrier')
    return dict(flag=(vB, vD, sT[0]), tok=otok)

def red_addr_ops(vw, vr, area):
    ops = []
    for q in (1, 2, 3):
        ops += [f's_xor_b32 {sT[7]}, {sW}, {q}', f's_mul_i32 {sT[7]}, {sT[7]}, 6144', f's_add_u32 {sT[7]}, {sT[7]}, {area + (q-1)*2048}',
                f'v_add_u32 {V(vw + q - 1)}, {sT[7]}, {V(vL16)}']
    ops += [f's_mul_i32 {sT[7]}, {sW}, 6144', f's_add_u32 {sT[7]}, {sT[7]}, {area}', f'v_add_u32 {V(vr)}, {sT[7]}, {V(vL16)}']
    return ops
def send_ops(acc, vw, off):
    return [f'ds_write_b128 {V(vw + q - 1)}, {V(acc + 8*q + 4*h, 4)} offset:{off + 1024*h}' for q in (1, 2, 3) for h in range(2)]
def recv_ops(dst, vr, off):
    return [f'ds_read_b128 {V(dst + 4*k, 4)}, {V(vr)} offset:{off + 1024*k}' for k in range(6)]
def unpack_ops(dst, X):
    ops = []
    for t in range(4):
        ops += [f'v_lshlrev_b32 {V(dst + 2*t)}, 16, {V(vRES + 4*X + t)}', f'v_and_b32 {V(dst + 2*t + 1)}, 0xffff0000, {V(vRES + 4*X + t)}']
    return ops
def add8_ops(y, a, b, pk):
    if pk: return [f'v_pk_add_f32 {V(y+r,2)}, {V(a+r,2)}, {V(b+r,2)}' for r in range(0, 8, 2)]
    return [f'v_add_f32 {V(y+r)}, {V(a+r)}, {V(b+r)}' for r in range(8)]

def finish_ops(y, part, X, pk, sxo, toks, last=False, vout=None):
    ops = add8_ops(part, part, part + 8, pk) + add8_ops(y, y, part + 16, pk) + add8_ops(y, y, part, pk)
    ops += [f'v_cvt_pk_bf16_f32 {V(vRES + 4*X + r//2)}, {V(y+r)}, {V(y+r+1)}' for r in range(0, 8, 2)]
    if last:
        ops.append(lambda: toks.append(A(f'buffer_store_dwordx4 {V(vRES + 4*X, 4)}, {V(vout)}, {SOUT}, {sxo} offen')))
        return ops
    ops.append(lambda: toks.append(store_dual([f'buffer_store_dwordx4 {V(vRES + 4*X, 4)}, {V(vL16)}, {SWS}, {sxo} offen'])))
    return ops + spart_ops(y, part, X, pk)

def out_scalars_ops(sxo, sfl, xoff, foff):
    return [f's_lshl2_add_u32 {sT[6]}, {sC}, {sRH}', f's_lshl2_add_u32 {sT[7]}, {sCB}, {sW}',
            f's_lshl_b32 {sxo}, {sT[6]}, 5', f's_add_u32 {sxo}, {sxo}, {sT[7]}', f's_lshl_b32 {sxo}, {sxo}, 10', f's_add_u32 {sxo}, {sxo}, {xoff}',
            f's_lshl_b32 {sfl}, {sRH}, 5', f's_add_u32 {sfl}, {sfl}, {sT[7]}', f's_lshl2_add_u32 {sfl}, {sfl}, {sFB}', f's_add_u32 {sfl}, {sfl}, {foff}']

def ffn(L, otok, oflag):
    first = (L == 0); last = (L == 1)
    vRW, vRR, vFA, vON, vF, vZ = vP[0], vP[3], vP[4], vP[5], vP[6], vP[7]
    assert (vON, vZ) == oflag[:2]
    sXO, sFL, sSA, sSB, sPF = sU[0], sU[2], sU[3], sU[4], sU[5]
    emit(bounce_addr_ops(52, 53))
    tr = []
    for i in range(8):
        for nh in range(2): tr.append(wtrans_ops(WOREG(i, nh), 52, 53))
    order = list(range(4, 16)) + list(range(0, 4))
    n1 = OPT.get('wot', 10)
    for k in order[:n1]: emit(tr[k])
    A.wait_vm(otok[-1]); flag_set(*oflag, imm=LY.F_O)
    stamp('p2end')
    for k in order[n1:]: emit(tr[k])
    A(f'v_bfe_u32 {V(vFA)}, {V(vLANE)}, 2, 1'); A(f'v_lshlrev_b32 {V(vFA)}, 7, {V(vFA)}')
    A(f'v_and_b32 {V(vF)}, 3, {V(vLANE)}'); A(f'v_lshl_add_u32 {V(vFA)}, {V(vF)}, 2, {V(vFA)}')
    A(f's_lshl_b32 {sPF}, {sRH}, 6'); A(f's_lshl_b32 {sT[0]}, {sW}, 4'); A(f's_add_u32 {sPF}, {sPF}, {sT[0]}'); A(f's_add_u32 {sPF}, {sPF}, {sFB}')
    A(f's_lshl2_add_u32 {sSA}, {sC}, {sRH}'); A(f's_lshl_b32 {sSA}, {sSA}, 15'); A(f's_lshl_b32 {sT[0]}, {sW}, 13'); A(f's_add_u32 {sSA}, {sSA}, {sT[0]}')
    A(f's_add_u32 {sSA}, {sSA}, {LY.O_OFF}'); A(f's_add_u32 {sSB}, {sSA}, 65536'); A(f's_add_u32 {sT[0]}, {sSA}, 4096'); A(f's_add_u32 {sT[1]}, {sSB}, 4096')
    flag_issue(vF, vFA, sPF)
    emit(red_addr_ops(vRW, vRR, L_S))
    emit(out_scalars_ops(sXO, sFL, LY.X1_OFF, LY.F_X1))
    flag_check(vF, vFA, sPF, L + 1)
    stamp('p3poll')
    ACC = 20
    slot = {}
    def oload(n, base):
        X, i = divmod(n, 8); slot[n] = base
        so = [[sSA, sT[0]], [sSB, sT[1]]][X][i >> 2]
        A(f'buffer_load_dwordx4 {V(base,4)}, {V(vL16)}, {SWS}, {so} offen offset:{(i & 3)*1024} sc1')
    for n in range(11): oload(n, 52 + 4 * n)
    sXS, sLD, sHO, sHFL, sST, sSF = sU[1], sU[6], sU[7], sU[8], sU[9], sU[13]
    A(f'v_lshlrev_b32 {V(vFA)}, 2, {V(vLANE)}')
    A(f's_add_u32 {sPF}, {sFB}, {LY.F_X1}')
    A(f's_lshl_b32 {sXS}, {sC}, 17'); A(f's_lshl_b32 {sT[2]}, {sW}, 11'); A(f's_add_u32 {sXS}, {sXS}, {sT[2]}'); A(f's_add_u32 {sXS}, {sXS}, {LY.X1_OFF}')
    A(f's_add_u32 {sLD}, {sT[2]}, {L_S}')
    A(f's_mul_i32 {sHO}, {sC}, {4*112*1024}'); A(f's_lshl2_add_u32 {sT[3]}, {sJ}, {sW}'); A(f's_lshl_b32 {sT[2]}, {sT[3]}, 11')
    A(f's_add_u32 {sHO}, {sHO}, {sT[2]}'); A(f's_add_u32 {sHO}, {sHO}, {LY.H_OFF}')
    A(f's_lshl2_add_u32 {sHFL}, {sT[3]}, {sFB}')
    A(f's_cmp_ge_u32 {sJ}, 14'); A(f's_cselect_b32 {sXS}, 0x70000000, {sXS}'); A(f's_cselect_b32 {sHO}, 0x70000000, {sHO}')
    A(f's_lshl_b32 {sST}, {sC}, 13'); A(f's_add_u32 {sST}, {sST}, {LY.ST1_OFF}')
    A(f's_add_u32 {sSF}, {sFB}, {LY.F_S1}')
    F = Fill()
    tokA, tokB, stA, stB = [], [], [], []
    yA = 72
    for n in range(16):
        X, i = divmod(n, 8)
        if n == 8:
            emit(unpack_ops(yA, 0)); emit(send_ops(ACC, vRW, 0)); emit(add8_ops(yA, yA, ACC, True))
            A.wait_lgkm()
        for nh in range(2):
            A(f'{MFMA} {V(ACC + 16*nh, 16)}, {WOREG(i, nh)}, {V(slot[n],4)}, {"0" if i == 0 else V(ACC + 16*nh, 16)}')
            if n == 8 and nh == 0: A('s_barrier')
            F.run(24)
        if n < 5: oload(11 + n, slot[n])
        if n == 10:
            F.adds(recv_ops(96, vRR, 0)); F.adds(finish_ops(yA, 96, 0, False, sXO, tokA))
    if OPT.get('p3st'): stamp('p3m')
    yB = 52
    emit(unpack_ops(yB, 1)); F.run(16)
    emit(send_ops(ACC, vRW, 24576)); emit(add8_ops(yB, yB, ACC, True))
    F.flush()
    A(f's_add_u32 {sXO}, {sXO}, 65536')
    A.wait_lgkm(); A('s_barrier')
    emit(recv_ops(124, vRR, 24576))
    A.wait_vm(tokA[-1]); flag_set(vON, vZ, sFL)
    emit(finish_ops(yB, 124, 1, True, sXO, tokB))
    flag_issue(vF, vFA, sPF)
    emit(scomb_ops(100, 0, LY.ST1_OFF, stA))
    stamp('p3end')
    if STOP <= 5 * L + 3:
        A.wait_vm(); return False
    ACC4 = [20, 36]; XR = 52; NXR = 8; CSW = 84; NMW = 88; NMS = 92; SA = 96; E = 100; HP = 116
    vXA, vSA, vNL, vSF = vP[0], vP[1], vP[2], vP[3]
    A(f'v_add_u32 {V(vXA)}, {L_S}, {V(vL16)}')
    A(f'v_mov_b32 {V(vNL)}, {f32(-LOG2E)}')
    A(f'v_lshrrev_b32 {V(vSA)}, 5, {V(vLANE)}'); A(f'v_lshlrev_b32 {V(vSA)}, 11, {V(vSA)}')
    A(f'v_and_b32 {V(vSF)}, 31, {V(vLANE)}'); A(f'v_lshl_add_u32 {V(vSA)}, {V(vSF)}, 4, {V(vSA)}')
    A(f'v_and_b32 {V(vSF)}, 15, {V(vLANE)}'); A(f'v_lshlrev_b32 {V(vSF)}, 2, {V(vSF)}')
    for r in (1, 2, 3, 5, 6, 7): A(f'v_mov_b32 {V(CSW + r)}, 0')
    A(f's_lshl_b32 {sT[7]}, {sW}, 8'); A(f's_add_u32 {sT[7]}, {sT[7]}, {L_CS1}'); A(f'v_lshl_add_u32 {V(94)}, {V(vLANE)}, 2, {sT[7]}')
    NS = 6; tok = {}
    def dma_m0(s): A(f's_add_u32 m0, {sLD}, {(s % NS) * 8192}')
    def dma1(s, f):
        tok[s] = A(f'buffer_load_dwordx4 {V(vL16)}, {SWS}, {sXS} offen offset:{1024*f} sc1 lds')
        if f == 1: A(f's_add_u32 {sXS}, {sXS}, 8192')
    def start_dma():
        flag_check(vF, vFA, sPF, L + 1)
        for s in range(3): dma_m0(s); dma1(s, 0); dma1(s, 1)
    if first:
        emit(bounce_addr_ops(132, 133)); emit(raw64_addr_ops(134)); emit(w2_setup_ops())
        for r in range(4): A(f'v_mov_b32 {V(136 + r)}, 0x3f803f80')
        for ks in range(4): emit(wtrans_ops(W1REG(ks), 132, 133))
        A.wait_vm(tokB[-1]); flag_set(vON, vZ, sFL, imm=256)
        for ks in range(32):
            if ks + 4 < 32: emit(wtrans_ops(W1REG(ks + 4), 132, 133))
            A(f'{MFMA} {V(36,16)}, {V(136,4)}, {W1REG(ks)}, {"0" if ks == 0 else V(36,16)}')
            if ks == 8: start_dma()
        A(f'v_cmp_gt_u32 vcc, 32, {V(vLANE)}')
        emit(cs_pack_ops(CSW, 36, 95))
        A(f'ds_write_b32 {V(94)}, {V(CSW)}')
    else:
        A(f'ds_read_b32 {V(CSW)}, {V(94)}')
        A.wait_vm(tokB[-1]); flag_set(vON, vZ, sFL, imm=256)
        start_dma()
    sflag(vON, vZ, stA, LY.F_S1, 0)
    A.wait_lgkm()
    stamp('p4poll')
    LA = 6
    xr = lambda n: V(XR + 4 * (n % NXR), 4)
    xtok = {}
    def xread(n):
        s, t = divmod(n, 8); c = 4
        if t == 0:
            A.wait_vm(tok[s]); A('s_barrier'); c += 8
        nd = None
        if s == 0:
            if t in (0, 2): nd = (3, t >> 1)
            if t in (4, 6): nd = (4, (t - 4) >> 1)
        elif s + 4 < 16:
            if t == 1: nd = (s + 4, 0)
            if t == 5: nd = (s + 4, 1)
        if nd and nd[1] == 0: dma_m0(nd[0])
        xtok[n] = A(f'ds_read_b128 {xr(n)}, {V(vXA)} offset:{(s % NS) * 8192 + t * 1024}')
        if nd: dma1(*nd); c += 8
        return c
    htok = {}
    def epi_ops(rb):
        a = ACC4[rb & 1]; sa = SA + rb
        st = [[f'v_mul_f32 {V(a+r)}, {V(a+r)}, {V(sa)}' for r in range(16)],
              [f'v_exp_f32 {V(E+r)}, {V(a+r)}' for r in range(16)],
              [f'v_fma_f32 {V(E+r)}, {V(E+r)}, {V(vNL)}, {V(vNL)}' for r in range(16)],
              [f'v_rcp_f32 {V(E+r)}, {V(E+r)}' for r in range(16)],
              [f'v_mul_f32 {V(a+r)}, {V(a+r)}, {V(E+r)}' for r in range(16)]]
        ops = []
        for step in range(16 + 2 * 5):
            for k in range(5):
                r = step - 2 * k
                if 0 <= r < 16: ops.append(st[k][r])
            r = step - 10
            if 0 <= r < 16 and r & 1:
                ops.append(f'v_cvt_pk_bf16_f32 {V(HP + r//2)}, {V(a+r-1)}, {V(a+r)}')
        def hstore():
            htok[rb] = store_dual([f'buffer_store_dwordx4 {V(HP + 4*f, 4)}, {V(vL16)}, {SWS}, {sHO} offen offset:{1024*f}' for f in range(2)])
            A(f's_add_u32 {sHO}, {sHO}, {112*1024}')
        return ops, hstore
    def hflag(rb):
        A.wait_vm(htok[rb]); flag_set(vON, vZ, sHFL, imm=LY.F_H + 256 * rb)
    sHA, sHB, sP5F = sU[3], sU[4], sU[14]
    p5setup = [f's_lshl2_add_u32 {sHA}, {sC}, {sRH}', f's_mul_i32 {sHA}, {sHA}, {112*1024}', f's_mul_i32 {sT[6]}, {sW}, {28*1024}',
               f's_add_u32 {sHA}, {sHA}, {sT[6]}', f's_add_u32 {sHA}, {sHA}, {LY.H_OFF}', f's_add_u32 {sHB}, {sHA}, {2*112*1024}',
               f's_lshl_b32 {sP5F}, {sRH}, 8', f's_mul_i32 {sT[6]}, {sW}, 56', f's_add_u32 {sP5F}, {sP5F}, {sT[6]}', f's_add_u32 {sP5F}, {sP5F}, {sFB}',
               f's_add_u32 {sP5F}, {sP5F}, {LY.F_H}',
               f'v_min_u32 {V(vFA)}, 13, {V(vLANE)}', f'v_lshlrev_b32 {V(vFA)}, 2, {V(vFA)}']
    if last: p5setup += own_tile_rowmajor(sXO)
    else: p5setup += out_scalars_ops(sXO, sFL, LY.X2_OFF, LY.F_X2)
    free = ([140 + 4 * k for k in range(5)] if first else [132 + 4 * k for k in range(7)]) + [124, 128]
    hslot = {}; hnext = [0]; hlimit = [0]
    def hload():
        n = hnext[0]
        if n >= hlimit[0] or not free: return False
        X, i = divmod(n, 28); so = [sHA, sHB][X]; b = free.pop(0); hslot[n] = b; hnext[0] += 1
        A(f'buffer_load_dwordx4 {V(b,4)}, {V(vL16)}, {SWS}, {so} offen offset:{(i & 3)*1024} sc1')
        if i & 3 == 3: A(f's_add_u32 {so}, {so}, 4096')
        return True
    F = Fill(); BG = Fill()
    if first:
        for i in range(28): BG.adds(w2_load_ops(i, 134))
    for n in range(LA): xread(n)
    A(f's_add_u32 {sPF}, {sPF}, 256')
    def sload(T):
        return [f'buffer_load_dwordx4 {V(T + 4*i, 4)}, {V(vSA)}, {SWS}, {sST} offen offset:{512*i} sc1' for i in range(4)] + \
               [f's_add_u32 {sST}, {sST}, 4096', f's_add_u32 {sSF}, {sSF}, 64']
    def sfinish(T, X):
        ops = [f'v_add_f32 {V(T+i)}, {V(T+i)}, {V(T+8+i)}' for i in range(8)] + [f'v_add_f32 {V(T+i)}, {V(T+i)}, {V(T+4+i)}' for i in range(4)]
        ops += [f'v_add_f32 {V(T)}, {V(T)}, {V(T+2)}', f'v_add_f32 {V(T+1)}, {V(T+1)}, {V(T+3)}',
                f'v_mul_f32 {V(T)}, {f32(-1.0/512)}, {V(T)}', f'v_mul_f32 {V(T+1)}, {f32(1.0/512)}, {V(T+1)}',
                f'v_fma_f32 {V(T+1)}, -{V(T)}, {V(T)}, {V(T+1)}', f'v_max_f32 {V(T+1)}, 0, {V(T+1)}',
                f'v_add_f32 {V(T+1)}, {f32(1e-5)}, {V(T+1)}', f'v_rsq_f32 {V(T+1)}, {V(T+1)}']
        ops += split_pack_ops(NMS + 2*X, T, T + 2)
        ops += [f'v_mul_f32 {V(SA + 2*X)}, {V(vNL)}, {V(T+1)}', f'v_mov_b32 {V(NMS + 2*X + 1)}, {V(NMS + 2*X)}', f'v_mov_b32 {V(SA + 2*X + 1)}, {V(SA + 2*X)}',
                f'v_permlane32_swap_b32 {V(NMS + 2*X)}, {V(NMS + 2*X + 1)}', f'v_permlane32_swap_b32 {V(SA + 2*X)}, {V(SA + 2*X + 1)}']
        return ops
    F.add(lambda: flag_issue(vF, vSF, sSF))
    F.adds(scomb_ops(E, 1, LY.ST1_OFF, stB))
    delayed = {}
    TB = 140
    for n in range(128):
        rb, ks = divmod(n, 32); a = ACC4[rb & 1]
        if n == 8: F.flush(); flag_check(vF, vSF, sSF, L + 1); F.adds(sload(ACC4[1])); F.add(lambda: flag_issue(vF, vFA, sPF))
        if n == 15: F.add(lambda: sflag(vON, vZ, stB, LY.F_S1, 1), 16)
        if n == 19: F.adds(sfinish(ACC4[1], 0))
        if n == 24: flag_check(vF, vFA, sPF, L + 1); F.q.insert(0, ((lambda: flag_issue(vF, vSF, sSF)), 4))
        if n == 29: F.flush(); F.adds(p5setup)
        if n == 34: flag_check(vF, vSF, sSF, L + 1); F.q[0:0] = [(o, 4) for o in sload(TB)]
        if n == 46: F.q[0:0] = [(o, 8 if 'rsq' in o else 4) for o in sfinish(TB, 1)]
        if ks == 0 and rb > 0: F.flush()
        if OPT.get('p4st') and L == 1 and n % 16 == 0: stamp(f'b{n}')
        if n % 2 == 0 and n + 1 in xtok: A.wait_lgkm(xtok[n + 1])
        A(f'{MFMA} {V(a,16)}, {W1REG(ks)}, {xr(n)}, {"0" if ks == 0 else V(a,16)}')
        used = 2
        if n + LA < 128: used += xread(n + LA)
        if ks == 29: A(f'v_mov_b32 {V(NMW)}, {V(NMS + rb)}'); used += 4
        if ks == 30:
            F.run(16); A(f'{MFMA} {V(a,16)}, {V(CSW,4)}, {V(NMW,4)}, {V(a,16)}'); used = 2
        if ks == 2 and rb > 0:
            ops, hs = epi_ops(rb - 1); F.adds(ops); F.add(hs, 20)
            F.add(lambda rb=rb: delayed.__setitem__('h', rb - 1), 0)
        if 'h' in delayed:
            delayed[n + 12] = delayed.pop('h')
        if n in delayed: F.q.insert(0, ((lambda r=delayed[n]: hflag(r)), 20))
        if n == OPT.get('p5i', 112): F.q.insert(0, ((lambda: flag_issue(vF, vFA, sP5F)), 4))
        if n == OPT.get('p5c', 122):
            flag_check(vF, vFA, sP5F, L + 1); hlimit[0] = 28
        F.run(OPT.get('p4b', 26) - used)
        if first and n % 4 == 3: BG.run(12)
        if hlimit[0]: hload()
    F.flush(); BG.flush()
    pend_flags = [delayed[x] for x in delayed if isinstance(x, int) and x >= 128] + ([delayed['h']] if 'h' in delayed else [])
    stamp('p4main')
    free += [20, 24, 28, 32]
    while hload(): pass
    A5 = [52, 84]
    ops, hs = epi_ops(3); F.adds(ops); F.add(hs, 20)
    marks = {}
    F.add(lambda: marks.__setitem__('e', 1), 0)
    vRW, vRR, vOUT = vP[0], vP[3], vFA
    tokA, tokB, stA, stB = [], [], [], []
    TR = Fill()
    if first:
        for i in range(28):
            for nh in range(2): TR.adds(wtrans_ops(W2REG(i, nh), 132, 133))
        for _ in range(4 * 6): TR._do(TR.q.pop(0)[0])
    hf_at = None; bchk = None
    for n in range(56):
        X, i = divmod(n, 28); a = A5[X]
        if OPT.get('p5st') and L == 1 and n % 7 == 0: stamp(f'c{n}')
        if n == 6:
            for r in pend_flags: hflag(r)
        if n == 20: A('s_barrier')
        if n == 28: F.flush()
        for nh in range(2):
            A(f'{MFMA} {V(a + 16*nh, 16)}, {W2REG(i, nh)}, {V(hslot[n],4)}, {"0" if i == 0 else V(a + 16*nh, 16)}')
            if first and X == 0:
                for _ in range(3):
                    if TR.q: TR._do(TR.q.pop(0)[0])
            F.run(OPT.get('p5b', 28) if X == 0 else 20)
        free.append(hslot[n])
        if 'e' in marks and hf_at is None:
            hf_at = n + 5
            free += [36, 40, 44, 48]
            F.adds(red_addr_ops(vRW, vRR, L_S))
            F.add(f's_add_u32 {sP5F}, {sP5F}, 512')
        if n == hf_at:
            F.flush(); hflag(3); bchk = n + OPT.get('b5i', 4)
        if bchk is not None and n == bchk: flag_issue(vF, vFA, sP5F)
        if bchk is not None and n == min(bchk + OPT.get('b5c', 5), 27):
            flag_check(vF, vFA, sP5F, L + 1); hlimit[0] = 56
        if n == 29:
            if last: F.adds(rowmajor_addr(vOUT, vF))
            F.adds(unpack_ops(116, 0)); F.adds(send_ops(A5[0], vRW, 24576)); F.adds(add8_ops(A5[0], A5[0], 116, False))
            F.add(lambda: (A.wait_lgkm(), A('s_barrier')), 8)
            F.adds(recv_ops(A5[0] + 8, vRR, 24576))
            for _ in range(3): F.add('s_nop 0', 20)
            F.adds(finish_ops(A5[0], A5[0] + 8, 0, False, sXO, tokA, last, vOUT))
            F.add(f's_add_u32 {sXO}, {sXO}, 65536')
            F.adds(unpack_ops(116, 1))
        if n == 46 and not last:
            F.flush(); A.wait_vm(tokA[-1]); flag_set(vON, vZ, sFL)
            A.wait_lgkm(); A('s_barrier')
            F.adds(scomb_ops(A5[0], 0, LY.ST2_OFF, stA))
        hload(); hload()
    assert bchk is not None and hlimit[0] == 56
    F.flush()
    a = A5[1]
    emit(send_ops(a, vRW, 0)); emit(add8_ops(a, a, 116, True))
    A.wait_lgkm(); A('s_barrier')
    emit(recv_ops(a + 8, vRR, 0))
    if not last: A(f'v_mov_b32 {V(vF)}, {L + 2}')
    emit(finish_ops(a, a + 8, 1, True, sXO, tokB, last, vOUT))
    if not last:
        sflag(vF, vZ, stA, LY.F_S2, 0)
        A.wait_lgkm(); A('s_barrier')
        emit(scomb_ops(A5[0], 1, LY.ST2_OFF, stB))
        A.wait_vm(tokB[-1]); flag_set(vON, vZ, sFL, imm=256)
        PENDING.append(lambda: sflag(156, 157, stB, LY.F_S2, 1))
        A(f'v_mov_b32 v156, {L + 2}'); A(f'v_mov_b32 v157, 0')
    stamp('p5end')
    return True
PENDING = []

def main():
    startup()
    for L in range(2):
        p1(L)
        if STOP <= 5 * L + 1: return
        r = p2(L)
        if STOP <= 5 * L + 2:
            A.wait_vm(); return
        if not ffn(L, r['tok'], r['flag']): return
        if STOP <= 5 * L + 5: return
main()
finish()

hdr = open('cdna_kernels/' + NAME + '.s.ref').read().split('\n')
hdr = [l for l in hdr if l.startswith(';') and '@launch' not in l]
src = '\n'.join(hdr) + f'\n; @launch grid=(256,1,1) block=(256,1,1) lds={LDS_BYTES}\n'
src += f'''.amdgcn_target "amdgcn-amd-amdhsa--gfx950"
.text
.globl {NAME}_kernel
.p2align 8
.type {NAME}_kernel,@function
{NAME}_kernel:
'''
body = A.finalize()
src += body.replace('CODE_SPAN', '(L_codeend-L_pcref)')
src += f'''.section .rodata,"a"
.p2align 6
.amdhsa_kernel {NAME}_kernel
  .amdhsa_next_free_vgpr 512
  .amdhsa_next_free_sgpr 102
  .amdhsa_accum_offset 256
  .amdhsa_group_segment_fixed_size 0
  .amdhsa_kernarg_size 72
  .amdhsa_user_sgpr_count 2
  .amdhsa_user_sgpr_kernarg_segment_ptr 1
  .amdhsa_system_sgpr_workgroup_id_x 1
.end_amdhsa_kernel
'''
out = [a for a in sys.argv[1:] if a.endswith('.s')]
open(out[0] if out else 'k.s', 'w').write(src)
if STAMPS: open((out[0] if out else 'k.s') + '.names', 'w').write(' '.join(stamp_names))
```

```python
import sys, struct
from asmlib import Asm, V, Areg, S
import layout as LY

NAME = "interleave_layers__sliding_block__dense_activation_silu__prompt"
STOP = 99; STAMPS = False; FORCE_SLOW = False; CYC = False; OPT = {}
for arg in sys.argv[1:]:
    if arg.startswith('stop='): STOP = int(arg[5:])
    elif '=' in arg: OPT[arg.split('=')[0]] = int(arg.split('=')[1])
    if arg == 'stamps': STAMPS = True
    if arg == 'slow': FORCE_SLOW = True
    if arg == 'cyc': STAMPS = True; CYC = True

A = Asm()
MFMA = 'v_mfma_f32_32x32x16_bf16'
LOG2E = 1.4426950408889634
def f32(x): return '0x%08x' % struct.unpack('<I', struct.pack('<f', x))[0]

SWS, SX, SWQKV, SWO, SW1, SW2, SOUT, SDBG = 's[4:7]', 's[8:11]', 's[12:15]', 's[16:19]', 's[20:23]', 's[24:27]', 's[28:31]', 's[32:35]'
sC, sJ, sW, sFAST, sRH, sCB = 's36', 's37', 's38', 's39', 's40', 's41'
sT = ['s42', 's43', 's44', 's45', 's46', 's47', 's48', 's49']
sFB = 's50'
sXCC = 's51'
sRBG = 's52'
sSPIN = 's53'
sROT = 's1'
sU = ['s54', 's55', 's56', 's57', 's58', 's59', 's92', 's93', 's94', 's95', 's98', 's99', 's100', 's101', 's0']
SMASK0 = 60
vLANE, vL16, vTR, vSTAMP = 0, 1, 2, 3
vRES = 4
vP = list(range(12, 20))
def W1REG(ks): return Areg(224 + 4 * ks, 4) if ks < 8 else V(160 + 4 * (ks - 8), 4)
def W2REG(i, nh): return Areg((i * 2 + nh) * 4, 4)
WOB = 96
def WOREG(i, nh): return V(WOB + (i * 2 + nh) * 4, 4)
L_WQ = 0
L_S = 98304
KVSLOT = 4112
L_KV = L_S
L_MISC = L_S + 49408
L_CSQ = L_MISC
L_CS1 = L_MISC + 1024
L_STAT = L_MISC + 2048
L_BNC = L_MISC + 3072
L_PMASK = L_MISC + 7168
L_SP = L_MISC + 9216
LDS_BYTES = 163840

TRANS = ('v_exp', 'v_rcp', 'v_rsq')
class Fill:
    def __init__(self, vm=0): self.q = []; self.vm = vm
    def add(self, op, cost=None):
        if cost is None:
            cost = 4
            if isinstance(op, str):
                if op.startswith(TRANS): cost = 8
                if op.startswith('ds_write_b128'): cost = 8
                if op.startswith('buffer_') and self.vm: cost = self.vm
            elif self.vm: cost = self.vm
        self.q.append((op, cost))
    def adds(self, ops):
        for o in ops: self.add(o)
    def _do(self, op):
        if isinstance(op, str): A(op)
        else: op()
    def run(self, budget):
        while self.q and self.q[0][1] <= budget:
            op, c = self.q.pop(0); self._do(op); budget -= c
        return budget
    def flush(self):
        while self.q: self._do(self.q.pop(0)[0])

nstamp = [0]; stamp_names = []
def stamp(name=''):
    if not STAMPS: return
    k = nstamp[0]; nstamp[0] += 1; stamp_names.append(name)
    assert k < 64
    A('s_memtime s[96:97]' if CYC else 's_memrealtime s[96:97]')
    A('s_waitcnt lgkmcnt(0)')
    A(f'v_writelane_b32 {V(vSTAMP)}, s96, {k}')

OOL = []
def flag_issue(vtmp, vaddr, soff, srd=SWS):
    return A(f'buffer_load_dword {V(vtmp)}, {V(vaddr)}, {srd}, {soff} offen sc1')
def flag_check(vtmp, vaddr, soff, expect, srd=SWS):
    sp = A.newlabel('Lspin'); bk = A.newlabel('Lback')
    A(f'v_cmp_gt_u32 vcc, {expect}, {V(vtmp)}')
    A(f's_cbranch_vccnz {sp}')
    A.label(bk)
    OOL.append(f'''{sp}:
    s_mov_b32 {sSPIN}, 0
{sp}_l:
    buffer_load_dword {V(vtmp)}, {V(vaddr)}, {srd}, {soff} offen sc1
    s_add_u32 {sSPIN}, {sSPIN}, 1
    s_cmp_gt_u32 {sSPIN}, 0x40000
    s_cbranch_scc1 L_exit
    s_waitcnt vmcnt(0)
    v_cmp_gt_u32 vcc, {expect}, {V(vtmp)}
    s_cbranch_vccnz {sp}_l
    s_branch {bk}''')
def poll(vtmp, vaddr, soff, expect, srd=SWS):
    flag_issue(vtmp, vaddr, soff, srd); flag_check(vtmp, vaddr, soff, expect, srd)

def store_dual(lines):
    A.dual(sFAST, lines, [l + ' sc1' for l in lines])
    return A.items[-1][2][-1]
def flag_set(vval, vzero, soff, fastok=True, imm=0, wave=None):
    if wave is None: A('s_mov_b64 exec, 1')
    else: A(f's_cmp_eq_u32 {sW}, {wave}'); A('s_cselect_b64 exec, 1, 0')
    ln = f'buffer_store_dword {V(vval)}, {V(vzero)}, {SWS}, {soff} offen offset:{imm}'
    if fastok: store_dual([ln])
    else: A(ln + ' sc1')
    A('s_mov_b64 exec, -1')

def finish():
    A.label('L_end')
    if STAMPS:
        A('s_waitcnt vmcnt(0) lgkmcnt(0)')
        stamp('end')
        A(f's_lshl_b32 {sT[0]}, s2, 2'); A(f's_add_u32 {sT[0]}, {sT[0]}, {sW}'); A(f's_lshl_b32 {sT[0]}, {sT[0]}, 8')
        A(f's_add_u32 {sT[0]}, {sT[0]}, {LY.STAMP_OFF}')
        A(f'v_lshlrev_b32 v20, 2, {V(vLANE)}')
        A(f'buffer_store_dword {V(vSTAMP)}, v20, {SWS}, {sT[0]} offen')
        if 'dbg' in OPT:
            A(f's_cmp_lg_u32 s2, {OPT["dbg"]}'); A('s_cbranch_scc1 L_exit'); A(f's_cmp_lg_u32 {sW}, 2'); A('s_cbranch_scc1 L_exit')
            A(f'v_readlane_b32 s42, {V(vSTAMP)}, 0'); A(f'v_subrev_u32 {V(vSTAMP)}, s42, {V(vSTAMP)}')
            A(f'v_subrev_u32 v20, {4*OPT.get("dbg0", 1)}, v20')
            A('s_mov_b32 s34, 64')
            A(f'buffer_store_dword {V(vSTAMP)}, v20, {SDBG}, 0 offen')
    A.label('L_exit')
    A('s_endpgm')
    for b in OOL: A.raw(b)
    A.place_ool()
    A.label('L_codeend')
    A.raw('    s_endpgm')

def startup():
    A('s_cmp_ge_u32 s2, 256'); A('s_cbranch_scc1 L_exit')
    for sreg, off in ((8, 0), (12, 8), (4, 64), (16, 16), (20, 32), (24, 40), (28, 48), (32, 56)):
        A(f's_load_dwordx2 s[{sreg}:{sreg+1}], s[0:1], {off}')
    if STAMPS: A(f'v_mov_b32 v3, 0')
    stamp('start')
    t0, t1 = vP[0], vP[1]
    A(f'v_lshrrev_b32 {V(t0)}, 6, v0')
    A(f'v_lshlrev_b32 {V(t1)}, 4, v0')
    A(f'v_readfirstlane_b32 {sW}, {V(t0)}')
    A(f'v_and_b32 {V(vLANE)}, 63, v0')
    A(f'v_lshlrev_b32 {V(vL16)}, 4, {V(vLANE)}')
    A(f's_and_b32 {sT[0]}, s2, 7'); A(f's_lshl_b32 {sT[0]}, {sT[0]}, 1')
    A(f's_bfe_u32 {sT[1]}, s2, 0x10003')
    A(f's_or_b32 {sC}, {sT[0]}, {sT[1]}')
    A(f's_lshr_b32 {sJ}, s2, 4')
    A(f's_and_b32 {sRH}, {sJ}, 1'); A(f's_lshr_b32 {sCB}, {sJ}, 1')
    A(f's_lshl2_add_u32 {sRBG}, {sC}, {sW}')
    A(f's_lshl_b32 {sFB}, {sC}, 13')
    A(f's_getreg_b32 {sXCC}, hwreg(HW_REG_XCC_ID)'); A(f's_and_b32 {sXCC}, {sXCC}, 15')
    A(f's_mov_b32 {sFAST}, 0')
    A(f's_lshl_b32 s3, {sRH}, 3'); A(f's_add_u32 s3, s3, {sCB}'); A(f's_lshl2_add_u32 s3, s3, {sFB}')
    A(f's_and_b32 {sT[0]}, {sJ}, 1'); A(f's_lshl_b32 {sT[0]}, {sT[0]}, 1'); A(f's_and_b32 {sT[1]}, {sC}, 1'); A(f's_lshl2_add_u32 {sT[0]}, {sT[1]}, {sT[0]}')
    for sreg, nbytes in ((8, 2048*512*2), (12, 512*1536*2), (4, 0x10000000), (16, 512*512*2), (20, 512*1792*2), (24, 1792*512*2), (28, 2048*512*2), (32, 256)):
        A(f's_mov_b32 s{sreg+2}, {nbytes}'); A(f's_mov_b32 s{sreg+3}, 0x20000')
    A('s_waitcnt lgkmcnt(0)')
    A(f's_and_b32 {sROT}, {sT[0]}, {OPT.get("rot", 2)}')
    if not OPT.get('nocode'):
        A('s_getpc_b64 s[96:97]')
        A(f's_lshr_b32 {sT[7]}, s2, 3'); A(f's_lshl2_add_u32 {sT[7]}, {sT[7]}, {sW}'); A(f's_lshl_b32 {sT[7]}, {sT[7]}, 9')
        A(f'v_and_b32 {V(t0)}, 3, {V(vLANE)}'); A(f'v_lshl_add_u32 {V(t0)}, {V(t0)}, 7, {sT[7]}'); A(f'v_min_u32 {V(t0)}, CODE_SPAN, {V(t0)}')
        A.label('L_pcref')
        A(f'global_load_dword a36, {V(t0)}, s[96:97]')
    nl = A.newlabel('Lnolead')
    A(f's_cmp_lg_u32 {sJ}, 15'); A(f's_cbranch_scc1 {nl}')
    A.optional(True)
    for r in range(4): A(f'v_mov_b32 {V(20 + r)}, 0')
    A(f'buffer_store_dwordx4 v[20:23], {V(t1)}, {SWS}, {sFB} offen sc1')
    A(f's_add_u32 {sT[0]}, {sFB}, 4096')
    A(f'buffer_store_dwordx4 v[20:23], {V(t1)}, {SWS}, {sT[0]} offen sc1')
    A(f's_lshl_b32 {sT[0]}, {sC}, 2'); A(f'v_mov_b32 {V(24)}, 1')
    A('s_waitcnt vmcnt(0)'); A('s_barrier')
    A('s_mov_b64 exec, 1')
    A(f'buffer_store_dword {V(24)}, {V(20)}, {SDBG}, {sT[0]} offen offset:64 sc1')
    A('s_mov_b64 exec, -1')
    A.optional(False)
    A.label(nl)

def tr_addr():
    t0 = vP[0]
    A(f'v_lshrrev_b32 {V(t0)}, 5, {V(vLANE)}'); A(f'v_lshlrev_b32 {V(vTR)}, 9, {V(t0)}')
    A(f'v_bfe_u32 {V(t0)}, {V(vLANE)}, 2, 2'); A(f'v_lshl_add_u32 {V(vTR)}, {V(t0)}, 6, {V(vTR)}')
    A(f'v_bfe_u32 {V(t0)}, {V(vLANE)}, 4, 1'); A(f'v_lshl_add_u32 {V(vTR)}, {V(t0)}, 5, {V(vTR)}')
    A(f'v_and_b32 {V(t0)}, 1, {V(vLANE)}'); A(f'v_lshl_add_u32 {V(vTR)}, {V(t0)}, 4, {V(vTR)}')
    A(f'v_bfe_u32 {V(t0)}, {V(vLANE)}, 1, 1'); A(f'v_lshl_add_u32 {V(vTR)}, {V(t0)}, 3, {V(vTR)}')

def make_masks(B):
    t0, t1, t2 = vP[0], vP[1], vP[2]
    A(f'v_and_b32 {V(t0)}, 31, {V(vLANE)}'); A(f'v_lshrrev_b32 {V(t1)}, 5, {V(vLANE)}'); A(f'v_lshlrev_b32 {V(t1)}, 2, {V(t1)}')
    A(f'v_sub_u32 {V(t0)}, {V(t0)}, {V(t1)}')
    for r in range(16):
        A(f'v_cmp_le_i32 s[{SMASK0+2*r}:{SMASK0+2*r+1}], {(r & 3) + 8 * (r >> 2)}, {V(t0)}')
    A(f'v_mov_b32 {V(t0)}, 0xffff'); A(f'v_mov_b32 {V(t1)}, 0xffff0000')
    for t in range(8):
        A(f'v_cndmask_b32 {V(B+t)}, 0, {V(t0)}, s[{SMASK0+4*t}:{SMASK0+4*t+1}]')
        A(f'v_cndmask_b32 {V(t2)}, 0, {V(t1)}, s[{SMASK0+4*t+2}:{SMASK0+4*t+3}]')
        A(f'v_or_b32 {V(B+t)}, {V(B+t)}, {V(t2)}')
    A(f'v_add_u32 {V(t0)}, {L_PMASK}, {V(vL16)}')
    A(f'ds_write_b128 {V(t0)}, {V(B,4)}'); A(f'ds_write_b128 {V(t0)}, {V(B+4,4)} offset:1024')

def rowmajor_addr(v, vt):
    return [f'v_and_b32 {V(v)}, 31, {V(vLANE)}', f'v_lshlrev_b32 {V(v)}, 10, {V(v)}',
            f'v_lshrrev_b32 {V(vt)}, 5, {V(vLANE)}', f'v_lshl_add_u32 {V(v)}, {V(vt)}, 4, {V(v)}']
def own_tile_rowmajor(s):
    return [f's_lshl2_add_u32 {s}, {sC}, {sRH}', f's_lshl_b32 {s}, {s}, 15',
            f's_lshl2_add_u32 {sT[7]}, {sCB}, {sW}', f's_lshl_b32 {sT[7]}, {sT[7]}, 5', f's_add_u32 {s}, {s}, {sT[7]}']

def stats_finish_ops(s1, s2, ta, tb, nm, rs):
    return [f'v_mov_b32 {V(ta)}, {V(s1)}', f'v_mov_b32 {V(tb)}, {V(s2)}',
            f'v_permlane32_swap_b32 {V(ta)}, {V(s1)}', f'v_permlane32_swap_b32 {V(tb)}, {V(s2)}',
            f'v_add_f32 {V(s1)}, {V(s1)}, {V(ta)}', f'v_add_f32 {V(s2)}, {V(s2)}, {V(tb)}',
            f'v_mul_f32 {V(nm)}, {f32(-1.0/512)}, {V(s1)}', f'v_mul_f32 {V(ta)}, {f32(1.0/512)}, {V(s2)}',
            f'v_fma_f32 {V(ta)}, -{V(nm)}, {V(nm)}, {V(ta)}', f'v_max_f32 {V(ta)}, 0, {V(ta)}',
            f'v_add_f32 {V(ta)}, {f32(1e-5)}, {V(ta)}', f'v_rsq_f32 {V(rs)}, {V(ta)}']
def stat_addr_ops(v, vt):
    return [f'v_lshrrev_b32 {V(v)}, 5, {V(vLANE)}', f'v_lshlrev_b32 {V(v)}, 10, {V(v)}',
            f'v_and_b32 {V(vt)}, 31, {V(vLANE)}', f'v_lshl_add_u32 {V(v)}, {V(vt)}, 4, {V(v)}']
def stat_load_ops(b0, b1, vaddr, soff):
    return [f'buffer_load_dwordx4 {V(b, 4)}, {V(vaddr)}, {SWS}, {soff} offen offset:{512*i} sc1' for i, b in enumerate((b0, b1))]
def stat_reduce_ops(b0, b1, s1, s2):
    return [f'v_add_f32 {V(b0+i)}, {V(b0+i)}, {V(b1+i)}' for i in range(4)] + \
           [f'v_add_f32 {V(s1)}, {V(b0)}, {V(b0+2)}', f'v_add_f32 {V(s2)}, {V(b0+1)}, {V(b0+3)}']
def split_pack_ops(dst, x, t):
    return [f'v_cvt_pk_bf16_f32 {V(t)}, {V(x)}, {V(x)}', f'v_and_b32 {V(t)}, 0xffff0000, {V(t)}',
            f'v_sub_f32 {V(t)}, {V(x)}, {V(t)}', f'v_cvt_pk_bf16_f32 {V(dst)}, {V(x)}, {V(t)}']
def cs_pack_ops(dst, x, t):
    return [f'v_cvt_pk_bf16_f32 {V(dst)}, {V(x)}, {V(x)}', f'v_and_b32 {V(t)}, 0xffff0000, {V(dst)}',
            f'v_sub_f32 {V(t)}, {V(x)}, {V(t)}', f'v_cvt_pk_bf16_f32 {V(t)}, {V(t)}, {V(t)}',
            f'v_cndmask_b32 {V(dst)}, {V(t)}, {V(dst)}, vcc']
def spart_ops(y, p, X, pk):
    if pk:
        ops = [f'v_pk_mul_f32 {V(p+2,2)}, {V(y,2)}, {V(y,2)}', f'v_pk_add_f32 {V(p,2)}, {V(y,2)}, {V(y+2,2)}']
        ops += [f'v_pk_fma_f32 {V(p+2,2)}, {V(y+r,2)}, {V(y+r,2)}, {V(p+2,2)}' for r in (2, 4, 6)]
        ops += [f'v_pk_add_f32 {V(p,2)}, {V(p,2)}, {V(y+r,2)}' for r in (4, 6)]
        ops += [f'v_add_f32 {V(p)}, {V(p)}, {V(p+1)}', f'v_add_f32 {V(p+1)}, {V(p+2)}, {V(p+3)}']
    else:
        ops = [f'v_mul_f32 {V(p+1)}, {V(y)}, {V(y)}', f'v_add_f32 {V(p)}, {V(y)}, {V(y+1)}', f'v_fmac_f32 {V(p+1)}, {V(y+1)}, {V(y+1)}']
        for r in range(2, 8): ops += [f'v_add_f32 {V(p)}, {V(p)}, {V(y+r)}', f'v_fmac_f32 {V(p+1)}, {V(y+r)}, {V(y+r)}']
    ops += [f's_lshl_b32 {sT[7]}, {sW}, 9', f's_add_u32 {sT[7]}, {sT[7]}, {L_SP + 2048*X}',
            f'v_lshl_add_u32 {V(p+2)}, {V(vLANE)}, 3, {sT[7]}', f'ds_write_b64 {V(p+2)}, {V(p,2)}']
    return ops
def scomb_ops(t, X, stoff, toks):
    ops = [f'v_lshlrev_b32 {V(t+8)}, 3, {V(vLANE)}', f'v_add_u32 {V(t+8)}, {L_SP + 2048*X}, {V(t+8)}',
           f'ds_read2st64_b64 {V(t,4)}, {V(t+8)} offset0:0 offset1:1', f'ds_read2st64_b64 {V(t+4,4)}, {V(t+8)} offset0:2 offset1:3',
           f's_lshl2_add_u32 {sT[6]}, {sC}, {sRH}', f's_lshl_b32 {sT[6]}, {sT[6]}, 11', f's_lshr_b32 {sT[7]}, {sCB}, 1', f's_lshl_b32 {sT[7]}, {sT[7]}, 9',
           f's_add_u32 {sT[6]}, {sT[6]}, {sT[7]}', f's_and_b32 {sT[7]}, {sCB}, 1', f's_lshl_b32 {sT[7]}, {sT[7]}, 3', f's_add_u32 {sT[6]}, {sT[6]}, {sT[7]}',
           f's_add_u32 {sT[6]}, {sT[6]}, {stoff + 4096*X}',
           f'v_and_b32 {V(t+9)}, 31, {V(vLANE)}', f'v_lshlrev_b32 {V(t+9)}, 4, {V(t+9)}']
    ops += [f'v_add_f32 {V(t+i)}, {V(t+i)}, {V(t+4+i)}' for i in range(4)]
    ops += [f'v_add_f32 {V(t)}, {V(t)}, {V(t+2)}', f'v_add_f32 {V(t+1)}, {V(t+1)}, {V(t+3)}',
            f'v_mov_b32 {V(t+2)}, {V(t)}', f'v_mov_b32 {V(t+3)}, {V(t+1)}',
            f'v_permlane32_swap_b32 {V(t+2)}, {V(t)}', f'v_permlane32_swap_b32 {V(t+3)}, {V(t+1)}',
            f'v_add_f32 {V(t)}, {V(t)}, {V(t+2)}', f'v_add_f32 {V(t+1)}, {V(t+1)}, {V(t+3)}']
    def st():
        A(f's_cmp_eq_u32 {sW}, {X}'); A('s_cselect_b64 exec, -1, 0')
        toks.append(store_dual([f'buffer_store_dwordx2 {V(t,2)}, {V(t+9)}, {SWS}, {sT[6]} offen']))
        A('s_mov_b64 exec, -1')
    ops.append(st)
    return ops
sSFL = 's3'
def sflag(vval, vzero, toks, foff, X):
    A.wait_vm(toks[-1]); flag_set(vval, vzero, sSFL, imm=foff + 64*X, wave=X)

def raw_addr_ops(v, vt, rowbytes):
    return [f'v_lshrrev_b32 {V(v)}, 2, {V(vLANE)}', f'v_mul_u32_u24 {V(v)}, {rowbytes}, {V(v)}',
            f'v_and_b32 {V(vt)}, 3, {V(vLANE)}', f'v_lshl_add_u32 {V(v)}, {V(vt)}, 4, {V(v)}']
def raw64_addr_ops(v0):
    return [f'v_lshrrev_b32 {V(v0)}, 2, {V(vLANE)}', f'v_lshlrev_b32 {V(v0)}, 10, {V(v0)}',
            f'v_and_b32 {V(v0+1)}, 3, {V(vLANE)}', f'v_lshl_add_u32 {V(v0)}, {V(v0+1)}, 4, {V(v0)}',
            f's_lshl_b32 {sT[7]}, {sW}, 5', f'v_xor_b32 {V(v0)}, {sT[7]}, {V(v0)}', f'v_xor_b32 {V(v0+1)}, 64, {V(v0)}']
def bounce_addr_ops(vw, vr):
    return [f's_lshl_b32 {sT[7]}, {sW}, 10', f's_add_u32 {sT[7]}, {sT[7]}, {L_BNC}',
            f'v_add_u32 {V(vw)}, {sT[7]}, {V(vL16)}', f'v_add_u32 {V(vr)}, {sT[7]}, {V(vTR)}']
def sub(reg4, lo):
    k = reg4[0]; a = int(reg4[2:reg4.index(':')])
    return f'{k}[{a+lo}:{a+lo+1}]'
_bslot = [0]
def wtrans_ops(reg4, vw, vr):
    o = 0
    return [f'ds_write_b128 {V(vw)}, {reg4} offset:{o}',
            f'ds_read_b64_tr_b16 {sub(reg4,0)}, {V(vr)} offset:{o}',
            f'ds_read_b64_tr_b16 {sub(reg4,2)}, {V(vr)} offset:{o+256}']
def emit(ops):
    for o in ops:
        if isinstance(o, str): A(o)
        else: o()

sW1O, sW2O, sWOO = sU[10], sU[11], sU[12]
def wt_setup_ops():
    return [f's_lshl2_add_u32 {sW1O}, {sJ}, {sW}', f's_lshl_b32 {sW1O}, {sW1O}, 15', f's_add_u32 {sW1O}, {sW1O}, {LY.WT_OFF}',
            f's_cmp_ge_u32 {sJ}, 14', f's_cselect_b32 {sW1O}, 0x70000000, {sW1O}',
            f's_lshl2_add_u32 {sT[7]}, {sCB}, {sW}', f's_mul_i32 {sW2O}, {sT[7]}, {56*1024}', f's_add_u32 {sW2O}, {sW2O}, {LY.WT_OFF + 1792*1024}',
            f's_lshl_b32 {sWOO}, {sT[7]}, 14', f's_add_u32 {sWOO}, {sWOO}, {LY.WT_OFF + 3584*1024}']
WSC = ' sc1'
def w1_load_ops(ks):
    ops = [f'buffer_load_dwordx4 {W1REG(ks)}, {V(vL16)}, {SWS}, {sW1O} offen offset:{(ks & 3)*1024}{WSC}']
    if ks & 3 == 3: ops.append(f's_add_u32 {sW1O}, {sW1O}, 4096')
    return ops
def w2_load_ops(t):
    ops = [f'buffer_load_dwordx4 {W2REG(t >> 1, t & 1)}, {V(vL16)}, {SWS}, {sW2O} offen offset:{(t & 3)*1024}{WSC}']
    if t & 3 == 3: ops.append(f's_add_u32 {sW2O}, {sW2O}, 4096')
    return ops
def wo_load_ops(g):
    return [f's_add_u32 {sT[7]}, {sWOO}, {4096*g}'] + \
           [f'buffer_load_dwordx4 {WOREG((4*g + q) >> 1, q & 1)}, {V(vL16)}, {SWS}, {sT[7]} offen offset:{q*1024}{WSC}' for q in range(4)]

SCV = 's[92:95]'
def conv_issue(R, vt):
    g, u, cw, i0, wq, so, st2 = sT[0], sT[1], sT[2], sT[3], sT[4], sT[5], sT[6]
    A(f's_lshl_b32 {g}, {sC}, 4'); A(f's_add_u32 {g}, {g}, {sJ}'); A(f's_lshl2_add_u32 {g}, {g}, {sW}')
    A(f's_sub_u32 {u}, {g}, 448'); A(f's_mul_i32 {cw}, {u}, 4682'); A(f's_lshr_b32 {cw}, {cw}, 16')
    A(f's_mul_i32 {i0}, {cw}, 14'); A(f's_sub_u32 {i0}, {u}, {i0}')
    A(f's_and_b32 {wq}, {cw}, 3'); A(f's_mul_i32 {so}, {wq}, 14'); A(f's_add_u32 {so}, {so}, {i0}')
    A(f's_mov_b64 s[92:93], s[24:25]'); A(f's_mov_b32 s94, s26'); A(f's_mov_b32 s95, 0x20000')
    l1 = A.newlabel('Lcv'); l2 = A.newlabel('Lcv')
    A(f's_cmp_lt_u32 {g}, 896'); A(f's_cbranch_scc1 {l1}')
    A.optional(True)
    A(f's_sub_u32 {u}, {g}, 896'); A(f's_lshr_b32 {cw}, {u}, 2'); A(f's_and_b32 {wq}, {cw}, 3'); A(f's_and_b32 {so}, {u}, 15')
    A(f's_mov_b64 s[92:93], s[16:17]'); A(f's_mov_b32 s94, s18')
    A.optional(False)
    A.label(l1)
    A(f's_lshl_b32 {so}, {so}, 15'); A(f's_lshr_b32 {cw}, {cw}, 2'); A(f's_lshl_b32 {cw}, {cw}, 7'); A(f's_add_u32 {so}, {so}, {cw}')
    A(f's_mov_b32 {st2}, 16384'); A(f's_lshl_b32 {wq}, {wq}, 5')
    A(f'v_lshrrev_b32 {V(vt)}, 2, {V(vLANE)}'); A(f'v_and_b32 {V(vt+2)}, 3, {V(vLANE)}'); A(f'v_lshlrev_b32 {V(vt+2)}, 4, {V(vt+2)}')
    A(f'v_lshl_add_u32 {V(vt+3)}, {V(vt)}, 10, {V(vt+2)}'); A(f'v_xor_b32 {V(vt+3)}, {wq}, {V(vt+3)}'); A(f'v_xor_b32 {V(vt+1)}, 64, {V(vt+3)}')
    A(f's_cmp_ge_u32 {g}, 448'); A(f's_cbranch_scc1 {l2}')
    A.optional(True)
    A(f's_and_b32 {so}, {g}, 7'); A(f's_mul_i32 {so}, {so}, {64*3584}'); A(f's_lshr_b32 {u}, {g}, 3'); A(f's_lshl_b32 {u}, {u}, 6'); A(f's_add_u32 {so}, {so}, {u}')
    A(f's_mov_b32 {st2}, {32*3584}')
    A(f's_mov_b64 s[92:93], s[20:21]'); A(f's_mov_b32 s94, s22')
    A(f'v_mul_u32_u24 {V(vt+3)}, 3584, {V(vt)}'); A(f'v_add_u32 {V(vt+3)}, {V(vt+3)}, {V(vt+2)}'); A(f'v_add_u32 {V(vt+1)}, {16*3584}, {V(vt+3)}')
    A.optional(False)
    A.label(l2)
    A(f's_add_u32 {st2}, {st2}, {so}')
    for q in range(4):
        A(f'buffer_load_dwordx4 {Areg(R + 4*q, 4)}, {V(vt+1 if q & 1 else vt+3)}, {SCV}, {st2 if q >= 2 else so} offen')
def conv_finish_ops(R, vw, vr, toks):
    ops = bounce_addr_ops(vw, vr)
    for q in range(4): ops += wtrans_ops(Areg(R + 4*q, 4), vw, vr)
    ops += [f's_lshl_b32 {sT[7]}, {sC}, 4', f's_add_u32 {sT[7]}, {sT[7]}, {sJ}', f's_lshl2_add_u32 {sT[7]}, {sT[7]}, {sW}', f's_lshl_b32 {sT[7]}, {sT[7]}, 12', f's_add_u32 {sT[7]}, {sT[7]}, {LY.WT_OFF}']
    for q in range(4):
        ops.append(lambda q=q: toks.append(A(f'buffer_store_dwordx4 {Areg(R + 4*q, 4)}, {V(vL16)}, {SWS}, {sT[7]} offen offset:{1024*q} sc1')))
    return ops
def wflag_addr_ops(v, t, t2):
    return [f's_lshl2_add_u32 {sT[6]}, {sJ}, {sW}', f's_min_u32 {sT[6]}, {sT[6]}, 55', f's_lshl_b32 {sT[6]}, {sT[6]}, 3',
            f'v_add_u32 {V(v)}, {sT[6]}, {V(vLANE)}',
            f's_lshl2_add_u32 {sT[7]}, {sCB}, {sW}', f's_mul_i32 {sT[6]}, {sT[7]}, 14', f's_add_u32 {sT[6]}, {sT[6]}, 440',
            f'v_add_u32 {V(t)}, {sT[6]}, {V(vLANE)}', f'v_cmp_gt_u32 vcc, 8, {V(vLANE)}',
            f's_lshl_b32 {sT[6]}, {sT[7]}, 2', f's_add_u32 {sT[6]}, {sT[6]}, 874',
            f'v_cndmask_b32 {V(v)}, {V(t)}, {V(v)}, vcc',
            f'v_min_u32 {V(t)}, 25, {V(vLANE)}', f'v_add_u32 {V(t)}, {sT[6]}, {V(t)}', f'v_cmp_gt_u32 vcc, 22, {V(vLANE)}', 's_nop 0',
            f'v_cndmask_b32 {V(v)}, {V(t)}, {V(v)}, vcc',
            f'v_lshrrev_b32 {V(t)}, 6, {V(v)}', f'v_lshlrev_b32 {V(t)}, 13, {V(t)}', f'v_and_b32 {V(t2)}, 3, {V(v)}', f'v_lshl_add_u32 {V(t)}, {V(t2)}, 2, {V(t)}',
            f'v_bfe_u32 {V(v)}, {V(v)}, 2, 4', f'v_lshl_add_u32 {V(v)}, {V(v)}, 7, {V(t)}', f'v_add_u32 {V(v)}, {LY.F_KV + 16}, {V(v)}']

def pretouch_ops(T):
    ops = [f's_lshl_b32 {sT[2]}, {sRBG}, 15', f's_lshl_b32 {sT[3]}, {sJ}, 11', f's_add_u32 {sT[2]}, {sT[2]}, {sT[3]}', f's_add_u32 {sT[2]}, {sT[2]}, {LY.O_OFF}',
           f's_lshl2_add_u32 {sT[3]}, {sC}, {sRH}', f's_lshl_b32 {sT[3]}, {sT[3]}, 5', f's_lshl2_add_u32 {sT[4]}, {sCB}, {sW}', f's_add_u32 {sT[3]}, {sT[3]}, {sT[4]}',
           f's_lshl_b32 {sT[3]}, {sT[3]}, 10', f's_add_u32 {sT[3]}, {sT[3]}, {LY.X1_OFF}',
           f'v_and_b32 {V(T)}, 15, {V(vLANE)}', f'v_lshl_add_u32 {V(T)}, {V(T)}, 7, {sT[2]}',
           f'v_and_b32 {V(T+1)}, 7, {V(vLANE)}', f'v_lshl_add_u32 {V(T+1)}, {V(T+1)}, 7, {sT[3]}',
           f'v_bfe_u32 {V(T+2)}, {V(vLANE)}, 3, 1', f'v_lshl_add_u32 {V(T+1)}, {V(T+2)}, 16, {V(T+1)}',
           f'v_lshrrev_b32 {V(T+2)}, 5, {V(vLANE)}', f'v_lshl_add_u32 {V(T+1)}, {V(T+2)}, 21, {V(T+1)}',
           f'v_cmp_gt_u32 vcc, 16, {V(vLANE)}',
           f's_lshl_b32 {sT[2]}, {sW}, 11', f's_add_u32 {sT[2]}, {sT[2]}, {sFB}',
           f'v_cndmask_b32 {V(T)}, {V(T+1)}, {V(T)}, vcc',
           f's_lshl_b32 {sT[3]}, {sC}, 13', f's_and_b32 {sT[4]}, {sJ}, 3', f's_lshl_b32 {sT[4]}, {sT[4]}, 11', f's_add_u32 {sT[3]}, {sT[3]}, {sT[4]}', f's_add_u32 {sT[3]}, {sT[3]}, {LY.ST1_OFF}',
           f's_cmp_lt_u32 {sW}, 2', f's_cselect_b32 {sT[2]}, {sT[2]}, {sT[3]}',
           f'v_and_b32 {V(T+1)}, 15, {V(vLANE)}', f'v_lshl_add_u32 {V(T+1)}, {V(T+1)}, 7, {sT[2]}',
           f'v_cmp_gt_u32 vcc, 48, {V(vLANE)}', 's_nop 0',
           f'v_cndmask_b32 {V(T)}, {V(T+1)}, {V(T)}, vcc',
           f'buffer_load_dword a35, {V(T)}, {SWS}, 0 offen sc1']
    assert LY.X2_OFF - LY.X1_OFF == 1 << 21
    return ops

P2Q, P2SA, P2SB, P2P, P2K, P2V, P2O, P2SC = 20, 28, 44, 60, 68, 72, 80, 96
W2EARLY = OPT.get('w2e', 0); W1EARLY = OPT.get('w1e', 32); W1TAIL = OPT.get('w1t', 8)

def p1(L):
    first = (L == 0)
    XR = 20; aq, ak, av = 84, 100, 116; WB = 132; NMW = 156
    xop = lambda ks: V(XR + 4 * (ks % 16), 4)
    wreg = lambda ks, p: WB + ((ks & 1) * 3 + p) * 4
    vNM, vRS, vS1, vS2, vTRH, vA, vB, vC = vP
    F = Fill(OPT.get('p1vm', 12) if first else 0)
    stage_tok = {}
    sXB, sXK, sXS, sSTO, sSF = sU[0], sU[1], sU[2], sU[5], sU[6]
    CK, CV = wreg(0, 0), wreg(1, 0)
    if first:
        vXG, vWA, vBR0, vBR1, vTRC, TT = 224, 228, 229, 230, 231, 234
        ONES, CSA, CW, CVR = 0, 16, 8, 48
        sXL, sWB, sWS, sWL = sU[3], sU[4], sU[13], sU[14]
        if not OPT.get('nowarm'):
            A(f'v_min_u32 {V(20)}, 15, {V(vLANE)}'); A(f'v_lshlrev_b32 {V(20)}, 7, {V(20)}'); A(f'v_min_u32 {V(21)}, {11*128}, {V(20)}')
            A(f's_lshl2_add_u32 {sT[0]}, {sJ}, {sW}'); A(f's_lshl_b32 {sT[0]}, {sT[0]}, 11'); A(f's_lshl_b32 {sT[1]}, {sC}, 17'); A(f's_add_u32 {sT[0]}, {sT[0]}, {sT[1]}')
            A(f's_lshl2_add_u32 {sT[1]}, s2, {sW}'); A(f's_mul_i32 {sT[1]}, {sT[1]}, {12*128}')
            A(f'buffer_load_dword a32, {V(21)}, {SWQKV}, {sT[1]} offen')
            A(f'buffer_load_dword a33, {V(20)}, {SX}, {sT[0]} offen')
        resid_ops = rowmajor_addr(vA, vC) + own_tile_rowmajor(sT[6]) + \
            [f'buffer_load_dwordx4 {V(vRES, 4)}, {V(vA)}, {SX}, {sT[6]} offen', f's_add_u32 {sT[6]}, {sT[6]}, 65536',
             f'buffer_load_dwordx4 {V(vRES + 4, 4)}, {V(vA)}, {SX}, {sT[6]} offen']
        A(f'v_bfe_u32 {V(21)}, {V(vLANE)}, 2, 3')
        A(f'v_lshlrev_b32 {V(20)}, 10, {V(21)}')
        A(f'v_lshrrev_b32 {V(22)}, 5, {V(vLANE)}'); A(f'v_lshl_add_u32 {V(20)}, {V(22)}, 6, {V(20)}')
        A(f'v_and_b32 {V(22)}, 3, {V(vLANE)}'); A(f'v_lshrrev_b32 {V(23)}, 2, {V(21)}'); A(f'v_xor_b32 {V(22)}, {V(22)}, {V(23)}')
        A(f'v_lshl_add_u32 {V(vXG)}, {V(22)}, 4, {V(20)}')
        A(f'v_xor_b32 {V(22)}, 2, {V(22)}')
        A(f'v_lshl_add_u32 {V(vXG+1)}, {V(22)}, 4, {V(20)}')
        A(f'v_add_u32 {V(vXG+2)}, {2*7168}, {V(vXG)}'); A(f'v_add_u32 {V(vXG+3)}, {3*7168}, {V(vXG+1)}'); A(f'v_add_u32 {V(vXG+1)}, 7168, {V(vXG+1)}')
        A(f's_lshl_b32 {sXB}, {sRBG}, 15')
        A(f's_mul_i32 {sXL}, {sW}, 12288'); A(f's_add_u32 {sXL}, {sXL}, {L_S}')
        emit(raw_addr_ops(vWA, 20, 3072))
        A(f's_mul_i32 {sWB}, {sW}, {16*3072}'); A(f's_lshl_b32 {sT[5]}, {sJ}, 6'); A(f's_add_u32 {sWB}, {sWB}, {sT[5]}')
        A(f's_mul_i32 {sWL}, {sW}, 3072')
        def xdma_ops(s):
            ops = [f's_xor_b32 {sXK}, {sROT}, {s}', f's_add_u32 m0, {sXL}, {(s % 3) * 4096}', f's_lshl_b32 {sXS}, {sXK}, 7', f's_add_u32 {sXS}, {sXS}, {sXB}']
            for g in range(4):
                ops.append(lambda g=g: stage_tok.__setitem__(('x', s), A(f'buffer_load_dwordx4 {V(vXG + g)}, {SX}, {sXS} offen offset:{1024*g} lds')))
            return ops
        def wdma_ops(s):
            ops = [f's_mul_i32 {sWS}, {sXK}, {64*3072}', f's_add_u32 m0, {sWL}, {s*4*3072}', f's_add_u32 {sWS}, {sWS}, {sWB}']
            for p in (1, 2, 0):
                ops.append(lambda p=p: stage_tok.__setitem__(('w', s), A(f'buffer_load_dwordx4 {V(vWA)}, {SWQKV}, {sWS} offen offset:{1024*p} lds')))
            return ops
        emit(xdma_ops(0)); emit(wdma_ops(0))
        if OPT.get('cve', 1) == 1: conv_issue(CVR, TT + 12)
        if OPT.get('s0st'): stamp('iss')
        tr_addr()
        make_masks(32)
        A(f'v_bfe_u32 {V(21)}, {V(vLANE)}, 3, 2'); A(f'v_lshlrev_b32 {V(vBR0)}, 10, {V(21)}')
        A(f'v_and_b32 {V(21)}, 7, {V(vLANE)}'); A(f'v_lshl_add_u32 {V(vBR0)}, {V(21)}, 6, {V(vBR0)}')
        A(f'v_add_u32 {V(vBR0)}, {sXL}, {V(vBR0)}')
        A(f'v_bfe_u32 {V(21)}, {V(vLANE)}, 2, 2'); A(f'v_lshrrev_b32 {V(22)}, 5, {V(vLANE)}'); A(f'v_xor_b32 {V(21)}, {V(21)}, {V(22)}')
        A(f'v_xor_b32 {V(22)}, 2, {V(21)}')
        A(f'v_lshl_add_u32 {V(vBR1)}, {V(22)}, 4, {V(vBR0)}')
        A(f'v_lshl_add_u32 {V(vBR0)}, {V(21)}, 4, {V(vBR0)}')
        A(f'v_mov_b32 {V(21)}, 0x3f803f80')
        for r in range(4): A(f'v_accvgpr_write_b32 {Areg(ONES + r)}, {V(21)}')
        A(f's_min_u32 {sT[0]}, {sW}, 2'); A(f's_lshl_b32 {sT[0]}, {sT[0]}, 10')
        A(f'v_add_u32 {V(vTRC)}, {sT[0]}, {V(vTR)}'); A(f'v_add_u32 {V(vTRC+1)}, {16*3072}, {V(vTRC)}')
        A(f'v_and_b32 {V(vB)}, 15, {V(vLANE)}'); A(f'v_lshl_add_u32 {V(vB)}, {V(vB)}, 2, 64')
        A(f'v_mov_b32 {V(TT+20)}, 1'); A(f'v_mov_b32 {V(TT+21)}, 0')
        if OPT.get('s0st'): stamp('setup')
        emit(xdma_ops(1)); emit(wdma_ops(1))
        if OPT.get('cve', 1) == 2: conv_issue(CVR, TT + 12)
        if OPT.get('s0st'): stamp('iss1')
    else:
        A(f'v_and_b32 {V(vA)}, 31, {V(vLANE)}'); A(f'v_lshlrev_b32 {V(vA)}, 2, {V(vA)}')
        A(f's_lshl_b32 {sT[0]}, {sW}, 7'); A(f's_add_u32 {sT[0]}, {sT[0]}, {sFB}'); A(f's_add_u32 {sT[0]}, {sT[0]}, {LY.F_X2}')
        flag_issue(vB, vA, sT[0])
        A(f's_lshl_b32 {sXB}, {sRBG}, 15'); A(f's_add_u32 {sXB}, {sXB}, {LY.X2_OFF}'); A(f's_lshl_b32 {sXK}, {sROT}, 12')
    A(f'v_add_u32 {V(vTRH)}, {16*3072}, {V(vTR)}')
    def wread(ks, parts):
        base = vTR if ks < 16 else vTRH
        for p in parts:
            r = wreg(ks, p); o = L_WQ + (ks % 16) * 3072 + p * 1024
            A(f'ds_read_b64_tr_b16 {V(r, 2)}, {V(base)} offset:{o}')
            A(f'ds_read_b64_tr_b16 {V(r + 2, 2)}, {V(base)} offset:{o + 256}')
    def ready(ks):
        if first and ks % 4 == 0:
            st_ = ks // 4
            A.wait_vm(stage_tok[('x', st_)]); A.wait_vm(stage_tok[('w', st_)]); A('s_barrier')
            for q in range(4):
                A(f'ds_read_b128 {xop(ks + q)}, {V(vBR1 if q & 1 else vBR0)} offset:{(st_ % 3) * 4096 + 512*(q>>1)}')
    def xload_op(ks):
        ops = []
        if ks & 3 == 0: ops += [f's_xor_b32 {sXS}, {sXK}, {(ks >> 2) << 12}', f's_add_u32 {sXS}, {sXS}, {sXB}']
        return ops + [f'buffer_load_dwordx4 {xop(ks)}, {V(vL16)}, {SWS}, {sXS} offen offset:{(ks & 3) * 1024} sc1']
    SB0, SB1 = CK, CV
    def cread(ks):
        r = CW + 4 * (ks & 1); b_ = vTRC + (ks >= 16); o = L_WQ + (ks % 16) * 3072
        A(f'ds_read_b64_tr_b16 {Areg(r, 2)}, {V(b_)} offset:{o}'); A(f'ds_read_b64_tr_b16 {Areg(r + 2, 2)}, {V(b_)} offset:{o + 256}')
    xq = list(range(32))
    def xissue(limit):
        if xq and xq[0] < limit: emit(xload_op(xq.pop(0)))
    sflag_ops = [f'v_and_b32 {V(vA)}, 7, {V(vLANE)}', f'v_lshlrev_b32 {V(vA)}, 2, {V(vA)}',
                 f's_lshl_b32 {sSF}, {sW}, 5', f's_add_u32 {sSF}, {sSF}, {sFB}', f's_add_u32 {sSF}, {sSF}, {LY.F_S2}',
                 lambda: flag_issue(vB, vA, sSF)] + stat_addr_ops(vC, vS1) + \
                [f's_lshl_b32 {sSTO}, {sRBG}, 11', f's_add_u32 {sSTO}, {sSTO}, {LY.ST2_OFF}']
    sload_ops = [lambda: flag_check(vB, vA, sSF, L + 1)] + stat_load_ops(SB0, SB1, vC, sSTO)
    nm_ops = stat_reduce_ops(SB0, SB1, vS1, vS2) + stats_finish_ops(vS1, vS2, vA, vB, vNM, vRS) + split_pack_ops(NMW, vNM, vA) + \
             [f'v_mov_b32 {V(NMW+1)}, 0', f'v_mov_b32 {V(NMW+2)}, 0', f'v_mov_b32 {V(NMW+3)}, 0',
              f's_lshl_b32 {sT[0]}, {sW}, 8', f's_add_u32 {sT[0]}, {sT[0]}, {L_STAT}',
              f'v_and_b32 {V(vA)}, 31, {V(vLANE)}', f'v_lshl_add_u32 {V(vA)}, {V(vA)}, 2, {sT[0]}',
              f'ds_write_b32 {V(vA)}, {V(vRS)}',
              f'v_lshrrev_b32 {V(vB)}, 5, {V(vLANE)}', f'v_lshl_add_u32 {V(vB)}, {V(vB)}, 4, {sT[0]}',
              f'v_lshlrev_b32 {V(vA)}, 2, {V(vLANE)}', f'v_add_u32 {V(vA)}, {L_CSQ}, {V(vA)}']
    stoks = [[], []]; cvtok = []
    sKV = sU[3]
    if not first:
        wread(0, [1, 2, 0])
        flag_check(vB, vA, sT[0], L)
        stamp('p1poll')
        for ks in range(OPT.get('p1pre', 12)): xissue(16)
        for p_ in PENDING: p_()
    else:
        ready(0); wread(0, [1, 2, 0]); cread(0)
        stamp('p1x')
        F.adds(resid_ops); F.adds(xdma_ops(2)); F.adds(wdma_ops(2))
        F.add(lambda: flag_issue(vS1, vB, '0', SDBG))
    fb = 12 if first else 8
    for ks in range(32):
        if OPT.get('p1st') and ks % 4 == 0: stamp(f'k{ks}')
        c = lambda a: '0' if ks == 0 else V(a, 16)
        x = xop(ks)
        nparts = [1, 2, 0] if ks + 1 < 16 else [1, 2]
        if ks + 1 < 32: ready(ks + 1)
        A(f'{MFMA} {V(ak,16)}, {V(wreg(ks,1),4)}, {x}, {c(ak)}')
        if ks + 1 < 32: wread(ks + 1, nparts[:1])
        else: wread(16, [0])
        if not first: xissue(ks + 16)
        F.run(fb)
        A(f'{MFMA} {V(av,16)}, {x}, {V(wreg(ks,2),4)}, {c(av)}')
        if ks + 1 < 32: wread(ks + 1, nparts[1:2])
        F.run(fb)
        if ks < 16:
            A(f'{MFMA} {V(aq,16)}, {V(wreg(ks,0),4)}, {x}, {c(aq)}')
            if len(nparts) > 2: wread(ks + 1, nparts[2:])
            if not first: xissue(ks + 17)
            F.run(fb)
        if first:
            A(f'{MFMA} {Areg(CSA,16)}, {Areg(ONES,4)}, {Areg(CW + 4*(ks&1),4)}, {"0" if ks == 0 else Areg(CSA,16)}')
            if ks + 1 < 32: cread(ks + 1)
            F.run(20)
        if first:
            if ks % 4 == 3 and ks // 4 + 3 < 8:
                F.flush(); F.adds(xdma_ops(ks // 4 + 3)); F.adds(wdma_ops(ks // 4 + 3))
            if ks == 3:
                for X in range(2): F.adds(unpack_ops(TT, X)); F.adds(spart_ops(TT, TT + 8, X, False))
            if ks == 6: F.flush(); A.wait_lgkm()
            if ks == 7:
                F.adds(scomb_ops(TT, 0, LY.ST2_OFF, stoks[0])); F.adds(scomb_ops(TT, 1, LY.ST2_OFF, stoks[1]))
            if ks == 11:
                F.adds(conv_finish_ops(CVR, TT + 12, TT + 13, cvtok))
                F.add(lambda: flag_check(vS1, vB, '0', 1, SDBG), 8)
                F.add(lambda: (sflag(TT + 20, TT + 21, stoks[1], LY.F_S2, 0), sflag(TT + 20, TT + 21, stoks[1], LY.F_S2, 1)), 20)
            if ks == 19:
                F.adds([f's_lshl_b32 {sT[0]}, {sJ}, 7', f's_lshl2_add_u32 {sT[0]}, {sW}, {sT[0]}', f's_add_u32 {sT[0]}, {sT[0]}, {sFB}', f's_add_u32 {sT[0]}, {sT[0]}, {LY.F_KV}'])
                F.add(lambda: (A.wait_vm(cvtok[-1]), flag_set(TT + 20, TT + 21, sT[0], fastok=False, imm=16)), 20)
                F.adds(sflag_ops)
            if ks == 23: F.adds(sload_ops); F.adds(pretouch_ops(TT)); F.adds(wflag_addr_ops(TT + 12, TT + 13, TT + 14)); F.adds(wt_setup_ops())
            if ks == 27: F.adds(nm_ops); F.add(lambda: flag_issue(TT + 13, TT + 12, '0'))
            if ks == 30: F.flush()
        else:
            if ks == 10: F.adds(sflag_ops)
            if ks == 15: F.flush(); F.adds(sload_ops)
            if ks == 20: F.adds(nm_ops)
            if ks == 27:
                F.flush()
                for r in (1, 2, 3): A(f'v_mov_b32 {V(CK + r)}, 0'); A(f'v_mov_b32 {V(CV + r)}, 0')
                A(f'ds_read_b32 {V(CK)}, {V(vA)} offset:256'); A(f'ds_read_b32 {V(CV)}, {V(vA)} offset:512'); A(f'ds_read_b32 {V(CV + 2)}, {V(vA)}')
            if ks == 29: A(f'{MFMA} {V(ak,16)}, {V(CK,4)}, {V(NMW,4)}, {V(ak,16)}')
            if ks == 30:
                A(f'{MFMA} {V(av,16)}, {V(NMW,4)}, {V(CV,4)}, {V(av,16)}')
                A(f'{MFMA} {V(aq,16)}, {V(CV+2,4)}, {V(NMW,4)}, {V(aq,16)}')
        if ks == 28:
            F.adds([f's_lshl_b32 {sKV}, {sJ}, 6', f's_add_u32 {sKV}, {sKV}, {sRBG}', f's_lshl_b32 {sKV}, {sKV}, 12',
                    f's_add_u32 {sKV}, {sKV}, {LY.KV_OFF + L*LY.KV_LAYER}',
                    f's_add_u32 {sT[0]}, {sW}, 8', f's_mul_i32 {sT[0]}, {sT[0]}, {KVSLOT}', f's_add_u32 {sT[0]}, {sT[0]}, {L_KV}',
                    f'v_add_u32 {V(vC)}, {sT[0]}, {V(vL16)}'])
    F.flush()
    if OPT.get('p1st'): stamp('kend')
    RSR = [wreg(0, 1), wreg(0, 2), wreg(1, 1), wreg(1, 2)]
    for g in range(4): F.add(f'ds_read_b128 {V(RSR[g], 4)}, {V(vB)} offset:{32*g}')
    if first:
        WK, WV, WQ = TT, TT + 2, TT + 4
        pre = [f'v_mov_b32 {V(TT + r)}, 0' for r in (1, 3, 5, 6, 7)]
        pre += [f'v_cmp_gt_u32 vcc, 32, {V(vLANE)}', f's_min_u32 {sT[1]}, {sW}, 2', f's_lshl_b32 {sT[1]}, {sT[1]}, 8', f'v_add_u32 {V(TT+11)}, {sT[1]}, {V(vA)}',
                f'v_accvgpr_read_b32 {V(TT+8)}, {Areg(CSA)}']
        pre += cs_pack_ops(TT + 9, TT + 8, TT + 10)
        pre += [f'ds_write_b32 {V(TT+11)}, {V(TT+9)}', lambda: (A.wait_lgkm(), A('s_barrier')),
                f'ds_read_b32 {V(WK)}, {V(vA)} offset:256', f'ds_read_b32 {V(WV)}, {V(vA)} offset:512', f'ds_read_b32 {V(WQ)}, {V(vA)}']
        F.q[0:0] = [(o, 4) for o in pre]
        F.adds([f'{MFMA} {V(ak,16)}, {V(WK,4)}, {V(NMW,4)}, {V(ak,16)}', f'{MFMA} {V(av,16)}, {V(NMW,4)}, {V(WV,4)}, {V(av,16)}',
                f'{MFMA} {V(aq,16)}, {V(WQ,4)}, {V(NMW,4)}, {V(aq,16)}'])
    kvtok = []
    for acc, isv in ((ak, False), (av, True)):
        for half in range(2):
            for r in range(8 * half, 8 * half + 8):
                sc = V(RSR[r >> 2] + (r & 3)) if isv else V(vRS)
                F.add(f'v_mul_f32 {V(acc+r)}, {V(acc+r)}, {sc}')
            for r in range(8 * half, 8 * half + 8, 2):
                F.add(f'v_cvt_pk_bf16_f32 {V(acc + r//2)}, {V(acc+r)}, {V(acc+r+1)}')
            f = 2 * isv + half
            F.add(lambda acc=acc, half=half, f=f: kvtok.append(A(f'buffer_store_dwordx4 {V(acc + 4*half, 4)}, {V(vL16)}, {SWS}, {sKV} offen offset:{1024*f} sc1')))
    for f, reg in enumerate((ak, ak + 4, av, av + 4)): F.add(f'ds_write_b128 {V(vC)}, {V(reg, 4)} offset:{1024*f}')
    if first:
        F.add(lambda: flag_check(TT + 13, TT + 12, '0', 1), 8)
        for ks in range(W1TAIL): F.adds(w1_load_ops(ks))
    for ks in range(16, 32):
        if ks + 1 < 32: wread(ks + 1, [0])
        A(f'{MFMA} {V(aq,16)}, {V(wreg(ks,0),4)}, {xop(ks)}, {V(aq,16)}')
        F.run(OPT.get('qtb', 56) if len(kvtok) < 4 else 16)
    F.flush()
    if OPT.get('p1st'): stamp('qtail')
    A(f's_lshl_b32 {sT[0]}, {sJ}, 7'); A(f's_lshl2_add_u32 {sT[0]}, {sW}, {sT[0]}'); A(f's_add_u32 {sT[0]}, {sT[0]}, {sFB}'); A(f's_add_u32 {sT[0]}, {sT[0]}, {LY.F_KV}')
    A(f's_add_u32 {sT[1]}, {sXCC}, {(L + 1) << 8}')
    A(f'v_mov_b32 {V(vS1)}, {sT[1]}'); A(f'v_mov_b32 {V(vC)}, 0')
    A.wait_vm(kvtok[-1]); flag_set(vS1, vC, sT[0], fastok=False)
    T = WB
    A(f'v_min_u32 {V(vA)}, 11, {V(vLANE)}')
    A(f's_lshl_b32 {sT[1]}, {sC}, 2'); A(f'v_add_u32 {V(vS2)}, {sT[1]}, {V(vA)}')
    A(f'v_mov_b32 {V(T)}, 0x3f803f80')
    A(f'v_cmp_le_u32 vcc, 8, {V(vS2)}')
    A(f'v_mul_u32_u24 {V(vA)}, {KVSLOT}, {V(vA)}'); A(f'v_add_u32 {V(vA)}, {L_KV + 4096}, {V(vA)}')
    A(f'v_cndmask_b32 {V(T)}, 0, {V(T)}, vcc')
    for r in range(1, 4): A(f'v_mov_b32 {V(T+r)}, {V(T)}')
    A(f'ds_write_b128 {V(vA)}, {V(T,4)}')
    A(f'v_mul_f32 {V(vNM)}, {f32(0.25 * LOG2E)}, {V(vRS)}')
    for r in range(0, 16, 2): A(f'v_pk_mul_f32 {V(aq+r,2)}, {V(aq+r,2)}, {V(vNM,2)} op_sel_hi:[1,0]')
    for r in range(0, 16, 2): A(f'v_cvt_pk_bf16_f32 {V(P2Q + r//2)}, {V(aq+r)}, {V(aq+r+1)}')
    if OPT.get('p1st'): stamp('qepi')
    stamp('p1end')

def p2(L):
    first = (L == 0)
    vKA, vV0, vV1, vPM, vA, vB, vC, vD = vP
    vVA = [vV0, vV1]
    sKVB, sO, sHF, sHD = sU[0], sU[1], sU[2], sU[3]
    A(f's_lshr_b32 {sT[0]}, {sW}, 1'); A(f's_add_u32 {sT[0]}, {sT[0]}, {sC}'); A(f's_sub_u32 {sT[0]}, {sT[0]}, 2')
    A(f's_and_b32 {sT[1]}, {sW}, 1'); A(f's_lshl_b32 {sT[1]}, {sT[1]}, 1')
    A(f's_lshl_b32 {sHF}, {sT[0]}, 13'); A(f's_lshl_b32 {sT[2]}, {sJ}, 7'); A(f's_add_u32 {sHF}, {sHF}, {sT[2]}')
    A(f's_lshl2_add_u32 {sHF}, {sT[1]}, {sHF}'); A(f's_add_u32 {sHF}, {sHF}, {LY.F_KV}')
    A(f's_lshl2_add_u32 {sT[1]}, {sT[0]}, {sT[1]}'); A(f's_lshl_b32 {sT[2]}, {sJ}, 6'); A(f's_add_u32 {sT[1]}, {sT[1]}, {sT[2]}')
    A(f's_lshl_b32 {sHD}, {sT[1]}, 12'); A(f's_add_u32 {sHD}, {sHD}, {LY.KV_OFF + L*LY.KV_LAYER}')
    A(f'v_and_b32 {V(vA)}, 1, {V(vLANE)}'); A(f'v_lshlrev_b32 {V(vA)}, 2, {V(vA)}')
    skip = A.newlabel('Lnohalo'); go = A.newlabel('Lhalo')
    A(f's_cmp_lt_i32 {sT[0]}, 0'); A(f's_cbranch_scc1 {skip}')
    poll(vB, vA, sHF, (L + 1) << 8)
    A(f's_branch {go}')
    A.label(skip)
    A(f's_mov_b32 {sHD}, 0x7ff00000')
    A.label(go)
    stamp('halopoll')
    A(f's_mul_i32 {sT[0]}, {sW}, {2*KVSLOT}'); A(f's_add_u32 {sT[0]}, {sT[0]}, {L_KV}')
    for b in range(2):
        A(f's_mov_b32 m0, {sT[0]}')
        for f in range(4):
            t = A(f'buffer_load_dwordx4 {V(vL16)}, {SWS}, {sHD} offen offset:{1024*f} sc1 lds')
        A(f's_add_u32 {sT[0]}, {sT[0]}, {KVSLOT}'); A(f's_add_u32 {sHD}, {sHD}, 4096')
    A(f's_mul_i32 {sKVB}, {sW}, {KVSLOT}'); A(f's_add_u32 {sKVB}, {sKVB}, {L_KV}')
    A(f'v_add_u32 {V(vKA)}, {sKVB}, {V(vL16)}')
    A(f'v_add_u32 {V(vPM)}, {L_PMASK}, {V(vL16)}')
    A(f's_add_u32 {sKVB}, {sKVB}, 4096')
    def vaddr_ops(hd, f):
        return [f'v_bfe_u32 {V(vA)}, {V(vLANE)}, 4, 1', f'v_cmp_eq_u32 vcc, {hd}, {V(vA)}', f'v_mov_b32 {V(vA)}, {sKVB}',
                f'v_add_u32 {V(vB)}, {2048 + 1024*f}, {V(vKA)}', f'v_cndmask_b32 {V(vVA[f])}, {V(vA)}, {V(vB)}, vcc']
    emit(vaddr_ops(0, 0)); emit(vaddr_ops(0, 1))
    A(f's_lshl_b32 {sO}, {sRBG}, 15'); A(f's_lshl_b32 {sT[1]}, {sJ}, 11'); A(f's_add_u32 {sO}, {sO}, {sT[1]}'); A(f's_add_u32 {sO}, {sO}, {LY.O_OFF}')
    BG = Fill()
    for g_ in range(1, 4): BG.adds(wo_load_ops(g_))
    if first:
        A(f'v_lshrrev_b32 {V(P2P)}, 2, {V(vLANE)}'); A(f'v_lshlrev_b32 {V(P2P)}, 7, {V(P2P)}'); A(f'v_and_b32 {V(P2P+1)}, 3, {V(vLANE)}')
        A(f'v_lshl_add_u32 {V(P2O)}, {V(P2P+1)}, 2, {V(P2P)}')
        A(f's_add_u32 {sHF}, {sFB}, {LY.F_KV}')
        flag_issue(P2O + 1, P2O, sHF)
        for ks in range(W1TAIL, W1EARLY): BG.adds(w1_load_ops(ks))
        for t_ in range(W2EARLY): BG.adds(w2_load_ops(t_))
    A.wait_vm(t); A.wait_lgkm(); A('s_barrier')
    stamp('halodma')
    Sb = [P2SA, P2SB]
    units = []
    for hd in range(2): units += [(hd, 'm', 8)] + [(hd, 'f', d) for d in range(1, 8)]
    kread = lambda hd, d: A(f'ds_read_b128 {V(P2K,4)}, {V(vKA)} offset:{d*KVSLOT + 1024*hd}')
    vread = lambda f, d, base: A(f'ds_read_b128 {V(base,4)}, {V(vVA[f])} offset:{d*KVSLOT}')
    qk = lambda hd, s: A(f'{MFMA} {V(s,16)}, {V(P2K,4)}, {V(P2Q + 4*hd, 4)}, 0')
    def pv(vb, pb, start=False):
        A(f'{MFMA} {V(P2O,16)}, {V(vb,4)}, {V(pb,4)}, {"0" if start else V(P2O,16)}')
    otok = []
    def o_epilogue_ops(hd, tmp):
        ob, lb = (P2O, P2O + 8) if hd == 0 else (P2O + 8, P2O)
        ops = [f'v_rcp_f32 {V(vA)}, {V(lb)}', f's_nop 0']
        ops += [f'v_mul_f32 {V(ob+r)}, {V(ob+r)}, {V(vA)}' for r in range(8)]
        ops += [f'v_cvt_pk_bf16_f32 {V(tmp + r//2)}, {V(ob+r)}, {V(ob+r+1)}' for r in range(0, 8, 2)]
        ops.append(lambda: otok.append(store_dual([f'buffer_store_dwordx4 {V(tmp,4)}, {V(vL16)}, {SWS}, {sO} offen offset:{1024*hd}'])))
        return ops
    kread(0, 8); qk(0, Sb[0]); kread(0, 0); qk(0, P2SC); kread(0, 1)
    vread(0, 8, P2V); vread(1, 8, P2V + 4)
    if first:
        flag_check(P2O + 1, P2O, sHF, 256)
        A(f'v_and_b32 {V(P2O+1)}, 255, {V(P2O+1)}'); A(f'v_cmp_ne_u32 vcc, {sXCC}, {V(P2O+1)}')
        A(f's_cmp_eq_u64 vcc, 0'); A(f's_cselect_b32 {sFAST}, {0 if FORCE_SLOW else 1}, 0')
    bgb = 8 if first else 4
    pendPV1 = None
    for n, (hd, kind, d) in enumerate(units):
        if OPT.get('p2st') and L == 1 and n % 2 == 0: stamp(f'u{n}')
        s = Sb[n & 1]; nxt = Sb[(n + 1) & 1]
        nu = units[n + 1] if n + 1 < len(units) else None
        nu2 = units[n + 2] if n + 2 < len(units) else None
        E = lambda r: A(f'v_exp_f32 {V(s+r)}, {V(s+r)}')
        C = lambda t: A(f'v_cvt_pk_bf16_f32 {V(P2P + t)}, {V(s+2*t)}, {V(s+2*t+1)}')
        def posA():
            if pendPV1:
                pv(*pendPV1)
            if n > 0:
                if nu is not None or True:
                    if kind == 'm': emit(vaddr_ops(hd, 1))
                    vread(1, d, P2V + 4)
        def posB():
            if nu:
                qk(nu[0], nxt)
                if nu[1] == 'm': kread(nu[0], 0)
                elif nu2: kread(nu2[0], nu2[2])
        def posB2():
            if nu and nu[1] == 'm':
                qk(nu[0], P2SC); kread(nu2[0], nu2[2])
        def posC_next_v0():
            if nu:
                if nu[1] == 'm': emit(vaddr_ops(nu[0], 0))
                vread(0, nu[2], P2V)
        if kind == 'f':
            E(0); E(1); posA(); E(2); E(3); C(0); E(4); E(5); BG.run(bgb); C(1); posB(); E(6); E(7); C(2); E(8); C(3); E(9); E(10)
            pv(P2V, P2P); posC_next_v0()
            E(11); C(4); E(12); E(13); BG.run(bgb); C(5); posB2(); E(14); E(15); C(6); BG.run(bgb); C(7)
            pendPV1 = (P2V + 4, P2P + 4)
        else:
            M = lambda r: A(f'v_cndmask_b32 {V(s+r)}, {V(P2SC+r)}, {V(s+r)}, s[{SMASK0+2*r}:{SMASK0+2*r+1}]')
            M(0); M(1); posA()
            for r in range(2, 16): M(r)
            A(f'ds_read_b128 {V(P2SC,4)}, {V(vPM)}'); A(f'ds_read_b128 {V(P2SC+4,4)}, {V(vPM)} offset:1024')
            vread(0, 0, P2SC + 8); vread(1, 0, P2SC + 12)
            posB()
            if hd == 1: emit(o_epilogue_ops(0, P2K + 0) if False else o_epilogue_ops(0, P2O + 8))
            E(0); E(1); E(2); E(3); C(0); E(4); E(5); C(1); E(6); E(7); C(2); E(8); C(3); E(9)
            for t in range(4): A(f'v_and_b32 {V(P2SC+t)}, {V(P2SC+t)}, {V(P2P+t)}')
            E(10); E(11)
            pv(P2V, P2SC, start=True); posC_next_v0()
            for t in range(4): A(f'v_xor_b32 {V(P2P+t)}, {V(P2SC+t)}, {V(P2P+t)}')
            C(4); E(12); E(13)
            pv(P2SC + 8, P2P)
            C(5); E(14); E(15); C(6); BG.run(bgb); C(7)
            for t in range(4, 8): A(f'v_and_b32 {V(P2SC+t)}, {V(P2SC+t)}, {V(P2P+t)}')
            for t in range(4, 6): A(f'v_xor_b32 {V(P2P+t)}, {V(P2SC+t)}, {V(P2P+t)}')
            pv(P2V + 4, P2SC + 4)
            for t in range(6, 8): A(f'v_xor_b32 {V(P2P+t)}, {V(P2SC+t)}, {V(P2P+t)}')
            pendPV1 = (P2SC + 12, P2P + 4)
        if n == 9:
            BG.q[0:0] = [(o, 4) for o in wo_load_ops(0)]
    pv(*pendPV1)
    BG.flush()
    A(f's_lshl_b32 {sT[0]}, {sW}, 6'); A(f's_lshl2_add_u32 {sT[0]}, {sJ}, {sT[0]}'); A(f's_add_u32 {sT[0]}, {sT[0]}, {sFB}')
    A(f'v_mov_b32 {V(vB)}, {L + 1}'); A(f'v_mov_b32 {V(vD)}, 0')
    emit(o_epilogue_ops(1, P2SA))
    A('s_barrier')
    return dict(flag=(vB, vD, sT[0]), tok=otok)

def red_addr_ops(vw, vr, area):
    ops = []
    for q in (1, 2, 3):
        ops += [f's_xor_b32 {sT[7]}, {sW}, {q}', f's_mul_i32 {sT[7]}, {sT[7]}, 6144', f's_add_u32 {sT[7]}, {sT[7]}, {area + (q-1)*2048}',
                f'v_add_u32 {V(vw + q - 1)}, {sT[7]}, {V(vL16)}']
    ops += [f's_mul_i32 {sT[7]}, {sW}, 6144', f's_add_u32 {sT[7]}, {sT[7]}, {area}', f'v_add_u32 {V(vr)}, {sT[7]}, {V(vL16)}']
    return ops
def send_ops(acc, vw, off):
    return [f'ds_write_b128 {V(vw + q - 1)}, {V(acc + 8*q + 4*h, 4)} offset:{off + 1024*h}' for q in (1, 2, 3) for h in range(2)]
def recv_ops(dst, vr, off):
    return [f'ds_read_b128 {V(dst + 4*k, 4)}, {V(vr)} offset:{off + 1024*k}' for k in range(6)]
def unpack_ops(dst, X):
    ops = []
    for t in range(4):
        ops += [f'v_lshlrev_b32 {V(dst + 2*t)}, 16, {V(vRES + 4*X + t)}', f'v_and_b32 {V(dst + 2*t + 1)}, 0xffff0000, {V(vRES + 4*X + t)}']
    return ops
def add8_ops(y, a, b, pk):
    if pk: return [f'v_pk_add_f32 {V(y+r,2)}, {V(a+r,2)}, {V(b+r,2)}' for r in range(0, 8, 2)]
    return [f'v_add_f32 {V(y+r)}, {V(a+r)}, {V(b+r)}' for r in range(8)]

def finish_ops(y, part, X, pk, sxo, toks, last=False, vout=None):
    ops = add8_ops(part, part, part + 8, pk) + add8_ops(y, y, part + 16, pk) + add8_ops(y, y, part, pk)
    ops += [f'v_cvt_pk_bf16_f32 {V(vRES + 4*X + r//2)}, {V(y+r)}, {V(y+r+1)}' for r in range(0, 8, 2)]
    if last:
        ops.append(lambda: toks.append(A(f'buffer_store_dwordx4 {V(vRES + 4*X, 4)}, {V(vout)}, {SOUT}, {sxo} offen')))
        return ops
    ops.append(lambda: toks.append(store_dual([f'buffer_store_dwordx4 {V(vRES + 4*X, 4)}, {V(vL16)}, {SWS}, {sxo} offen'])))
    return ops + spart_ops(y, part, X, pk)

def out_scalars_ops(sxo, sfl, xoff, foff):
    return [f's_lshl2_add_u32 {sT[6]}, {sC}, {sRH}', f's_lshl2_add_u32 {sT[7]}, {sCB}, {sW}',
            f's_lshl_b32 {sxo}, {sT[6]}, 5', f's_add_u32 {sxo}, {sxo}, {sT[7]}', f's_lshl_b32 {sxo}, {sxo}, 10', f's_add_u32 {sxo}, {sxo}, {xoff}',
            f's_lshl_b32 {sfl}, {sRH}, 5', f's_add_u32 {sfl}, {sfl}, {sT[7]}', f's_lshl2_add_u32 {sfl}, {sfl}, {sFB}', f's_add_u32 {sfl}, {sfl}, {foff}']

def ffn(L, otok, oflag):
    first = (L == 0); last = (L == 1)
    vRW, vRR, vFA, vON, vF, vZ = vP[0], vP[3], vP[4], vP[5], vP[6], vP[7]
    assert (vON, vZ) == oflag[:2]
    sXO, sFL, sSA, sSB, sPF = sU[0], sU[2], sU[3], sU[4], sU[5]
    sXS, sLD, sHO, sHFL, sST, sSF = sU[1], sU[6], sU[7], sU[8], sU[9], sU[13]
    def p4_scalars():
        A(f's_lshl_b32 {sXS}, {sC}, 17'); A(f's_lshl_b32 {sT[2]}, {sW}, 11'); A(f's_add_u32 {sXS}, {sXS}, {sT[2]}'); A(f's_add_u32 {sXS}, {sXS}, {LY.X1_OFF}')
        A(f's_add_u32 {sLD}, {sT[2]}, {L_S}')
        A(f's_mul_i32 {sHO}, {sC}, {4*112*1024}'); A(f's_lshl2_add_u32 {sT[3]}, {sJ}, {sW}'); A(f's_lshl_b32 {sT[2]}, {sT[3]}, 11')
        A(f's_add_u32 {sHO}, {sHO}, {sT[2]}'); A(f's_add_u32 {sHO}, {sHO}, {LY.H_OFF}')
        A(f's_lshl2_add_u32 {sHFL}, {sT[3]}, {sFB}')
        A(f's_cmp_ge_u32 {sJ}, 14'); A(f's_cselect_b32 {sXS}, 0x70000000, {sXS}'); A(f's_cselect_b32 {sHO}, 0x70000000, {sHO}')
        A(f's_lshl_b32 {sST}, {sC}, 13'); A(f's_add_u32 {sST}, {sST}, {LY.ST1_OFF}')
        A(f's_add_u32 {sSF}, {sFB}, {LY.F_S1}')
    A(f'v_bfe_u32 {V(vFA)}, {V(vLANE)}, 2, 1'); A(f'v_lshlrev_b32 {V(vFA)}, 7, {V(vFA)}')
    A(f'v_and_b32 {V(vF)}, 3, {V(vLANE)}'); A(f'v_lshl_add_u32 {V(vFA)}, {V(vF)}, 2, {V(vFA)}')
    A(f's_lshl_b32 {sPF}, {sRH}, 6'); A(f's_lshl_b32 {sT[1]}, {sW}, 4'); A(f's_add_u32 {sPF}, {sPF}, {sT[1]}'); A(f's_add_u32 {sPF}, {sPF}, {sFB}')
    A(f's_lshl2_add_u32 {sSA}, {sC}, {sRH}'); A(f's_lshl_b32 {sSA}, {sSA}, 15'); A(f's_lshl_b32 {sT[1]}, {sW}, 13'); A(f's_add_u32 {sSA}, {sSA}, {sT[1]}')
    A(f's_add_u32 {sSA}, {sSA}, {LY.O_OFF}'); A(f's_add_u32 {sSB}, {sSA}, 65536'); A(f's_add_u32 {sT[4]}, {sSA}, 4096'); A(f's_add_u32 {sT[5]}, {sSB}, 4096')
    emit(red_addr_ops(vRW, vRR, L_S))
    emit(out_scalars_ops(sXO, sFL, LY.X1_OFF, LY.F_X1))
    A.wait_vm(otok[-1]); flag_set(*oflag, imm=LY.F_O)
    stamp('p2end')
    p4_scalars()
    poll(vF, vFA, sPF, L + 1)
    stamp('p3poll')
    ACC = 20
    slot = {}
    def oload(n, base):
        X, i = divmod(n, 8); slot[n] = base
        so = [[sSA, sT[4]], [sSB, sT[5]]][X][i >> 2]
        A(f'buffer_load_dwordx4 {V(base,4)}, {V(vL16)}, {SWS}, {so} offen offset:{(i & 3)*1024} sc1')
    for n in range(11): oload(n, 52 + 4 * n)
    A(f'v_lshlrev_b32 {V(vFA)}, 2, {V(vLANE)}')
    A(f's_add_u32 {sPF}, {sFB}, {LY.F_X1}')
    F = Fill()
    tokA, tokB, stA, stB = [], [], [], []
    yA = 72
    for n in range(16):
        X, i = divmod(n, 8)
        if n == 8:
            emit(unpack_ops(yA, 0)); emit(send_ops(ACC, vRW, 0)); emit(add8_ops(yA, yA, ACC, True))
            A.wait_lgkm()
        for nh in range(2):
            A(f'{MFMA} {V(ACC + 16*nh, 16)}, {WOREG(i, nh)}, {V(slot[n],4)}, {"0" if i == 0 else V(ACC + 16*nh, 16)}')
            if n == 8 and nh == 0: A('s_barrier')
            F.run(24)
        if n < 5: oload(11 + n, slot[n])
        if first and n == 5:
            for ks in range(W1EARLY, 32): F.adds(w1_load_ops(ks))
        if n == 10:
            F.adds(recv_ops(96, vRR, 0)); F.adds(finish_ops(yA, 96, 0, False, sXO, tokA))
    if OPT.get('p3st'): stamp('p3m')
    yB = 52
    emit(unpack_ops(yB, 1)); F.run(16)
    emit(send_ops(ACC, vRW, 24576)); emit(add8_ops(yB, yB, ACC, True))
    F.flush()
    A(f's_add_u32 {sXO}, {sXO}, 65536')
    A.wait_lgkm(); A('s_barrier')
    emit(recv_ops(124, vRR, 24576))
    A.wait_vm(tokA[-1]); flag_set(vON, vZ, sFL)
    emit(finish_ops(yB, 124, 1, True, sXO, tokB))
    flag_issue(vF, vFA, sPF)
    emit(scomb_ops(100, 0, LY.ST1_OFF, stA))
    stamp('p3end')
    if STOP <= 5 * L + 3:
        A.wait_vm(); return False
    ACC4 = [20, 36]; XR = 52; NXR = 8; CSW = 84; NMW = 88; NMS = 92; SA = 96; E = 100; HP = 116
    vXA, vSA, vNL, vSF = vP[0], vP[1], vP[2], vP[3]
    A(f'v_add_u32 {V(vXA)}, {L_S}, {V(vL16)}')
    A(f'v_mov_b32 {V(vNL)}, {f32(-LOG2E)}')
    A(f'v_lshrrev_b32 {V(vSA)}, 5, {V(vLANE)}'); A(f'v_lshlrev_b32 {V(vSA)}, 11, {V(vSA)}')
    A(f'v_and_b32 {V(vSF)}, 31, {V(vLANE)}'); A(f'v_lshl_add_u32 {V(vSA)}, {V(vSF)}, 4, {V(vSA)}')
    A(f'v_and_b32 {V(vSF)}, 15, {V(vLANE)}'); A(f'v_lshlrev_b32 {V(vSF)}, 2, {V(vSF)}')
    for r in (1, 2, 3, 5, 6, 7): A(f'v_mov_b32 {V(CSW + r)}, 0')
    A(f's_lshl_b32 {sT[7]}, {sW}, 8'); A(f's_add_u32 {sT[7]}, {sT[7]}, {L_CS1}'); A(f'v_lshl_add_u32 {V(94)}, {V(vLANE)}, 2, {sT[7]}')
    NS = 6; tok = {}
    def dma_m0(s): A(f's_add_u32 m0, {sLD}, {(s % NS) * 8192}')
    def dma1(s, f):
        tok[s] = A(f'buffer_load_dwordx4 {V(vL16)}, {SWS}, {sXS} offen offset:{1024*f} sc1 lds')
        if f == 1: A(f's_add_u32 {sXS}, {sXS}, 8192')
    def start_dma():
        flag_check(vF, vFA, sPF, L + 1)
        for s in range(3): dma_m0(s); dma1(s, 0); dma1(s, 1)
    if first:
        for r in range(4): A(f'v_mov_b32 {V(136 + r)}, 0x3f803f80')
        for ks in range(32):
            A(f'{MFMA} {V(36,16)}, {V(136,4)}, {W1REG(ks)}, {"0" if ks == 0 else V(36,16)}')
            if ks == 6: A.wait_vm(tokB[-1]); flag_set(vON, vZ, sFL, imm=256)
            if ks == 8: start_dma()
        A(f'v_cmp_gt_u32 vcc, 32, {V(vLANE)}')
        emit(cs_pack_ops(CSW, 36, 95))
        A(f'ds_write_b32 {V(94)}, {V(CSW)}')
    else:
        A(f'ds_read_b32 {V(CSW)}, {V(94)}')
        A.wait_vm(tokB[-1]); flag_set(vON, vZ, sFL, imm=256)
        start_dma()
    sflag(vON, vZ, stA, LY.F_S1, 0)
    A.wait_lgkm()
    stamp('p4poll')
    LA = 6
    xr = lambda n: V(XR + 4 * (n % NXR), 4)
    xtok = {}
    def xread(n):
        s, t = divmod(n, 8); c = 4
        if t == 0:
            A.wait_vm(tok[s]); A('s_barrier'); c += 8
        nd = None
        if s == 0:
            if t in (0, 2): nd = (3, t >> 1)
            if t in (4, 6): nd = (4, (t - 4) >> 1)
        elif s + 4 < 16:
            if t == 1: nd = (s + 4, 0)
            if t == 5: nd = (s + 4, 1)
        if nd and nd[1] == 0: dma_m0(nd[0])
        xtok[n] = A(f'ds_read_b128 {xr(n)}, {V(vXA)} offset:{(s % NS) * 8192 + t * 1024}')
        if nd: dma1(*nd); c += 8
        return c
    htok = {}
    def epi_ops(rb):
        a = ACC4[rb & 1]; sa = SA + rb
        st = [[f'v_mul_f32 {V(a+r)}, {V(a+r)}, {V(sa)}' for r in range(16)],
              [f'v_exp_f32 {V(E+r)}, {V(a+r)}' for r in range(16)],
              [f'v_fma_f32 {V(E+r)}, {V(E+r)}, {V(vNL)}, {V(vNL)}' for r in range(16)],
              [f'v_rcp_f32 {V(E+r)}, {V(E+r)}' for r in range(16)],
              [f'v_mul_f32 {V(a+r)}, {V(a+r)}, {V(E+r)}' for r in range(16)]]
        ops = []
        for step in range(16 + 2 * 5):
            for k in range(5):
                r = step - 2 * k
                if 0 <= r < 16: ops.append(st[k][r])
            r = step - 10
            if 0 <= r < 16 and r & 1:
                ops.append(f'v_cvt_pk_bf16_f32 {V(HP + r//2)}, {V(a+r-1)}, {V(a+r)}')
        def hstore():
            lines = [f'buffer_store_dwordx4 {V(HP + 4*f, 4)}, {V(vL16)}, {SWS}, {sHO} offen offset:{1024*f}' for f in range(2)]
            if OPT.get('hsc1', 3) >> L & 1:
                for l_ in lines: htok[rb] = A(l_ + ' sc1')
            else: htok[rb] = store_dual(lines)
            A(f's_add_u32 {sHO}, {sHO}, {112*1024}')
        return ops, hstore
    def hflag(rb):
        A.wait_vm(htok[rb]); flag_set(vON, vZ, sHFL, imm=LY.F_H + 256 * rb)
    sHA, sHB, sP5F = sU[3], sU[4], sU[14]
    p5setup = [f's_lshl2_add_u32 {sHA}, {sC}, {sRH}', f's_mul_i32 {sHA}, {sHA}, {112*1024}', f's_mul_i32 {sT[6]}, {sW}, {28*1024}',
               f's_add_u32 {sHA}, {sHA}, {sT[6]}', f's_add_u32 {sHA}, {sHA}, {LY.H_OFF}', f's_add_u32 {sHB}, {sHA}, {2*112*1024}',
               f's_lshl_b32 {sP5F}, {sRH}, 8', f's_mul_i32 {sT[6]}, {sW}, 56', f's_add_u32 {sP5F}, {sP5F}, {sT[6]}', f's_add_u32 {sP5F}, {sP5F}, {sFB}',
               f's_add_u32 {sP5F}, {sP5F}, {LY.F_H}',
               f'v_min_u32 {V(vFA)}, 13, {V(vLANE)}', f'v_lshlrev_b32 {V(vFA)}, 2, {V(vFA)}']
    if last: p5setup += own_tile_rowmajor(sXO)
    else: p5setup += out_scalars_ops(sXO, sFL, LY.X2_OFF, LY.F_X2)
    free = [132 + 4 * k for k in range(7)] + [124, 128]
    hslot = {}; hnext = [0]; hlimit = [0]
    def hload():
        n = hnext[0]
        if n >= hlimit[0] or not free: return False
        X, i = divmod(n, 28); so = [sHA, sHB][X]; b = free.pop(0); hslot[n] = b; hnext[0] += 1
        A(f'buffer_load_dwordx4 {V(b,4)}, {V(vL16)}, {SWS}, {so} offen offset:{(i & 3)*1024} sc1')
        if i & 3 == 3: A(f's_add_u32 {so}, {so}, 4096')
        return True
    F = Fill(); BG = Fill()
    if first:
        for t_ in range(W2EARLY, 56): BG.adds(w2_load_ops(t_))
    for n in range(LA): xread(n)
    A(f's_add_u32 {sPF}, {sPF}, 256')
    def sload(T):
        return [f'buffer_load_dwordx4 {V(T + 4*i, 4)}, {V(vSA)}, {SWS}, {sST} offen offset:{512*i} sc1' for i in range(4)] + \
               [f's_add_u32 {sST}, {sST}, 4096', f's_add_u32 {sSF}, {sSF}, 64']
    def sfinish(T, X):
        ops = [f'v_add_f32 {V(T+i)}, {V(T+i)}, {V(T+8+i)}' for i in range(8)] + [f'v_add_f32 {V(T+i)}, {V(T+i)}, {V(T+4+i)}' for i in range(4)]
        ops += [f'v_add_f32 {V(T)}, {V(T)}, {V(T+2)}', f'v_add_f32 {V(T+1)}, {V(T+1)}, {V(T+3)}',
                f'v_mul_f32 {V(T)}, {f32(-1.0/512)}, {V(T)}', f'v_mul_f32 {V(T+1)}, {f32(1.0/512)}, {V(T+1)}',
                f'v_fma_f32 {V(T+1)}, -{V(T)}, {V(T)}, {V(T+1)}', f'v_max_f32 {V(T+1)}, 0, {V(T+1)}',
                f'v_add_f32 {V(T+1)}, {f32(1e-5)}, {V(T+1)}', f'v_rsq_f32 {V(T+1)}, {V(T+1)}']
        ops += split_pack_ops(NMS + 2*X, T, T + 2)
        ops += [f'v_mul_f32 {V(SA + 2*X)}, {V(vNL)}, {V(T+1)}', f'v_mov_b32 {V(NMS + 2*X + 1)}, {V(NMS + 2*X)}', f'v_mov_b32 {V(SA + 2*X + 1)}, {V(SA + 2*X)}',
                f'v_permlane32_swap_b32 {V(NMS + 2*X)}, {V(NMS + 2*X + 1)}', f'v_permlane32_swap_b32 {V(SA + 2*X)}, {V(SA + 2*X + 1)}']
        return ops
    F.add(lambda: flag_issue(vF, vSF, sSF))
    F.adds(scomb_ops(E, 1, LY.ST1_OFF, stB))
    delayed = {}
    TB = 140
    for n in range(128):
        rb, ks = divmod(n, 32); a = ACC4[rb & 1]
        if n == 8: F.flush(); flag_check(vF, vSF, sSF, L + 1); F.adds(sload(ACC4[1])); F.add(lambda: flag_issue(vF, vFA, sPF))
        if n == 15: F.add(lambda: sflag(vON, vZ, stB, LY.F_S1, 1), 16)
        if n == 19: F.adds(sfinish(ACC4[1], 0))
        if n == 24: flag_check(vF, vFA, sPF, L + 1); F.q.insert(0, ((lambda: flag_issue(vF, vSF, sSF)), 4))
        if n == 29: F.flush(); F.adds(p5setup)
        if n == 34: flag_check(vF, vSF, sSF, L + 1); F.q[0:0] = [(o, 4) for o in sload(TB)]
        if n == 46: F.q[0:0] = [(o, 8 if 'rsq' in o else 4) for o in sfinish(TB, 1)]
        if ks == 0 and rb > 0: F.flush()
        if OPT.get('p4st') and L == 1 and n % 16 == 0: stamp(f'b{n}')
        if n % 2 == 0 and n + 1 in xtok: A.wait_lgkm(xtok[n + 1])
        A(f'{MFMA} {V(a,16)}, {W1REG(ks)}, {xr(n)}, {"0" if ks == 0 else V(a,16)}')
        used = 2
        if n + LA < 128: used += xread(n + LA)
        if ks == 29: A(f'v_mov_b32 {V(NMW)}, {V(NMS + rb)}'); used += 4
        if ks == 30:
            F.run(16); A(f'{MFMA} {V(a,16)}, {V(CSW,4)}, {V(NMW,4)}, {V(a,16)}'); used = 2
        if ks == 2 and rb > 0:
            ops, hs = epi_ops(rb - 1); F.adds(ops); F.add(hs, 20)
            F.add(lambda rb=rb: delayed.__setitem__('h', rb - 1), 0)
        if 'h' in delayed:
            delayed[n + (OPT.get('hdel', 22) if OPT.get('hsc1', 3) >> L & 1 else 12)] = delayed.pop('h')
        if n in delayed: F.q.insert(0, ((lambda r=delayed[n]: hflag(r)), 20))
        if n == OPT.get('p5i', 112): F.q.insert(0, ((lambda: flag_issue(vF, vFA, sP5F)), 4))
        if n == OPT.get('p5c', 122):
            flag_check(vF, vFA, sP5F, L + 1); hlimit[0] = 28
        F.run(OPT.get('p4b', 26) - used)
        if first and n % 2 == 1 and (n + LA) % 4 == 3: BG.run(8)
        if first and n % 4 == 0: BG.run(4)
        if hlimit[0]: hload()
    F.flush(); BG.flush()
    pend_flags = [delayed[x] for x in delayed if isinstance(x, int) and x >= 128] + ([delayed['h']] if 'h' in delayed else [])
    stamp('p4main')
    free += [20, 24, 28, 32]
    while hload(): pass
    A5 = [52, 84]
    ops, hs = epi_ops(3); F.adds(ops); F.add(hs, 20)
    marks = {}
    F.add(lambda: marks.__setitem__('e', 1), 0)
    vRW, vRR, vOUT = vP[0], vP[3], vFA
    tokA, tokB, stA, stB = [], [], [], []
    hf_at = None; bchk = None
    for n in range(56):
        X, i = divmod(n, 28); a = A5[X]
        if OPT.get('p5st') and L == 1 and n % 7 == 0: stamp(f'c{n}')
        if n == 9:
            for r in pend_flags: hflag(r)
        if n == 20: A('s_barrier')
        if n == 28: F.flush()
        for nh in range(2):
            A(f'{MFMA} {V(a + 16*nh, 16)}, {W2REG(i, nh)}, {V(hslot[n],4)}, {"0" if i == 0 else V(a + 16*nh, 16)}')
            F.run(OPT.get('p5b', 28) if X == 0 else 20)
        free.append(hslot[n])
        if 'e' in marks and hf_at is None:
            hf_at = n + (OPT.get('hdel5', 9) if OPT.get('hsc1', 3) >> L & 1 else 5)
            free += [36, 40, 44, 48]
            F.adds(red_addr_ops(vRW, vRR, L_S))
            F.add(f's_add_u32 {sP5F}, {sP5F}, 512')
        if n == hf_at:
            F.flush(); hflag(3); bchk = min(n + OPT.get('b5i', 4), 26)
        if bchk is not None and n == bchk: flag_issue(vF, vFA, sP5F)
        if bchk is not None and n == min(bchk + OPT.get('b5c', 5), 27):
            flag_check(vF, vFA, sP5F, L + 1); hlimit[0] = 56
        if n == 29:
            if last: F.adds(rowmajor_addr(vOUT, vF))
            F.adds(unpack_ops(116, 0)); F.adds(send_ops(A5[0], vRW, 24576)); F.adds(add8_ops(A5[0], A5[0], 116, False))
            F.add(lambda: (A.wait_lgkm(), A('s_barrier')), 8)
            F.adds(recv_ops(A5[0] + 8, vRR, 24576))
            for _ in range(3): F.add('s_nop 0', 20)
            F.adds(finish_ops(A5[0], A5[0] + 8, 0, False, sXO, tokA, last, vOUT))
            F.add(f's_add_u32 {sXO}, {sXO}, 65536')
            F.adds(unpack_ops(116, 1))
        if n == 46 and not last:
            F.flush(); A.wait_vm(tokA[-1]); flag_set(vON, vZ, sFL)
            A.wait_lgkm(); A('s_barrier')
            F.adds(scomb_ops(A5[0], 0, LY.ST2_OFF, stA))
        hload(); hload()
    assert bchk is not None and hlimit[0] == 56
    F.flush()
    a = A5[1]
    emit(send_ops(a, vRW, 0)); emit(add8_ops(a, a, 116, True))
    A.wait_lgkm(); A('s_barrier')
    emit(recv_ops(a + 8, vRR, 0))
    if not last: A(f'v_mov_b32 {V(vF)}, {L + 2}')
    emit(finish_ops(a, a + 8, 1, True, sXO, tokB, last, vOUT))
    if not last:
        sflag(vF, vZ, stA, LY.F_S2, 0)
        A.wait_lgkm(); A('s_barrier')
        emit(scomb_ops(A5[0], 1, LY.ST2_OFF, stB))
        A.wait_vm(tokB[-1]); flag_set(vON, vZ, sFL, imm=256)
        PENDING.append(lambda: sflag(156, 157, stB, LY.F_S2, 1))
        A(f'v_mov_b32 v156, {L + 2}'); A(f'v_mov_b32 v157, 0')
    stamp('p5end')
    return True
PENDING = []

def main():
    startup()
    if STOP == 0: return
    for L in range(2):
        p1(L)
        if STOP <= 5 * L + 1: return
        r = p2(L)
        if STOP <= 5 * L + 2:
            A.wait_vm(); return
        if not ffn(L, r['tok'], r['flag']): return
        if STOP <= 5 * L + 5: return
main()
finish()

hdr = open('cdna_kernels/' + NAME + '.s.ref').read().split('\n')
hdr = [l for l in hdr if l.startswith(';') and '@launch' not in l]
src = '\n'.join(hdr) + f'\n; @launch grid=(256,1,1) block=(256,1,1) lds={LDS_BYTES}\n'
src += f'''.amdgcn_target "amdgcn-amd-amdhsa--gfx950"
.text
.globl {NAME}_kernel
.p2align 8
.type {NAME}_kernel,@function
{NAME}_kernel:
'''
body = A.finalize()
src += body.replace('CODE_SPAN', '(L_codeend-L_pcref)')
src += f'''.section .rodata,"a"
.p2align 6
.amdhsa_kernel {NAME}_kernel
  .amdhsa_next_free_vgpr 512
  .amdhsa_next_free_sgpr 102
  .amdhsa_accum_offset 256
  .amdhsa_group_segment_fixed_size 0
  .amdhsa_kernarg_size 72
  .amdhsa_user_sgpr_count 2
  .amdhsa_user_sgpr_kernarg_segment_ptr 1
  .amdhsa_system_sgpr_workgroup_id_x 1
.end_amdhsa_kernel
'''
out = [a for a in sys.argv[1:] if a.endswith('.s')]
open(out[0] if out else 'k.s', 'w').write(src)
if STAMPS: open((out[0] if out else 'k.s') + '.names', 'w').write(' '.join(stamp_names))
```

```python
FLG_STRIDE = 8192
F_O   = 0
F_X1  = 256
F_X2  = 768
F_H   = 1280
F_S1  = 2304
F_S2  = 2432
F_KV  = 4096
ST1_OFF   = 0x040000
ST2_OFF   = 0x060000
CSQ_OFF   = 0x080000
CS1_OFF   = 0x0A0000
O_OFF     = 0x200000
X1_OFF    = 0x400000
X2_OFF    = 0x600000
H_OFF     = 0x800000
KV_OFF    = 0x1000000
KV_LAYER  = 0x400000
WT_OFF    = 0x1800000
WS_END    = 0x1E00000
STAMP_OFF = 0x2000000
```

```python
import sys, struct
from asmlib import Asm, V, Areg, S
import layout as LY

NAME = "interleave_layers__sliding_block__dense_activation_silu__prompt"
STOP = 99; STAMPS = False; FORCE_SLOW = False; CYC = False; OPT = {}
for arg in sys.argv[1:]:
    if arg.startswith('stop='): STOP = int(arg[5:])
    elif '=' in arg: OPT[arg.split('=')[0]] = int(arg.split('=')[1])
    if arg == 'stamps': STAMPS = True
    if arg == 'slow': FORCE_SLOW = True
    if arg == 'cyc': STAMPS = True; CYC = True

A = Asm()
MFMA = 'v_mfma_f32_32x32x16_bf16'
LOG2E = 1.4426950408889634
def f32(x): return '0x%08x' % struct.unpack('<I', struct.pack('<f', x))[0]

SWS, SX, SWQKV, SWO, SW1, SW2, SOUT, SDBG = 's[4:7]', 's[8:11]', 's[12:15]', 's[16:19]', 's[20:23]', 's[24:27]', 's[28:31]', 's[32:35]'
sC, sJ, sW, sFAST, sRH, sCB = 's36', 's37', 's38', 's39', 's40', 's41'
sT = ['s42', 's43', 's44', 's45', 's46', 's47', 's48', 's49']
sFB = 's50'
sXCC = 's51'
sRBG = 's52'
sSPIN = 's53'
sROT = 's1'
sU = ['s54', 's55', 's56', 's57', 's58', 's59', 's92', 's93', 's94', 's95', 's98', 's99', 's100', 's101', 's0']
SMASK0 = 60
vLANE, vL16, vTR, vSTAMP = 0, 1, 2, 3
vRES = 4
vP = list(range(12, 20))
def W1REG(ks): return Areg(224 + 4 * ks, 4) if ks < 8 else V(160 + 4 * (ks - 8), 4)
def W2REG(i, nh): return Areg((i * 2 + nh) * 4, 4)
WOB = 96
def WOREG(i, nh): return V(WOB + (i * 2 + nh) * 4, 4)
L_WQ = 0
L_S = 98304
KVSLOT = 4112
L_KV = L_S
L_MISC = L_S + 49408
L_CSQ = L_MISC
L_CS1 = L_MISC + 1024
L_STAT = L_MISC + 2048
L_BNC = L_MISC + 3072
L_PMASK = L_MISC + 7168
L_SP = L_MISC + 9216
LDS_BYTES = 163840

TRANS = ('v_exp', 'v_rcp', 'v_rsq')
class Fill:
    def __init__(self, vm=0): self.q = []; self.vm = vm
    def add(self, op, cost=None):
        if cost is None:
            cost = 4
            if isinstance(op, str):
                if op.startswith(TRANS): cost = 8
                if op.startswith('ds_write_b128'): cost = 8
                if op.startswith('buffer_') and self.vm: cost = self.vm
            elif self.vm: cost = self.vm
        self.q.append((op, cost))
    def adds(self, ops):
        for o in ops: self.add(o)
    def _do(self, op):
        if isinstance(op, str): A(op)
        else: op()
    def run(self, budget):
        while self.q and self.q[0][1] <= budget:
            op, c = self.q.pop(0); self._do(op); budget -= c
        return budget
    def flush(self):
        while self.q: self._do(self.q.pop(0)[0])

nstamp = [0]; stamp_names = []
def stamp(name=''):
    if not STAMPS: return
    k = nstamp[0]; nstamp[0] += 1; stamp_names.append(name)
    assert k < 64
    A('s_memtime s[96:97]' if CYC else 's_memrealtime s[96:97]')
    A('s_waitcnt lgkmcnt(0)')
    A(f'v_writelane_b32 {V(vSTAMP)}, s96, {k}')

OOL = []
def flag_issue(vtmp, vaddr, soff, srd=SWS):
    return A(f'buffer_load_dword {V(vtmp)}, {V(vaddr)}, {srd}, {soff} offen sc1')
def flag_check(vtmp, vaddr, soff, expect, srd=SWS, sleep=0):
    sp = A.newlabel('Lspin'); bk = A.newlabel('Lback')
    A(f'v_cmp_gt_u32 vcc, {expect}, {V(vtmp)}')
    A(f's_cbranch_vccnz {sp}')
    A.label(bk)
    OOL.append(f'''{sp}:
    s_mov_b32 {sSPIN}, 0
{sp}_l:
    buffer_load_dword {V(vtmp)}, {V(vaddr)}, {srd}, {soff} offen sc1
    s_add_u32 {sSPIN}, {sSPIN}, 1
    s_cmp_gt_u32 {sSPIN}, 0x40000
    s_cbranch_scc1 L_exit
    s_waitcnt vmcnt(0)
    v_cmp_gt_u32 vcc, {expect}, {V(vtmp)}
    s_cbranch_vccz {bk}
    s_sleep {sleep}
    s_branch {sp}_l''')
def poll(vtmp, vaddr, soff, expect, srd=SWS):
    flag_issue(vtmp, vaddr, soff, srd); flag_check(vtmp, vaddr, soff, expect, srd)

def store_dual(lines):
    A.dual(sFAST, lines, [l + ' sc1' for l in lines])
    return A.items[-1][2][-1]
def flag_set(vval, vzero, soff, fastok=True, imm=0, wave=None):
    if wave is None: A('s_mov_b64 exec, 1')
    else: A(f's_cmp_lt_u32 {sW}, 2'); A('s_cselect_b64 exec, 1, 0')
    ln = f'buffer_store_dword {V(vval)}, {V(vzero)}, {SWS}, {soff} offen offset:{imm}'
    if fastok: store_dual([ln])
    else: A(ln + ' sc1')
    A('s_mov_b64 exec, -1')

def finish():
    A.label('L_end')
    if STAMPS:
        A('s_waitcnt vmcnt(0) lgkmcnt(0)')
        stamp('end')
        A(f's_lshl_b32 {sT[0]}, s2, 2'); A(f's_add_u32 {sT[0]}, {sT[0]}, {sW}'); A(f's_lshl_b32 {sT[0]}, {sT[0]}, 8')
        A(f's_add_u32 {sT[0]}, {sT[0]}, {LY.STAMP_OFF}')
        A(f'v_lshlrev_b32 v20, 2, {V(vLANE)}')
        A(f'buffer_store_dword {V(vSTAMP)}, v20, {SWS}, {sT[0]} offen')
        if 'dbg' in OPT:
            A(f's_cmp_lg_u32 s2, {OPT["dbg"]}'); A('s_cbranch_scc1 L_exit'); A(f's_cmp_lg_u32 {sW}, 2'); A('s_cbranch_scc1 L_exit')
            A(f'v_readlane_b32 s42, {V(vSTAMP)}, 0'); A(f'v_subrev_u32 {V(vSTAMP)}, s42, {V(vSTAMP)}')
            A(f'v_subrev_u32 v20, {4*OPT.get("dbg0", 1)}, v20')
            A('s_mov_b32 s34, 64')
            A(f'buffer_store_dword {V(vSTAMP)}, v20, {SDBG}, 0 offen')
    A.label('L_exit')
    A('s_endpgm')
    for b in OOL: A.raw(b)
    A.place_ool()
    A.label('L_codeend')
    A.raw('    s_endpgm')

def startup():
    A('s_cmp_ge_u32 s2, 256'); A('s_cbranch_scc1 L_exit')
    for sreg, off in ((8, 0), (12, 8), (4, 64), (16, 16), (20, 32), (24, 40), (28, 48), (32, 56)):
        A(f's_load_dwordx2 s[{sreg}:{sreg+1}], s[0:1], {off}')
    if STAMPS: A(f'v_mov_b32 v3, 0')
    stamp('start')
    t0, t1 = vP[0], vP[1]
    A(f'v_lshrrev_b32 {V(t0)}, 6, v0')
    A(f'v_lshlrev_b32 {V(t1)}, 4, v0')
    A(f'v_readfirstlane_b32 {sW}, {V(t0)}')
    A(f'v_and_b32 {V(vLANE)}, 63, v0')
    A(f'v_lshlrev_b32 {V(vL16)}, 4, {V(vLANE)}')
    A(f's_and_b32 {sT[0]}, s2, 7'); A(f's_lshl_b32 {sT[0]}, {sT[0]}, 1')
    A(f's_bfe_u32 {sT[1]}, s2, 0x10003')
    A(f's_or_b32 {sC}, {sT[0]}, {sT[1]}')
    A(f's_lshr_b32 {sJ}, s2, 4')
    A(f's_and_b32 {sRH}, {sJ}, 1'); A(f's_lshr_b32 {sCB}, {sJ}, 1')
    A(f's_lshl2_add_u32 {sRBG}, {sC}, {sW}')
    A(f's_lshl_b32 {sFB}, {sC}, 13')
    A(f's_getreg_b32 {sXCC}, hwreg(HW_REG_XCC_ID)'); A(f's_and_b32 {sXCC}, {sXCC}, 15')
    A(f's_mov_b32 {sFAST}, 0')
    A(f's_and_b32 s3, {sW}, 1'); A(f's_lshl1_add_u32 s3, s3, {sRH}'); A(f's_lshl3_add_u32 s3, s3, {sCB}'); A(f's_lshl2_add_u32 s3, s3, {sFB}')
    A(f's_and_b32 {sT[0]}, {sJ}, 1'); A(f's_lshl_b32 {sT[0]}, {sT[0]}, 1'); A(f's_and_b32 {sT[1]}, {sC}, 1'); A(f's_lshl2_add_u32 {sT[0]}, {sT[1]}, {sT[0]}')
    for sreg, nbytes in ((8, 2048*512*2), (12, 512*1536*2), (4, 0x10000000), (16, 512*512*2), (20, 512*1792*2), (24, 1792*512*2), (28, 2048*512*2), (32, 256)):
        A(f's_mov_b32 s{sreg+2}, {nbytes}'); A(f's_mov_b32 s{sreg+3}, 0x20000')
    A('s_waitcnt lgkmcnt(0)')
    A(f's_and_b32 {sROT}, {sT[0]}, {OPT.get("rot", 2)}')
    if OPT.get('tlb'):
        A(f'v_lshlrev_b32 {V(t0)}, 19, {V(vLANE)}'); A(f'v_min_u32 {V(t0)}, {LY.WS_END - 4096}, {V(t0)}')
        A(f's_lshl_b32 {sT[7]}, s2, 7'); A(f's_and_b32 {sT[7]}, {sT[7]}, 0xf80')
        A(f'buffer_load_dword a37, {V(t0)}, {SWS}, {sT[7]} offen')
    A(f's_lshl2_add_u32 {sT[0]}, {sJ}, {sW}'); A(f's_cmp_eq_u32 {sT[0]}, 3')
    nl = A.newlabel('Lnolead')
    A(f's_cbranch_scc0 {nl}')
    A.optional(True)
    for r in range(4): A(f'v_mov_b32 {V(20 + r)}, 0')
    A(f's_add_u32 {sT[0]}, {sFB}, 4096')
    for q in range(3): A(f'buffer_store_dwordx4 v[20:23], {V(vL16)}, {SWS}, {sFB} offen offset:{1024*q} sc1')
    for q in range(4): A(f'buffer_store_dwordx4 v[20:23], {V(vL16)}, {SWS}, {sT[0]} offen offset:{1024*q} sc1')
    A.optional(False)
    A.label(nl)
    A.assume_drained()
    if not OPT.get('nocode'):
        A('s_getpc_b64 s[96:97]')
        A(f's_lshr_b32 {sT[7]}, s2, 3'); A(f's_lshl2_add_u32 {sT[7]}, {sT[7]}, {sW}'); A(f's_lshl_b32 {sT[7]}, {sT[7]}, 9')
        A(f'v_and_b32 {V(t0)}, 3, {V(vLANE)}'); A(f'v_lshl_add_u32 {V(t0)}, {V(t0)}, 7, {sT[7]}'); A(f'v_min_u32 {V(t0)}, CODE_SPAN, {V(t0)}')
        A.label('L_pcref')
        A(f'global_load_dword a36, {V(t0)}, s[96:97]')

def leader_announce(nyoung, vone, vzero):
    A(f's_lshl2_add_u32 {sT[0]}, {sJ}, {sW}'); A(f's_cmp_eq_u32 {sT[0]}, 3')
    nl = A.newlabel('Lnoann')
    A(f's_cbranch_scc0 {nl}')
    A.raw(f'    s_lshl_b32 {sT[0]}, {sC}, 2\n    s_waitcnt vmcnt({nyoung})\n    s_mov_b64 exec, 1\n'
          f'    buffer_store_dword {V(vone)}, {V(vzero)}, {SDBG}, {sT[0]} offen offset:64 sc1\n    s_mov_b64 exec, -1')
    A.label(nl)

def tr_addr():
    t0 = vP[0]
    A(f'v_lshrrev_b32 {V(t0)}, 5, {V(vLANE)}'); A(f'v_lshlrev_b32 {V(vTR)}, 9, {V(t0)}')
    A(f'v_bfe_u32 {V(t0)}, {V(vLANE)}, 2, 2'); A(f'v_lshl_add_u32 {V(vTR)}, {V(t0)}, 6, {V(vTR)}')
    A(f'v_bfe_u32 {V(t0)}, {V(vLANE)}, 4, 1'); A(f'v_lshl_add_u32 {V(vTR)}, {V(t0)}, 5, {V(vTR)}')
    A(f'v_and_b32 {V(t0)}, 1, {V(vLANE)}'); A(f'v_lshl_add_u32 {V(vTR)}, {V(t0)}, 4, {V(vTR)}')
    A(f'v_bfe_u32 {V(t0)}, {V(vLANE)}, 1, 1'); A(f'v_lshl_add_u32 {V(vTR)}, {V(t0)}, 3, {V(vTR)}')

def make_masks(B):
    t0, t1, t2 = vP[0], vP[1], vP[2]
    A(f'v_and_b32 {V(t0)}, 31, {V(vLANE)}'); A(f'v_lshrrev_b32 {V(t1)}, 5, {V(vLANE)}'); A(f'v_lshlrev_b32 {V(t1)}, 2, {V(t1)}')
    A(f'v_sub_u32 {V(t0)}, {V(t0)}, {V(t1)}')
    for r in range(16):
        A(f'v_cmp_le_i32 s[{SMASK0+2*r}:{SMASK0+2*r+1}], {(r & 3) + 8 * (r >> 2)}, {V(t0)}')
    A(f'v_mov_b32 {V(t0)}, 0xffff'); A(f'v_mov_b32 {V(t1)}, 0xffff0000')
    for t in range(8):
        A(f'v_cndmask_b32 {V(B+t)}, 0, {V(t0)}, s[{SMASK0+4*t}:{SMASK0+4*t+1}]')
        A(f'v_cndmask_b32 {V(t2)}, 0, {V(t1)}, s[{SMASK0+4*t+2}:{SMASK0+4*t+3}]')
        A(f'v_or_b32 {V(B+t)}, {V(B+t)}, {V(t2)}')
    A(f'v_add_u32 {V(t0)}, {L_PMASK}, {V(vL16)}')
    A(f'ds_write_b128 {V(t0)}, {V(B,4)}'); A(f'ds_write_b128 {V(t0)}, {V(B+4,4)} offset:1024')

def rowmajor_addr(v, vt):
    return [f'v_and_b32 {V(v)}, 31, {V(vLANE)}', f'v_lshlrev_b32 {V(v)}, 10, {V(v)}',
            f'v_lshrrev_b32 {V(vt)}, 5, {V(vLANE)}', f'v_lshl_add_u32 {V(v)}, {V(vt)}, 4, {V(v)}']
def own_tile_rowmajor(s):
    return [f's_lshl2_add_u32 {s}, {sC}, {sRH}', f's_lshl_b32 {s}, {s}, 15',
            f's_lshl2_add_u32 {sT[7]}, {sCB}, {sW}', f's_lshl_b32 {sT[7]}, {sT[7]}, 5', f's_add_u32 {s}, {s}, {sT[7]}']

def stats_finish_ops(s1, s2, ta, tb, nm, rs):
    return [f'v_mov_b32 {V(ta)}, {V(s1)}', f'v_mov_b32 {V(tb)}, {V(s2)}',
            f'v_permlane32_swap_b32 {V(ta)}, {V(s1)}', f'v_permlane32_swap_b32 {V(tb)}, {V(s2)}',
            f'v_add_f32 {V(s1)}, {V(s1)}, {V(ta)}', f'v_add_f32 {V(s2)}, {V(s2)}, {V(tb)}',
            f'v_mul_f32 {V(nm)}, {f32(-1.0/512)}, {V(s1)}', f'v_mul_f32 {V(ta)}, {f32(1.0/512)}, {V(s2)}',
            f'v_fma_f32 {V(ta)}, -{V(nm)}, {V(nm)}, {V(ta)}', f'v_max_f32 {V(ta)}, 0, {V(ta)}',
            f'v_add_f32 {V(ta)}, {f32(1e-5)}, {V(ta)}', f'v_rsq_f32 {V(rs)}, {V(ta)}']
def stat_addr_ops(v, vt):
    return [f'v_lshrrev_b32 {V(v)}, 5, {V(vLANE)}', f'v_lshlrev_b32 {V(v)}, 10, {V(v)}',
            f'v_and_b32 {V(vt)}, 31, {V(vLANE)}', f'v_lshl_add_u32 {V(v)}, {V(vt)}, 3, {V(v)}']
def stat_load_ops(b0, b1, vaddr, soff):
    return [f'buffer_load_dwordx2 {V(b, 2)}, {V(vaddr)}, {SWS}, {soff} offen offset:{256*i} sc1' for i, b in enumerate((b0, b0 + 2, b1, b1 + 2))]
def stat_reduce_ops(b0, b1, s1, s2):
    return [f'v_add_f32 {V(b0+i)}, {V(b0+i)}, {V(b1+i)}' for i in range(4)] + \
           [f'v_add_f32 {V(s1)}, {V(b0)}, {V(b0+2)}', f'v_add_f32 {V(s2)}, {V(b0+1)}, {V(b0+3)}']
def split_pack_ops(dst, x, t):
    return [f'v_cvt_pk_bf16_f32 {V(t)}, {V(x)}, {V(x)}', f'v_and_b32 {V(t)}, 0xffff0000, {V(t)}',
            f'v_sub_f32 {V(t)}, {V(x)}, {V(t)}', f'v_cvt_pk_bf16_f32 {V(dst)}, {V(x)}, {V(t)}']
def cs_pack_ops(dst, x, t):
    return [f'v_cvt_pk_bf16_f32 {V(dst)}, {V(x)}, {V(x)}', f'v_and_b32 {V(t)}, 0xffff0000, {V(dst)}',
            f'v_sub_f32 {V(t)}, {V(x)}, {V(t)}', f'v_cvt_pk_bf16_f32 {V(t)}, {V(t)}, {V(t)}',
            f'v_cndmask_b32 {V(dst)}, {V(t)}, {V(dst)}, vcc']
def spart_ops(y, p, X, pk):
    if pk:
        ops = [f'v_pk_mul_f32 {V(p+2,2)}, {V(y,2)}, {V(y,2)}', f'v_pk_add_f32 {V(p,2)}, {V(y,2)}, {V(y+2,2)}']
        ops += [f'v_pk_fma_f32 {V(p+2,2)}, {V(y+r,2)}, {V(y+r,2)}, {V(p+2,2)}' for r in (2, 4, 6)]
        ops += [f'v_pk_add_f32 {V(p,2)}, {V(p,2)}, {V(y+r,2)}' for r in (4, 6)]
        ops += [f'v_add_f32 {V(p)}, {V(p)}, {V(p+1)}', f'v_add_f32 {V(p+1)}, {V(p+2)}, {V(p+3)}']
    else:
        ops = [f'v_mul_f32 {V(p+1)}, {V(y)}, {V(y)}', f'v_add_f32 {V(p)}, {V(y)}, {V(y+1)}', f'v_fmac_f32 {V(p+1)}, {V(y+1)}, {V(y+1)}']
        for r in range(2, 8): ops += [f'v_add_f32 {V(p)}, {V(p)}, {V(y+r)}', f'v_fmac_f32 {V(p+1)}, {V(y+r)}, {V(y+r)}']
    ops += [f's_lshl_b32 {sT[7]}, {sW}, 9', f's_add_u32 {sT[7]}, {sT[7]}, {L_SP + 2048*X}',
            f'v_lshl_add_u32 {V(p+2)}, {V(vLANE)}, 3, {sT[7]}', f'ds_write_b64 {V(p+2)}, {V(p,2)}']
    return ops
def scomb_ops(t, stoff, toks):
    ops = [f's_and_b32 {sT[7]}, {sW}, 1', f's_lshl_b32 {sT[6]}, {sT[7]}, 11', f's_add_u32 {sT[6]}, {sT[6]}, {L_SP}',
           f'v_lshl_add_u32 {V(t+8)}, {V(vLANE)}, 3, {sT[6]}',
           f'ds_read2st64_b64 {V(t,4)}, {V(t+8)} offset0:0 offset1:1', f'ds_read2st64_b64 {V(t+4,4)}, {V(t+8)} offset0:2 offset1:3',
           f's_lshl1_add_u32 {sT[6]}, {sC}, {sT[7]}', f's_lshl1_add_u32 {sT[6]}, {sT[6]}, {sRH}', f's_lshl3_add_u32 {sT[6]}, {sT[6]}, {sCB}', f's_lshl_b32 {sT[6]}, {sT[6]}, 8',
           f's_add_u32 {sT[6]}, {sT[6]}, {stoff}',
           f'v_and_b32 {V(t+9)}, 31, {V(vLANE)}', f'v_lshlrev_b32 {V(t+9)}, 3, {V(t+9)}',
           f'v_pk_add_f32 {V(t,2)}, {V(t,2)}, {V(t+2,2)}', f'v_pk_add_f32 {V(t+4,2)}, {V(t+4,2)}, {V(t+6,2)}', f'v_pk_add_f32 {V(t,2)}, {V(t,2)}, {V(t+4,2)}',
           f'v_mov_b32 {V(t+2)}, {V(t)}', f'v_mov_b32 {V(t+3)}, {V(t+1)}',
           f'v_permlane32_swap_b32 {V(t+2)}, {V(t)}', f'v_permlane32_swap_b32 {V(t+3)}, {V(t+1)}',
           f'v_pk_add_f32 {V(t,2)}, {V(t,2)}, {V(t+2,2)}']
    def st():
        A(f's_cmp_lt_u32 {sW}, 2'); A('s_cselect_b64 exec, -1, 0')
        toks.append(store_dual([f'buffer_store_dwordx2 {V(t,2)}, {V(t+9)}, {SWS}, {sT[6]} offen']))
        A('s_mov_b64 exec, -1')
    ops.append(st)
    return ops
sSFL = 's3'
def sflag(vval, vzero, toks, foff):
    A.wait_vm(toks[-1]); flag_set(vval, vzero, sSFL, imm=foff, wave='lt2')

def raw_addr_ops(v, vt, rowbytes):
    return [f'v_lshrrev_b32 {V(v)}, 2, {V(vLANE)}', f'v_mul_u32_u24 {V(v)}, {rowbytes}, {V(v)}',
            f'v_and_b32 {V(vt)}, 3, {V(vLANE)}', f'v_lshl_add_u32 {V(v)}, {V(vt)}, 4, {V(v)}']
def raw64_addr_ops(v0):
    return [f'v_lshrrev_b32 {V(v0)}, 2, {V(vLANE)}', f'v_lshlrev_b32 {V(v0)}, 10, {V(v0)}',
            f'v_and_b32 {V(v0+1)}, 3, {V(vLANE)}', f'v_lshl_add_u32 {V(v0)}, {V(v0+1)}, 4, {V(v0)}',
            f's_lshl_b32 {sT[7]}, {sW}, 5', f'v_xor_b32 {V(v0)}, {sT[7]}, {V(v0)}', f'v_xor_b32 {V(v0+1)}, 64, {V(v0)}']
def bounce_addr_ops(vw, vr):
    return [f's_lshl_b32 {sT[7]}, {sW}, 10', f's_add_u32 {sT[7]}, {sT[7]}, {L_BNC}',
            f'v_add_u32 {V(vw)}, {sT[7]}, {V(vL16)}', f'v_add_u32 {V(vr)}, {sT[7]}, {V(vTR)}']
def sub(reg4, lo):
    k = reg4[0]; a = int(reg4[2:reg4.index(':')])
    return f'{k}[{a+lo}:{a+lo+1}]'
_bslot = [0]
def wtrans_ops(reg4, vw, vr):
    o = 0
    return [f'ds_write_b128 {V(vw)}, {reg4} offset:{o}',
            f'ds_read_b64_tr_b16 {sub(reg4,0)}, {V(vr)} offset:{o}',
            f'ds_read_b64_tr_b16 {sub(reg4,2)}, {V(vr)} offset:{o+256}']
def emit(ops):
    for o in ops:
        if isinstance(o, str): A(o)
        else: o()

sW1O, sW2O, sWOO = sU[10], sU[11], sU[12]
def wt_setup_ops():
    return [f's_lshl2_add_u32 {sW1O}, {sJ}, {sW}', f's_lshl_b32 {sW1O}, {sW1O}, 15', f's_add_u32 {sW1O}, {sW1O}, {LY.WT_OFF}',
            f's_cmp_ge_u32 {sJ}, 14', f's_cselect_b32 {sW1O}, 0x70000000, {sW1O}',
            f's_lshl2_add_u32 {sT[7]}, {sCB}, {sW}', f's_mul_i32 {sW2O}, {sT[7]}, {56*1024}', f's_add_u32 {sW2O}, {sW2O}, {LY.WT_OFF + 1792*1024}',
            f's_lshl_b32 {sWOO}, {sT[7]}, 14', f's_add_u32 {sWOO}, {sWOO}, {LY.WT_OFF + 3584*1024}']
WSC = ' sc1'
def w1_load_ops(ks):
    ops = [f'buffer_load_dwordx4 {W1REG(ks)}, {V(vL16)}, {SWS}, {sW1O} offen offset:{(ks & 3)*1024}{WSC}']
    if ks & 3 == 3: ops.append(f's_add_u32 {sW1O}, {sW1O}, 4096')
    return ops
def w2_load_ops(t):
    ops = [f'buffer_load_dwordx4 {W2REG(t >> 1, t & 1)}, {V(vL16)}, {SWS}, {sW2O} offen offset:{(t & 3)*1024}{WSC}']
    if t & 3 == 3: ops.append(f's_add_u32 {sW2O}, {sW2O}, 4096')
    return ops
def wo_load_ops(g):
    so = sT[7] if g else sWOO
    return ([f's_add_u32 {sT[7]}, {sWOO}, {4096*g}'] if g else []) + \
           [f'buffer_load_dwordx4 {WOREG((4*g + q) >> 1, q & 1)}, {V(vL16)}, {SWS}, {so} offen offset:{q*1024}{WSC}' for q in range(4)]

SCV = 's[92:95]'
def conv_issue(R, vt):
    g, u, cw, i0, wq, so, st2 = sT[0], sT[1], sT[2], sT[3], sT[4], sT[5], sT[6]
    A(f's_lshl_b32 {g}, {sC}, 4'); A(f's_add_u32 {g}, {g}, {sJ}'); A(f's_lshl2_add_u32 {g}, {g}, {sW}')
    A(f's_sub_u32 {u}, {g}, 448'); A(f's_mul_i32 {cw}, {u}, 4682'); A(f's_lshr_b32 {cw}, {cw}, 16')
    A(f's_mul_i32 {i0}, {cw}, 14'); A(f's_sub_u32 {i0}, {u}, {i0}')
    A(f's_and_b32 {wq}, {cw}, 3'); A(f's_mul_i32 {so}, {wq}, 14'); A(f's_add_u32 {so}, {so}, {i0}')
    A(f's_mov_b64 s[92:93], s[24:25]'); A(f's_mov_b32 s94, s26'); A(f's_mov_b32 s95, 0x20000')
    l1 = A.newlabel('Lcv'); l2 = A.newlabel('Lcv')
    A(f's_cmp_lt_u32 {g}, 896'); A(f's_cbranch_scc1 {l1}')
    A.optional(True)
    A(f's_sub_u32 {u}, {g}, 896'); A(f's_lshr_b32 {cw}, {u}, 2'); A(f's_and_b32 {wq}, {cw}, 3'); A(f's_and_b32 {so}, {u}, 15')
    A(f's_mov_b64 s[92:93], s[16:17]'); A(f's_mov_b32 s94, s18')
    A.optional(False)
    A.label(l1)
    A(f's_lshl_b32 {so}, {so}, 15'); A(f's_lshr_b32 {cw}, {cw}, 2'); A(f's_lshl_b32 {cw}, {cw}, 7'); A(f's_add_u32 {so}, {so}, {cw}')
    A(f's_mov_b32 {st2}, 16384'); A(f's_lshl_b32 {wq}, {wq}, 5')
    A(f'v_lshrrev_b32 {V(vt)}, 2, {V(vLANE)}'); A(f'v_and_b32 {V(vt+2)}, 3, {V(vLANE)}'); A(f'v_lshlrev_b32 {V(vt+2)}, 4, {V(vt+2)}')
    A(f'v_lshl_add_u32 {V(vt+3)}, {V(vt)}, 10, {V(vt+2)}'); A(f'v_xor_b32 {V(vt+3)}, {wq}, {V(vt+3)}'); A(f'v_xor_b32 {V(vt+1)}, 64, {V(vt+3)}')
    A(f's_cmp_ge_u32 {g}, 448'); A(f's_cbranch_scc1 {l2}')
    A.optional(True)
    A(f's_and_b32 {so}, {g}, 7'); A(f's_mul_i32 {so}, {so}, {64*3584}'); A(f's_lshr_b32 {u}, {g}, 3'); A(f's_lshl_b32 {u}, {u}, 6'); A(f's_add_u32 {so}, {so}, {u}')
    A(f's_mov_b32 {st2}, {32*3584}')
    A(f's_mov_b64 s[92:93], s[20:21]'); A(f's_mov_b32 s94, s22')
    A(f'v_mul_u32_u24 {V(vt+3)}, 3584, {V(vt)}'); A(f'v_add_u32 {V(vt+3)}, {V(vt+3)}, {V(vt+2)}'); A(f'v_add_u32 {V(vt+1)}, {16*3584}, {V(vt+3)}')
    A.optional(False)
    A.label(l2)
    A(f's_add_u32 {st2}, {st2}, {so}')
    for q in range(4):
        A(f'buffer_load_dwordx4 {Areg(R + 4*q, 4)}, {V(vt+1 if q & 1 else vt+3)}, {SCV}, {st2 if q >= 2 else so} offen')
def wflag_addr_ops(v, t, t2):
    return [f's_lshl2_add_u32 {sT[6]}, {sJ}, {sW}', f's_min_u32 {sT[6]}, {sT[6]}, 55', f's_lshl_b32 {sT[6]}, {sT[6]}, 3',
            f'v_add_u32 {V(v)}, {sT[6]}, {V(vLANE)}',
            f's_lshl2_add_u32 {sT[7]}, {sCB}, {sW}', f's_mul_i32 {sT[6]}, {sT[7]}, 14', f's_add_u32 {sT[6]}, {sT[6]}, 440',
            f'v_add_u32 {V(t)}, {sT[6]}, {V(vLANE)}', f'v_cmp_gt_u32 vcc, 8, {V(vLANE)}',
            f's_lshl_b32 {sT[6]}, {sT[7]}, 2', f's_add_u32 {sT[6]}, {sT[6]}, 874',
            f'v_cndmask_b32 {V(v)}, {V(t)}, {V(v)}, vcc',
            f'v_min_u32 {V(t)}, 25, {V(vLANE)}', f'v_add_u32 {V(t)}, {sT[6]}, {V(t)}', f'v_cmp_gt_u32 vcc, 22, {V(vLANE)}', 's_nop 0',
            f'v_cndmask_b32 {V(v)}, {V(t)}, {V(v)}, vcc',
            f'v_lshrrev_b32 {V(t)}, 6, {V(v)}', f'v_lshlrev_b32 {V(t)}, 13, {V(t)}', f'v_and_b32 {V(t2)}, 3, {V(v)}', f'v_lshl_add_u32 {V(t)}, {V(t2)}, 2, {V(t)}',
            f'v_bfe_u32 {V(v)}, {V(v)}, 2, 4', f'v_lshl_add_u32 {V(v)}, {V(v)}, 7, {V(t)}', f'v_add_u32 {V(v)}, {LY.F_KV + 2048}, {V(v)}']

def pretouch_ops(T):
    ops = [f's_lshl_b32 {sT[2]}, {sRBG}, 15', f's_lshl_b32 {sT[3]}, {sJ}, 11', f's_add_u32 {sT[2]}, {sT[2]}, {sT[3]}', f's_add_u32 {sT[2]}, {sT[2]}, {LY.O_OFF}',
           f's_lshl2_add_u32 {sT[3]}, {sC}, {sRH}', f's_lshl_b32 {sT[3]}, {sT[3]}, 5', f's_lshl2_add_u32 {sT[4]}, {sCB}, {sW}', f's_add_u32 {sT[3]}, {sT[3]}, {sT[4]}',
           f's_lshl_b32 {sT[3]}, {sT[3]}, 10', f's_add_u32 {sT[3]}, {sT[3]}, {LY.X1_OFF}',
           f'v_and_b32 {V(T)}, 15, {V(vLANE)}', f'v_lshl_add_u32 {V(T)}, {V(T)}, 7, {sT[2]}',
           f'v_and_b32 {V(T+1)}, 7, {V(vLANE)}', f'v_lshl_add_u32 {V(T+1)}, {V(T+1)}, 7, {sT[3]}',
           f'v_bfe_u32 {V(T+2)}, {V(vLANE)}, 3, 1', f'v_lshl_add_u32 {V(T+1)}, {V(T+2)}, 16, {V(T+1)}',
           f'v_lshrrev_b32 {V(T+2)}, 5, {V(vLANE)}', f'v_lshl_add_u32 {V(T+1)}, {V(T+2)}, 21, {V(T+1)}',
           f'v_cmp_gt_u32 vcc, 16, {V(vLANE)}',
           f's_lshl_b32 {sT[2]}, {sW}, 11', f's_add_u32 {sT[2]}, {sT[2]}, {sFB}',
           f'v_cndmask_b32 {V(T)}, {V(T+1)}, {V(T)}, vcc',
           f's_lshl_b32 {sT[3]}, {sC}, 13', f's_and_b32 {sT[4]}, {sJ}, 3', f's_lshl_b32 {sT[4]}, {sT[4]}, 11', f's_add_u32 {sT[3]}, {sT[3]}, {sT[4]}', f's_add_u32 {sT[3]}, {sT[3]}, {LY.ST1_OFF}',
           f's_cmp_lt_u32 {sW}, 2', f's_cselect_b32 {sT[2]}, {sT[2]}, {sT[3]}',
           f'v_and_b32 {V(T+1)}, 15, {V(vLANE)}', f'v_lshl_add_u32 {V(T+1)}, {V(T+1)}, 7, {sT[2]}',
           f'v_cmp_gt_u32 vcc, 48, {V(vLANE)}', 's_nop 0',
           f'v_cndmask_b32 {V(T)}, {V(T+1)}, {V(T)}, vcc',
           f'buffer_load_dword a35, {V(T)}, {SWS}, 0 offen sc1']
    assert LY.X2_OFF - LY.X1_OFF == 1 << 21
    return ops

P2Q, P2SA, P2SB, P2P, P2K, P2V, P2O, P2SC = 20, 28, 44, 60, 68, 72, 80, 96
W2EARLY = OPT.get('w2e', 0); W1EARLY = OPT.get('w1e', 16); W1TAIL = OPT.get('w1t', 4)

L0 = {}
def p1(L):
    first = (L == 0)
    XR = 20; aq, ak, av = 84, 100, 116; WB = 132; NMW = 156
    xop = lambda ks: V(XR + 4 * (ks % 16), 4)
    wreg = lambda ks, p: WB + ((ks & 1) * 3 + p) * 4
    vNM, vRS, vS1, vS2, vTRH, vA, vB, vC = vP
    F = Fill(); D = Fill(OPT.get('p1vm', 12))
    stage_tok = {}
    sXB, sXK, sXS, sSTO, sSF = sU[0], sU[1], sU[2], sU[5], sU[6]
    CK, CV = wreg(0, 0), wreg(1, 0)
    stoks = []; cvtok = []
    if first:
        vXG, vWA, vBR0, vBR1, vTRC = 224, 228, 229, 230, 231
        vHS, vHV, vONE, vZERO, vWF, vWV, vPT, vL4, vBW, vBRD = 234, 235, 236, 237, 238, 239, 240, 241, 242, 243
        TT = 192
        ONES, CW, CSA, CSB, CVR = 0, 8, 16, 64, 48
        sXL, sWB, sWS, sWL, sCO, sC1, sFL = sU[3], sU[4], sU[13], sU[14], sU[7], sU[8], sU[9]
        A(f'v_bfe_u32 {V(21)}, {V(vLANE)}, 2, 3')
        A(f'v_lshlrev_b32 {V(20)}, 10, {V(21)}')
        A(f'v_lshrrev_b32 {V(22)}, 5, {V(vLANE)}'); A(f'v_lshl_add_u32 {V(20)}, {V(22)}, 6, {V(20)}')
        A(f'v_and_b32 {V(22)}, 3, {V(vLANE)}'); A(f'v_lshrrev_b32 {V(23)}, 2, {V(21)}'); A(f'v_xor_b32 {V(22)}, {V(22)}, {V(23)}')
        A(f'v_lshl_add_u32 {V(vXG)}, {V(22)}, 4, {V(20)}')
        A(f'v_xor_b32 {V(22)}, 2, {V(22)}')
        A(f'v_lshl_add_u32 {V(vXG+1)}, {V(22)}, 4, {V(20)}')
        A(f'v_add_u32 {V(vXG+2)}, {2*7168}, {V(vXG)}'); A(f'v_add_u32 {V(vXG+3)}, {3*7168}, {V(vXG+1)}'); A(f'v_add_u32 {V(vXG+1)}, 7168, {V(vXG+1)}')
        A(f's_lshl_b32 {sXB}, {sRBG}, 15')
        A(f's_mul_i32 {sXL}, {sW}, 12288'); A(f's_add_u32 {sXL}, {sXL}, {L_S}')
        emit(raw_addr_ops(vWA, 20, 3072))
        A(f's_mul_i32 {sWB}, {sW}, {16*3072}'); A(f's_lshl_b32 {sT[5]}, {sJ}, 6'); A(f's_add_u32 {sWB}, {sWB}, {sT[5]}')
        A(f's_mul_i32 {sWL}, {sW}, 3072')
        def xdma_ops(s):
            ops = [f's_xor_b32 {sXK}, {sROT}, {s}', f's_add_u32 m0, {sXL}, {(s % 3) * 4096}', f's_lshl_b32 {sXS}, {sXK}, 7', f's_add_u32 {sXS}, {sXS}, {sXB}']
            for g in range(4):
                ops.append(lambda g=g: stage_tok.__setitem__(('x', s), A(f'buffer_load_dwordx4 {V(vXG + g)}, {SX}, {sXS} offen offset:{1024*g} lds')))
            return ops
        def wdma_ops(s):
            ops = [f's_mul_i32 {sWS}, {sXK}, {64*3072}', f's_add_u32 m0, {sWL}, {s*4*3072}', f's_add_u32 {sWS}, {sWS}, {sWB}']
            for p in (1, 2, 0):
                ops.append(lambda p=p: stage_tok.__setitem__(('w', s), A(f'buffer_load_dwordx4 {V(vWA)}, {SWQKV}, {sWS} offen offset:{1024*p} lds')))
            return ops
        nq = 0 if OPT.get('nocode') else 1
        if not OPT.get('nowarm'):
            A(f'v_min_u32 {V(20)}, 15, {V(vLANE)}'); A(f'v_lshlrev_b32 {V(20)}, 7, {V(20)}'); A(f'v_min_u32 {V(21)}, {11*128}, {V(20)}')
            A(f's_lshl2_add_u32 {sT[0]}, {sJ}, {sW}'); A(f's_lshl_b32 {sT[0]}, {sT[0]}, 11'); A(f's_lshl_b32 {sT[1]}, {sC}, 17'); A(f's_add_u32 {sT[0]}, {sT[0]}, {sT[1]}')
            A(f's_lshl2_add_u32 {sT[1]}, s2, {sW}'); A(f's_mul_i32 {sT[1]}, {sT[1]}, {12*128}')
            A(f'buffer_load_dword a32, {V(21)}, {SWQKV}, {sT[1]} offen')
            A(f'buffer_load_dword a33, {V(20)}, {SX}, {sT[0]} offen'); nq += 2
        resid_ops = rowmajor_addr(vA, vC) + own_tile_rowmajor(sT[6]) + \
            [f'buffer_load_dwordx4 {V(vRES, 4)}, {V(vA)}, {SX}, {sT[6]} offen', f's_add_u32 {sT[6]}, {sT[6]}, 65536',
             f'buffer_load_dwordx4 {V(vRES + 4, 4)}, {V(vA)}, {SX}, {sT[6]} offen']
        emit(resid_ops); emit(xdma_ops(0)); emit(wdma_ops(0)); nq += 9
        if OPT.get('s0st'): stamp('iss')
        tr_addr()
        make_masks(32)
        A(f'v_bfe_u32 {V(21)}, {V(vLANE)}, 3, 2'); A(f'v_lshlrev_b32 {V(vBR0)}, 10, {V(21)}')
        A(f'v_and_b32 {V(21)}, 7, {V(vLANE)}'); A(f'v_lshl_add_u32 {V(vBR0)}, {V(21)}, 6, {V(vBR0)}')
        A(f'v_add_u32 {V(vBR0)}, {sXL}, {V(vBR0)}')
        A(f'v_bfe_u32 {V(21)}, {V(vLANE)}, 2, 2'); A(f'v_lshrrev_b32 {V(22)}, 5, {V(vLANE)}'); A(f'v_xor_b32 {V(21)}, {V(21)}, {V(22)}')
        A(f'v_xor_b32 {V(22)}, 2, {V(21)}')
        A(f'v_lshl_add_u32 {V(vBR1)}, {V(22)}, 4, {V(vBR0)}')
        A(f'v_lshl_add_u32 {V(vBR0)}, {V(21)}, 4, {V(vBR0)}')
        A(f'v_mov_b32 {V(21)}, 0x3f803f80')
        for r in range(4): A(f'v_accvgpr_write_b32 {Areg(ONES + r)}, {V(21)}')
        A(f's_min_u32 {sT[0]}, {sW}, 2'); A(f's_lshl_b32 {sT[0]}, {sT[0]}, 10')
        A(f'v_add_u32 {V(vTRC)}, {sT[0]}, {V(vTR)}'); A(f'v_add_u32 {V(vTRC+1)}, {16*3072}, {V(vTRC)}')
        A(f'v_and_b32 {V(vHS)}, 15, {V(vLANE)}'); A(f'v_lshl_add_u32 {V(vHS)}, {V(vHS)}, 2, 64')
        A(f'v_mov_b32 {V(vONE)}, 1'); A(f'v_mov_b32 {V(vZERO)}, 0'); A(f'v_lshlrev_b32 {V(vL4)}, 2, {V(vLANE)}')
        emit(bounce_addr_ops(vBW, vBRD)); emit(wt_setup_ops()); emit(wflag_addr_ops(vWF, 20, 21))
        pt = pretouch_ops(20); emit(pt[:-1]); A(f'v_mov_b32 {V(vPT)}, {V(20)}')
        leader_announce(nq, vONE, vZERO)
        def conv_scalars():
            A(f's_lshl_b32 {sFL}, {sJ}, 7'); A(f's_lshl2_add_u32 {sFL}, {sW}, {sFL}'); A(f's_add_u32 {sFL}, {sFL}, {sFB}'); A(f's_add_u32 {sFL}, {sFL}, {LY.F_KV}')
            A(f's_lshl_b32 {sT[0]}, {sC}, 4'); A(f's_add_u32 {sT[0]}, {sT[0]}, {sJ}'); A(f's_lshl2_add_u32 {sT[0]}, {sT[0]}, {sW}')
            A(f's_lshl_b32 {sCO}, {sT[0]}, 12'); A(f's_add_u32 {sCO}, {sCO}, {LY.WT_OFF}')
            A(f's_lshl_b32 {sC1}, {sT[0]}, 7'); A(f's_add_u32 {sC1}, {sC1}, {LY.CS1_OFF}')
            A(f's_cmp_ge_u32 {sT[0]}, 448'); A(f's_cselect_b32 {sC1}, 0x70000000, {sC1}')
        if OPT.get('s0st'): stamp('setup')
        emit(xdma_ops(1)); emit(wdma_ops(1))
        if OPT.get('s0st'): stamp('iss1')
        for X in range(2): emit(unpack_ops(TT, X)); emit(spart_ops(TT, TT + 8, X, True))
        A.wait_lgkm()
        conv_tr = []; conv_st = [f'v_and_b32 {V(TT+22)}, 127, {V(vL4)}']
        for q in range(4): conv_tr += wtrans_ops(Areg(CVR + 4*q, 4), vBW, vBRD)
        for q in range(4):
            conv_st += [f'buffer_store_dwordx4 {Areg(CVR + 4*q, 4)}, {V(vL16)}, {SWS}, {sCO} offen offset:{1024*q} sc1',
                        f'{MFMA} {Areg(CSB,16)}, {Areg(ONES,4)}, {Areg(CVR + 4*q, 4)}, {"0" if q == 0 else Areg(CSB,16)}']
        conv_last = lambda: cvtok.append(A(f'buffer_store_dword {Areg(CSB)}, {V(TT+22)}, {SWS}, {sC1} offen sc1'))
    else:
        A(f'v_and_b32 {V(vA)}, 31, {V(vLANE)}'); A(f'v_lshlrev_b32 {V(vA)}, 2, {V(vA)}')
        A(f's_lshl_b32 {sT[0]}, {sW}, 7'); A(f's_add_u32 {sT[0]}, {sT[0]}, {sFB}'); A(f's_add_u32 {sT[0]}, {sT[0]}, {LY.F_X2}')
        flag_issue(vB, vA, sT[0])
        A(f's_lshl_b32 {sXB}, {sRBG}, 15'); A(f's_add_u32 {sXB}, {sXB}, {LY.X2_OFF}'); A(f's_lshl_b32 {sXK}, {sROT}, 12')
    A(f'v_add_u32 {V(vTRH)}, {16*3072}, {V(vTR)}')
    def wread(ks, parts):
        base = vTR if ks < 16 else vTRH
        for p in parts:
            r = wreg(ks, p); o = L_WQ + (ks % 16) * 3072 + p * 1024
            A(f'ds_read_b64_tr_b16 {V(r, 2)}, {V(base)} offset:{o}')
            A(f'ds_read_b64_tr_b16 {V(r + 2, 2)}, {V(base)} offset:{o + 256}')
    def cread(ks):
        r = CW + 4 * (ks & 1); b_ = vTRC + (ks >= 16); o = L_WQ + (ks % 16) * 3072
        A(f'ds_read_b64_tr_b16 {Areg(r, 2)}, {V(b_)} offset:{o}'); A(f'ds_read_b64_tr_b16 {Areg(r + 2, 2)}, {V(b_)} offset:{o + 256}')
    def ready(ks):
        if first and ks % 4 == 0:
            st_ = ks // 4
            A.wait_vm(stage_tok[('w', st_)]); A('s_barrier')
            for q in range(4):
                A(f'ds_read_b128 {xop(ks + q)}, {V(vBR1 if q & 1 else vBR0)} offset:{(st_ % 3) * 4096 + 512*(q>>1)}')
    def xload_op(ks):
        ops = []
        if ks & 3 == 0: ops += [f's_xor_b32 {sXS}, {sXK}, {(ks >> 2) << 12}', f's_add_u32 {sXS}, {sXS}, {sXB}']
        return ops + [f'buffer_load_dwordx4 {xop(ks)}, {V(vL16)}, {SWS}, {sXS} offen offset:{(ks & 3) * 1024} sc1']
    xq = [] if first else list(range(32))
    def xissue(limit):
        if xq and xq[0] < limit: emit(xload_op(xq.pop(0))); return 4
        return 0
    SB0, SB1 = CK, CV
    sflag_ops = [f'v_and_b32 {V(vA)}, 7, {V(vLANE)}', f'v_lshlrev_b32 {V(vA)}, 2, {V(vA)}',
                 f's_lshl_b32 {sSF}, {sW}, 5', f's_add_u32 {sSF}, {sSF}, {sFB}', f's_add_u32 {sSF}, {sSF}, {LY.F_S2}',
                 lambda: flag_issue(vB, vA, sSF)] + stat_addr_ops(vC, vS1) + \
                [f's_lshl_b32 {sSTO}, {sRBG}, 11', f's_add_u32 {sSTO}, {sSTO}, {LY.ST2_OFF}']
    sload_ops = [lambda: flag_check(vB, vA, sSF, L + 1)] + stat_load_ops(SB0, SB1, vC, sSTO)
    nm_ops = stat_reduce_ops(SB0, SB1, vS1, vS2) + stats_finish_ops(vS1, vS2, vA, vB, vNM, vRS) + split_pack_ops(NMW, vNM, vA) + \
             [f'v_mov_b32 {V(NMW+1)}, 0', f'v_mov_b32 {V(NMW+2)}, 0', f'v_mov_b32 {V(NMW+3)}, 0',
              f's_lshl_b32 {sT[0]}, {sW}, 8', f's_add_u32 {sT[0]}, {sT[0]}, {L_STAT}',
              f'v_and_b32 {V(vA)}, 31, {V(vLANE)}', f'v_lshl_add_u32 {V(vA)}, {V(vA)}, 2, {sT[0]}',
              f'ds_write_b32 {V(vA)}, {V(vRS)}',
              f'v_lshrrev_b32 {V(vB)}, 5, {V(vLANE)}', f'v_lshl_add_u32 {V(vB)}, {V(vB)}, 4, {sT[0]}',
              f'v_lshlrev_b32 {V(vA)}, 2, {V(vLANE)}', f'v_add_u32 {V(vA)}, {L_CSQ}, {V(vA)}']
    sKV = sU[3]
    if not first:
        wread(0, [1, 2, 0])
        flag_check(vB, vA, sT[0], L)
        stamp('p1poll')
        for ks in range(OPT.get('p1pre', 12)): xissue(16)
        for p_ in PENDING: p_()
    else:
        ready(0); wread(0, [1, 2, 0]); cread(0)
        stamp('p1x')
        emit(scomb_ops(TT, LY.ST2_OFF, stoks))
        flag_issue(vHV, vHS, '0', SDBG)
        D.adds(xdma_ops(2)); D.adds(wdma_ops(2))
    def fill(b):
        if D.q: b = D.run(b)
        F.run(b)
    for ks in range(32):
        if OPT.get('p1st') and ks % 4 == 0: stamp(f'k{ks}')
        c = lambda a: '0' if ks == 0 else V(a, 16)
        x = xop(ks)
        nparts = [1, 2, 0] if ks + 1 < 16 else [1, 2]
        if ks + 1 < 32: ready(ks + 1)
        A(f'{MFMA} {V(ak,16)}, {V(wreg(ks,1),4)}, {x}, {c(ak)}')
        if ks + 1 < 32: wread(ks + 1, nparts[:1])
        else: wread(16, [0])
        fill(12 - xissue(ks + 16))
        A(f'{MFMA} {V(av,16)}, {x}, {V(wreg(ks,2),4)}, {c(av)}')
        if ks + 1 < 32: wread(ks + 1, nparts[1:2])
        fill(12)
        if ks < 16:
            A(f'{MFMA} {V(aq,16)}, {V(wreg(ks,0),4)}, {x}, {c(aq)}')
            if len(nparts) > 2: wread(ks + 1, nparts[2:])
            fill(12 - xissue(ks + 17))
        if first:
            A(f'{MFMA} {Areg(CSA,16)}, {Areg(ONES,4)}, {Areg(CW + 4*(ks&1),4)}, {"0" if ks == 0 else Areg(CSA,16)}')
            if ks + 1 < 32: cread(ks + 1)
            fill(12)
            if ks % 4 == 3 and ks // 4 + 3 < 8:
                D.flush(); D.adds(xdma_ops(ks // 4 + 3)); D.adds(wdma_ops(ks // 4 + 3))
            if ks == OPT.get('sfk', 7):
                flag_check(vHV, vHS, '0', 1, SDBG, sleep=2)
                sflag(vONE, vZERO, stoks, LY.F_S2)
            if ks == 16: F.adds(sflag_ops)
            if ks == 21: F.flush(); D.flush(); emit(sload_ops); conv_issue(CVR, TT + 24); conv_scalars()
            if ks == 26: F.adds(nm_ops)
            if ks == 30: F.flush()
        else:
            if ks == 10: F.adds(sflag_ops)
            if ks == 15: F.flush(); F.adds(sload_ops)
            if ks == 20: F.adds(nm_ops)
            if ks == 27:
                F.flush()
                for r in (1, 2, 3): A(f'v_mov_b32 {V(CK + r)}, 0'); A(f'v_mov_b32 {V(CV + r)}, 0')
                A(f'ds_read_b32 {V(CK)}, {V(vA)} offset:256'); A(f'ds_read_b32 {V(CV)}, {V(vA)} offset:512'); A(f'ds_read_b32 {V(CV + 2)}, {V(vA)}')
            if ks == 29: A(f'{MFMA} {V(ak,16)}, {V(CK,4)}, {V(NMW,4)}, {V(ak,16)}')
            if ks == 30:
                A(f'{MFMA} {V(av,16)}, {V(NMW,4)}, {V(CV,4)}, {V(av,16)}')
                A(f'{MFMA} {V(aq,16)}, {V(CV+2,4)}, {V(NMW,4)}, {V(aq,16)}')
        if ks == (27 if first else 28):
            F.adds([f's_lshl_b32 {sKV}, {sJ}, 6', f's_add_u32 {sKV}, {sKV}, {sRBG}', f's_lshl_b32 {sKV}, {sKV}, 12',
                    f's_add_u32 {sKV}, {sKV}, {LY.KV_OFF + L*LY.KV_LAYER}',
                    f's_add_u32 {sT[0]}, {sW}, 8', f's_mul_i32 {sT[0]}, {sT[0]}, {KVSLOT}', f's_add_u32 {sT[0]}, {sT[0]}, {L_KV}',
                    f'v_add_u32 {V(vC)}, {sT[0]}, {V(vL16)}'])
            if first:
                F.adds([f'v_mov_b32 {V(TT + r)}, 0' for r in (1, 3, 5, 6, 7)])
                F.adds([f's_min_u32 {sT[1]}, {sW}, 2', f's_lshl_b32 {sT[1]}, {sT[1]}, 8', f's_add_u32 {sT[1]}, {sT[1]}, {L_CSQ}', f'v_add_u32 {V(TT+11)}, {sT[1]}, {V(vL4)}'])
    F.flush()
    assert not xq and not D.q
    if OPT.get('p1st'): stamp('kend')
    RSR = [wreg(0, 1), wreg(0, 2), wreg(1, 1), wreg(1, 2)]
    for g in range(4): F.add(f'ds_read_b128 {V(RSR[g], 4)}, {V(vB)} offset:{32*g}')
    if first:
        WK, WV, WQ = TT, TT + 2, TT + 4
        F.adds([f'v_cmp_gt_u32 vcc, 32, {V(vLANE)}', f'v_accvgpr_read_b32 {V(TT+8)}, {Areg(CSA)}'])
        F.adds(cs_pack_ops(TT + 9, TT + 8, TT + 10))
        F.adds([f'ds_write_b32 {V(TT+11)}, {V(TT+9)}', lambda: (A.wait_lgkm(), A('s_barrier')),
                f'ds_read_b32 {V(WK)}, {V(vA)} offset:256', f'ds_read_b32 {V(WV)}, {V(vA)} offset:512', f'ds_read_b32 {V(WQ)}, {V(vA)}'])
        F.add('s_nop 0', 56)
        F.adds([f'{MFMA} {V(ak,16)}, {V(WK,4)}, {V(NMW,4)}, {V(ak,16)}', f'{MFMA} {V(av,16)}, {V(NMW,4)}, {V(WV,4)}, {V(av,16)}',
                f'{MFMA} {V(aq,16)}, {V(WQ,4)}, {V(NMW,4)}, {V(aq,16)}'])
    kvtok = []
    for acc, isv in ((ak, False), (av, True)):
        for half in range(2):
            for r in range(8 * half, 8 * half + 8):
                sc = V(RSR[r >> 2] + (r & 3)) if isv else V(vRS)
                F.add(f'v_mul_f32 {V(acc+r)}, {V(acc+r)}, {sc}')
            for r in range(8 * half, 8 * half + 8, 2):
                F.add(f'v_cvt_pk_bf16_f32 {V(acc + r//2)}, {V(acc+r)}, {V(acc+r+1)}')
            f = 2 * isv + half
            F.add(lambda acc=acc, half=half, f=f: kvtok.append(A(f'buffer_store_dwordx4 {V(acc + 4*half, 4)}, {V(vL16)}, {SWS}, {sKV} offen offset:{1024*f} sc1')))
    for f, reg in enumerate((ak, ak + 4, av, av + 4)): F.add(f'ds_write_b128 {V(vC)}, {V(reg, 4)} offset:{1024*f}')
    T = ak + 8
    F.adds([f'v_min_u32 {V(vA)}, 11, {V(vLANE)}', f's_lshl_b32 {sT[1]}, {sC}, 2', f'v_add_u32 {V(vS2)}, {sT[1]}, {V(vA)}',
            f'v_mov_b32 {V(T)}, 0x3f803f80', f'v_cmp_le_u32 vcc, 8, {V(vS2)}',
            f'v_mul_u32_u24 {V(vA)}, {KVSLOT}, {V(vA)}', f'v_add_u32 {V(vA)}, {L_KV + 4096}, {V(vA)}',
            f'v_cndmask_b32 {V(T)}, 0, {V(T)}, vcc'] + [f'v_mov_b32 {V(T+r)}, {V(T)}' for r in range(1, 4)] +
           [f'ds_write_b128 {V(vA)}, {V(T,4)}',
            f's_lshl_b32 {sT[0]}, {sJ}, 7', f's_lshl2_add_u32 {sT[0]}, {sW}, {sT[0]}', f's_add_u32 {sT[0]}, {sT[0]}, {sFB}', f's_add_u32 {sT[0]}, {sT[0]}, {LY.F_KV}',
            f's_add_u32 {sT[1]}, {sXCC}, {(L + 1) << 8}',
            f'v_mov_b32 {V(vS1)}, {sT[1]}', f'v_mov_b32 {V(vC)}, 0', f'v_mul_f32 {V(vNM)}, {f32(0.25 * LOG2E)}, {V(vRS)}'])
    for ks in range(16, 32):
        if ks + 1 < 32: wread(ks + 1, [0])
        A(f'{MFMA} {V(aq,16)}, {V(wreg(ks,0),4)}, {xop(ks)}, {V(aq,16)}')
        F.run(OPT.get('qtb', 56) if len(kvtok) < 4 else 16)
    F.flush()
    if OPT.get('p1st'): stamp('qtail')
    emit([f'v_pk_mul_f32 {V(aq+r,2)}, {V(aq+r,2)}, {V(vNM,2)} op_sel_hi:[1,0]' for r in range(0, 16, 2)] +
         [f'v_cvt_pk_bf16_f32 {V(P2Q + r//2)}, {V(aq+r)}, {V(aq+r+1)}' for r in range(0, 16, 2)])
    if first: emit(conv_tr)
    A.wait_vm(kvtok[-1]); flag_set(vS1, vC, sT[0], fastok=False)
    if first:
        emit(conv_st); conv_last()
        L0.update(cvtok=cvtok, vONE=vONE, vZERO=vZERO, vWF=vWF, vWV=vWV, vPT=vPT, vL4=vL4)
    stamp('p1end')

def cs_final_ops(T, n, dst_lds):
    ops = []
    while n > 1:
        n //= 2
        ops += [f'v_add_f32 {V(T+i)}, {V(T+i)}, {V(T+n+i)}' for i in range(n)]
    ops += [f'v_mov_b32 {V(T+1)}, {V(T)}', f'v_cmp_gt_u32 vcc, 32, {V(vLANE)}', f'v_lshl_add_u32 {V(T+3)}, {V(vLANE)}, 2, {dst_lds}',
            f'v_permlane32_swap_b32 {V(T+1)}, {V(T)}', f'v_add_f32 {V(T)}, {V(T)}, {V(T+1)}']
    return ops + cs_pack_ops(T + 1, T, T + 2) + [f'ds_write_b32 {V(T+3)}, {V(T+1)}']

def p2(L):
    first = (L == 0)
    vKA, vV0, vV1, vPM, vA, vB, vC, vD = vP
    vVA = [vV0, vV1]
    sKVB, sO, sHF, sHD = sU[0], sU[1], sU[2], sU[3]
    A(f's_lshr_b32 {sT[0]}, {sW}, 1'); A(f's_add_u32 {sT[0]}, {sT[0]}, {sC}'); A(f's_sub_u32 {sT[0]}, {sT[0]}, 2')
    A(f's_and_b32 {sT[1]}, {sW}, 1'); A(f's_lshl_b32 {sT[1]}, {sT[1]}, 1')
    A(f's_lshl_b32 {sHF}, {sT[0]}, 13'); A(f's_lshl_b32 {sT[2]}, {sJ}, 7'); A(f's_add_u32 {sHF}, {sHF}, {sT[2]}')
    A(f's_lshl2_add_u32 {sHF}, {sT[1]}, {sHF}'); A(f's_add_u32 {sHF}, {sHF}, {LY.F_KV}')
    A(f's_lshl2_add_u32 {sT[1]}, {sT[0]}, {sT[1]}'); A(f's_lshl_b32 {sT[2]}, {sJ}, 6'); A(f's_add_u32 {sT[1]}, {sT[1]}, {sT[2]}')
    A(f's_lshl_b32 {sHD}, {sT[1]}, 12'); A(f's_add_u32 {sHD}, {sHD}, {LY.KV_OFF + L*LY.KV_LAYER}')
    A(f'v_and_b32 {V(vA)}, 1, {V(vLANE)}'); A(f'v_lshlrev_b32 {V(vA)}, 2, {V(vA)}')
    skip = A.newlabel('Lnohalo'); go = A.newlabel('Lhalo')
    A(f's_cmp_lt_i32 {sT[0]}, 0'); A(f's_cbranch_scc1 {skip}')
    poll(vB, vA, sHF, (L + 1) << 8)
    A(f's_branch {go}')
    A.label(skip)
    A(f's_mov_b32 {sHD}, 0x7ff00000')
    A.raw('    s_waitcnt vmcnt(0)')
    A.label(go)
    stamp('halopoll')
    A(f's_mul_i32 {sT[0]}, {sW}, {2*KVSLOT}'); A(f's_add_u32 {sT[0]}, {sT[0]}, {L_KV}')
    for b in range(2):
        A(f's_mov_b32 m0, {sT[0]}')
        for f in range(4):
            t = A(f'buffer_load_dwordx4 {V(vL16)}, {SWS}, {sHD} offen offset:{1024*f} sc1 lds')
        A(f's_add_u32 {sT[0]}, {sT[0]}, {KVSLOT}'); A(f's_add_u32 {sHD}, {sHD}, 4096')
    A(f's_mul_i32 {sKVB}, {sW}, {KVSLOT}'); A(f's_add_u32 {sKVB}, {sKVB}, {L_KV}')
    A(f'v_add_u32 {V(vKA)}, {sKVB}, {V(vL16)}')
    A(f'v_add_u32 {V(vPM)}, {L_PMASK}, {V(vL16)}')
    A(f's_add_u32 {sKVB}, {sKVB}, 4096')
    def vaddr_ops(hd, f):
        return [f'v_bfe_u32 {V(vA)}, {V(vLANE)}, 4, 1', f'v_cmp_eq_u32 vcc, {hd}, {V(vA)}', f'v_mov_b32 {V(vA)}, {sKVB}',
                f'v_add_u32 {V(vB)}, {2048 + 1024*f}, {V(vKA)}', f'v_cndmask_b32 {V(vVA[f])}, {V(vA)}, {V(vB)}, vcc']
    emit(vaddr_ops(0, 0)); emit(vaddr_ops(0, 1))
    A(f's_lshl_b32 {sO}, {sRBG}, 15'); A(f's_lshl_b32 {sT[1]}, {sJ}, 11'); A(f's_add_u32 {sO}, {sO}, {sT[1]}'); A(f's_add_u32 {sO}, {sO}, {LY.O_OFF}')
    BG = Fill()
    for g_ in range(1, 4): BG.adds(wo_load_ops(g_))
    if first:
        A(f'v_lshrrev_b32 {V(P2P)}, 2, {V(vLANE)}'); A(f'v_lshlrev_b32 {V(P2P)}, 7, {V(P2P)}'); A(f'v_and_b32 {V(P2P+1)}, 3, {V(vLANE)}')
        A(f'v_lshl_add_u32 {V(P2O)}, {V(P2P+1)}, 2, {V(P2P)}')
        A(f's_add_u32 {sHF}, {sFB}, {LY.F_KV}')
        flag_issue(P2O + 1, P2O, sHF)
        flag_set(L0['vONE'], L0['vZERO'], sU[9], fastok=False, imm=2048)
        A(f'buffer_load_dword a35, {V(L0["vPT"])}, {SWS}, 0 offen sc1')
        BG.q[0:0] = [(o, 4) for o in [f's_lshl2_add_u32 {sT[3]}, {sJ}, {sW}', f's_min_u32 {sT[3]}, {sT[3]}, 55', f's_lshl_b32 {sT[3]}, {sT[3]}, 10', f's_add_u32 {sT[3]}, {sT[3]}, {LY.CS1_OFF}'] +
                     [f'buffer_load_dword {V(244+t_)}, {V(L0["vL4"])}, {SWS}, {sT[3]} offen offset:{256*t_} sc1' for t_ in range(4)]]
        for ks in range(min(W1EARLY, 24)): BG.adds(w1_load_ops(ks))
        BG.adds([f's_lshl_b32 {sT[2]}, {sW}, 8', f's_add_u32 {sT[2]}, {sT[2]}, {L_CS1}'])
        BG.add(lambda: emit(cs_final_ops(244, 4, sT[2])))
        for ks in range(24, W1EARLY): BG.adds(w1_load_ops(ks))
        for t_ in range(W2EARLY): BG.adds(w2_load_ops(t_))
    A.wait_vm(t); A.wait_lgkm(); A('s_barrier')
    stamp('halodma')
    Sb = [P2SA, P2SB]
    units = []
    for hd in range(2): units += [(hd, 'm', 8)] + [(hd, 'f', d) for d in range(1, 8)]
    kread = lambda hd, d: A(f'ds_read_b128 {V(P2K,4)}, {V(vKA)} offset:{d*KVSLOT + 1024*hd}')
    vread = lambda f, d, base: A(f'ds_read_b128 {V(base,4)}, {V(vVA[f])} offset:{d*KVSLOT}')
    qk = lambda hd, s: A(f'{MFMA} {V(s,16)}, {V(P2K,4)}, {V(P2Q + 4*hd, 4)}, 0')
    def pv(vb, pb, start=False):
        A(f'{MFMA} {V(P2O,16)}, {V(vb,4)}, {V(pb,4)}, {"0" if start else V(P2O,16)}')
    otok = []
    def o_epilogue_ops(hd, tmp):
        ob, lb = (P2O, P2O + 8) if hd == 0 else (P2O + 8, P2O)
        ops = [f'v_rcp_f32 {V(vA)}, {V(lb)}', f's_nop 0']
        ops += [f'v_mul_f32 {V(ob+r)}, {V(ob+r)}, {V(vA)}' for r in range(8)]
        ops += [f'v_cvt_pk_bf16_f32 {V(tmp + r//2)}, {V(ob+r)}, {V(ob+r+1)}' for r in range(0, 8, 2)]
        ops.append(lambda: otok.append(store_dual([f'buffer_store_dwordx4 {V(tmp,4)}, {V(vL16)}, {SWS}, {sO} offen offset:{1024*hd}'])))
        return ops
    kread(0, 8); qk(0, Sb[0]); kread(0, 0); qk(0, P2SC); kread(0, 1)
    vread(0, 8, P2V); vread(1, 8, P2V + 4)
    if first:
        flag_check(P2O + 1, P2O, sHF, 256)
        A(f'v_and_b32 {V(P2O+1)}, 255, {V(P2O+1)}'); A(f'v_cmp_ne_u32 vcc, {sXCC}, {V(P2O+1)}')
        A(f's_cmp_eq_u64 vcc, 0'); A(f's_cselect_b32 {sFAST}, {0 if FORCE_SLOW else 1}, 0')
    bgb = 0 if first else 4
    pendPV1 = None
    for n, (hd, kind, d) in enumerate(units):
        if OPT.get('p2st') and L == 1 and n % 2 == 0: stamp(f'u{n}')
        s = Sb[n & 1]; nxt = Sb[(n + 1) & 1]
        nu = units[n + 1] if n + 1 < len(units) else None
        nu2 = units[n + 2] if n + 2 < len(units) else None
        E = lambda r: A(f'v_exp_f32 {V(s+r)}, {V(s+r)}')
        C = lambda t: A(f'v_cvt_pk_bf16_f32 {V(P2P + t)}, {V(s+2*t)}, {V(s+2*t+1)}')
        def posA():
            if pendPV1:
                pv(*pendPV1)
            if n > 0:
                if nu is not None or True:
                    if kind == 'm': emit(vaddr_ops(hd, 1))
                    vread(1, d, P2V + 4)
        def posB():
            if nu:
                qk(nu[0], nxt)
                if nu[1] == 'm': kread(nu[0], 0)
                elif nu2: kread(nu2[0], nu2[2])
        def posB2():
            if nu and nu[1] == 'm':
                qk(nu[0], P2SC); kread(nu2[0], nu2[2])
        def posC_next_v0():
            if nu:
                if nu[1] == 'm': emit(vaddr_ops(nu[0], 0))
                vread(0, nu[2], P2V)
        if kind == 'f':
            E(0); E(1); posA(); E(2); E(3); C(0); E(4); E(5); BG.run(bgb); C(1); posB(); E(6); E(7); C(2); E(8); C(3); E(9); E(10)
            pv(P2V, P2P); posC_next_v0()
            E(11); C(4); E(12); E(13); BG.run(bgb); C(5); posB2(); E(14); E(15); C(6); BG.run(bgb); C(7)
            pendPV1 = (P2V + 4, P2P + 4)
        else:
            M = lambda r: A(f'v_cndmask_b32 {V(s+r)}, {V(P2SC+r)}, {V(s+r)}, s[{SMASK0+2*r}:{SMASK0+2*r+1}]')
            M(0); M(1); posA()
            for r in range(2, 16): M(r)
            A(f'ds_read_b128 {V(P2SC,4)}, {V(vPM)}'); A(f'ds_read_b128 {V(P2SC+4,4)}, {V(vPM)} offset:1024')
            vread(0, 0, P2SC + 8); vread(1, 0, P2SC + 12)
            posB()
            if hd == 1: emit(o_epilogue_ops(0, P2K + 0) if False else o_epilogue_ops(0, P2O + 8))
            E(0); E(1); E(2); E(3); C(0); E(4); E(5); C(1); E(6); E(7); C(2); E(8); C(3); E(9)
            for t in range(4): A(f'v_and_b32 {V(P2SC+t)}, {V(P2SC+t)}, {V(P2P+t)}')
            E(10); E(11)
            pv(P2V, P2SC, start=True); posC_next_v0()
            for t in range(4): A(f'v_xor_b32 {V(P2P+t)}, {V(P2SC+t)}, {V(P2P+t)}')
            C(4); E(12); E(13)
            pv(P2SC + 8, P2P)
            C(5); E(14); E(15); C(6); BG.run(bgb); C(7)
            for t in range(4, 8): A(f'v_and_b32 {V(P2SC+t)}, {V(P2SC+t)}, {V(P2P+t)}')
            for t in range(4, 6): A(f'v_xor_b32 {V(P2P+t)}, {V(P2SC+t)}, {V(P2P+t)}')
            pv(P2V + 4, P2SC + 4)
            for t in range(6, 8): A(f'v_xor_b32 {V(P2P+t)}, {V(P2SC+t)}, {V(P2P+t)}')
            pendPV1 = (P2SC + 12, P2P + 4)
        if first and n == OPT.get('wfi', 2): flag_issue(L0['vWV'], L0['vWF'], '0')
        if first and n == OPT.get('wfc', 5):
            flag_check(L0['vWV'], L0['vWF'], '0', 1, sleep=2); bgb = OPT.get('bgb', 8)
        if n == 9:
            BG.q[0:0] = [(o, 4) for o in wo_load_ops(0)]
    pv(*pendPV1)
    BG.flush()
    A(f's_lshl_b32 {sT[0]}, {sW}, 6'); A(f's_lshl2_add_u32 {sT[0]}, {sJ}, {sT[0]}'); A(f's_add_u32 {sT[0]}, {sT[0]}, {sFB}')
    A(f'v_mov_b32 {V(vB)}, {L + 1}'); A(f'v_mov_b32 {V(vD)}, 0')
    emit(o_epilogue_ops(1, P2SA))
    A('s_barrier')
    return dict(flag=(vB, vD, sT[0]), tok=otok)

def red_addr_ops(vw, vr, area):
    ops = []
    for q in (1, 2, 3):
        ops += [f's_xor_b32 {sT[7]}, {sW}, {q}', f's_mul_i32 {sT[7]}, {sT[7]}, 6144', f's_add_u32 {sT[7]}, {sT[7]}, {area + (q-1)*2048}',
                f'v_add_u32 {V(vw + q - 1)}, {sT[7]}, {V(vL16)}']
    ops += [f's_mul_i32 {sT[7]}, {sW}, 6144', f's_add_u32 {sT[7]}, {sT[7]}, {area}', f'v_add_u32 {V(vr)}, {sT[7]}, {V(vL16)}']
    return ops
def send_ops(acc, vw, off):
    return [f'ds_write_b128 {V(vw + q - 1)}, {V(acc + 8*q + 4*h, 4)} offset:{off + 1024*h}' for q in (1, 2, 3) for h in range(2)]
def recv_ops(dst, vr, off):
    return [f'ds_read_b128 {V(dst + 4*k, 4)}, {V(vr)} offset:{off + 1024*k}' for k in range(6)]
def unpack_ops(dst, X):
    ops = []
    for t in range(4):
        ops += [f'v_lshlrev_b32 {V(dst + 2*t)}, 16, {V(vRES + 4*X + t)}', f'v_and_b32 {V(dst + 2*t + 1)}, 0xffff0000, {V(vRES + 4*X + t)}']
    return ops
def add8_ops(y, a, b, pk):
    if pk: return [f'v_pk_add_f32 {V(y+r,2)}, {V(a+r,2)}, {V(b+r,2)}' for r in range(0, 8, 2)]
    return [f'v_add_f32 {V(y+r)}, {V(a+r)}, {V(b+r)}' for r in range(8)]

def finish_ops(y, part, X, pk, sxo, toks, last=False, vout=None):
    ops = add8_ops(part, part, part + 8, pk) + add8_ops(y, y, part + 16, pk) + add8_ops(y, y, part, pk)
    ops += [f'v_cvt_pk_bf16_f32 {V(vRES + 4*X + r//2)}, {V(y+r)}, {V(y+r+1)}' for r in range(0, 8, 2)]
    if last:
        ops.append(lambda: toks.append(A(f'buffer_store_dwordx4 {V(vRES + 4*X, 4)}, {V(vout)}, {SOUT}, {sxo} offen')))
        return ops
    ops.append(lambda: toks.append(store_dual([f'buffer_store_dwordx4 {V(vRES + 4*X, 4)}, {V(vL16)}, {SWS}, {sxo} offen'])))
    return ops + spart_ops(y, part, X, pk)

def out_scalars_ops(sxo, sfl, xoff, foff):
    return [f's_lshl2_add_u32 {sT[6]}, {sC}, {sRH}', f's_lshl2_add_u32 {sT[7]}, {sCB}, {sW}',
            f's_lshl_b32 {sxo}, {sT[6]}, 5', f's_add_u32 {sxo}, {sxo}, {sT[7]}', f's_lshl_b32 {sxo}, {sxo}, 10', f's_add_u32 {sxo}, {sxo}, {xoff}',
            f's_lshl_b32 {sfl}, {sRH}, 5', f's_add_u32 {sfl}, {sfl}, {sT[7]}', f's_lshl2_add_u32 {sfl}, {sfl}, {sFB}', f's_add_u32 {sfl}, {sfl}, {foff}']

def ffn(L, otok, oflag):
    first = (L == 0); last = (L == 1)
    vRW, vRR, vFA, vON, vF, vZ = vP[0], vP[3], vP[4], vP[5], vP[6], vP[7]
    assert (vON, vZ) == oflag[:2]
    sXO, sFL, sSA, sSB, sPF = sU[0], sU[2], sU[3], sU[4], sU[5]
    sXS, sLD, sHO, sHFL, sST, sSF = sU[1], sU[6], sU[7], sU[8], sU[9], sU[13]
    def p4_scalars():
        A(f's_lshl_b32 {sXS}, {sC}, 17'); A(f's_lshl_b32 {sT[2]}, {sW}, 11'); A(f's_add_u32 {sXS}, {sXS}, {sT[2]}'); A(f's_add_u32 {sXS}, {sXS}, {LY.X1_OFF}')
        A(f's_add_u32 {sLD}, {sT[2]}, {L_S}')
        A(f's_mul_i32 {sHO}, {sC}, {4*112*1024}'); A(f's_lshl2_add_u32 {sT[3]}, {sJ}, {sW}'); A(f's_lshl_b32 {sT[2]}, {sT[3]}, 11')
        A(f's_add_u32 {sHO}, {sHO}, {sT[2]}'); A(f's_add_u32 {sHO}, {sHO}, {LY.H_OFF}')
        A(f's_lshl2_add_u32 {sHFL}, {sT[3]}, {sFB}')
        A(f's_cmp_ge_u32 {sJ}, 14'); A(f's_cselect_b32 {sXS}, 0x70000000, {sXS}'); A(f's_cselect_b32 {sHO}, 0x70000000, {sHO}')
        A(f's_lshl_b32 {sST}, {sRBG}, 11'); A(f's_add_u32 {sST}, {sST}, {LY.ST1_OFF}')
        A(f's_lshl_b32 {sSF}, {sW}, 5'); A(f's_add_u32 {sSF}, {sSF}, {sFB}'); A(f's_add_u32 {sSF}, {sSF}, {LY.F_S1}')
    A(f'v_bfe_u32 {V(vFA)}, {V(vLANE)}, 2, 1'); A(f'v_lshlrev_b32 {V(vFA)}, 7, {V(vFA)}')
    A(f'v_and_b32 {V(vF)}, 3, {V(vLANE)}'); A(f'v_lshl_add_u32 {V(vFA)}, {V(vF)}, 2, {V(vFA)}')
    A(f's_lshl_b32 {sPF}, {sRH}, 6'); A(f's_lshl_b32 {sT[1]}, {sW}, 4'); A(f's_add_u32 {sPF}, {sPF}, {sT[1]}'); A(f's_add_u32 {sPF}, {sPF}, {sFB}')
    A(f's_lshl2_add_u32 {sSA}, {sC}, {sRH}'); A(f's_lshl_b32 {sSA}, {sSA}, 15'); A(f's_lshl_b32 {sT[1]}, {sW}, 13'); A(f's_add_u32 {sSA}, {sSA}, {sT[1]}')
    A(f's_add_u32 {sSA}, {sSA}, {LY.O_OFF}'); A(f's_add_u32 {sSB}, {sSA}, 65536'); A(f's_add_u32 {sT[4]}, {sSA}, 4096'); A(f's_add_u32 {sT[5]}, {sSB}, 4096')
    emit(red_addr_ops(vRW, vRR, L_S))
    emit(out_scalars_ops(sXO, sFL, LY.X1_OFF, LY.F_X1))
    A.wait_vm(otok[-1]); flag_set(*oflag, imm=LY.F_O)
    stamp('p2end')
    p4_scalars()
    poll(vF, vFA, sPF, L + 1)
    stamp('p3poll')
    ACC = 20
    slot = {}
    def oload(n, base):
        X, i = divmod(n, 8); slot[n] = base
        so = [[sSA, sT[4]], [sSB, sT[5]]][X][i >> 2]
        A(f'buffer_load_dwordx4 {V(base,4)}, {V(vL16)}, {SWS}, {so} offen offset:{(i & 3)*1024} sc1')
    for n in range(11): oload(n, 52 + 4 * n)
    A(f'v_lshlrev_b32 {V(vFA)}, 2, {V(vLANE)}')
    A(f's_add_u32 {sPF}, {sFB}, {LY.F_X1}')
    F = Fill()
    tokA, tokB, stA, stB = [], [], [], []
    yA = 72
    for n in range(16):
        X, i = divmod(n, 8)
        if n == 8:
            emit(unpack_ops(yA, 0)); emit(send_ops(ACC, vRW, 0)); emit(add8_ops(yA, yA, ACC, True))
            A.wait_lgkm()
        for nh in range(2):
            A(f'{MFMA} {V(ACC + 16*nh, 16)}, {WOREG(i, nh)}, {V(slot[n],4)}, {"0" if i == 0 else V(ACC + 16*nh, 16)}')
            if n == 8 and nh == 0: A('s_barrier')
            F.run(24)
        if n < 5: oload(11 + n, slot[n])
        if first and n == 5:
            for ks in range(W1EARLY, 32): F.adds(w1_load_ops(ks))
        if n == 10:
            F.adds(recv_ops(96, vRR, 0)); F.adds(finish_ops(yA, 96, 0, False, sXO, tokA))
    if OPT.get('p3st'): stamp('p3m')
    yB = 52
    emit(unpack_ops(yB, 1)); F.run(16)
    emit(send_ops(ACC, vRW, 24576)); emit(add8_ops(yB, yB, ACC, True))
    F.flush()
    A(f's_add_u32 {sXO}, {sXO}, 65536')
    A.wait_lgkm(); A('s_barrier')
    emit(recv_ops(124, vRR, 24576))
    A.wait_vm(tokA[-1]); flag_set(vON, vZ, sFL)
    emit(finish_ops(yB, 124, 1, True, sXO, tokB))
    flag_issue(vF, vFA, sPF)
    A.wait_lgkm(); A('s_barrier')
    emit(scomb_ops(100, LY.ST1_OFF, stA))
    stamp('p3end')
    if STOP <= 5 * L + 3:
        A.wait_vm(); return False
    ACC4 = [20, 36]; XR = 52; NXR = 8; CSW = 84; NMW = 88; NMS = 92; SA = 96; E = 100; HP = 116
    vXA, vSA, vNL, vSF = vP[0], vP[1], vP[2], vP[3]
    A(f'v_add_u32 {V(vXA)}, {L_S}, {V(vL16)}')
    A(f'v_mov_b32 {V(vNL)}, {f32(-LOG2E)}')
    emit(stat_addr_ops(vSA, vSF))
    A(f'v_and_b32 {V(vSF)}, 7, {V(vLANE)}'); A(f'v_lshlrev_b32 {V(vSF)}, 2, {V(vSF)}')
    for r in (1, 2, 3, 5, 6, 7): A(f'v_mov_b32 {V(CSW + r)}, 0')
    A(f's_lshl_b32 {sT[7]}, {sW}, 8'); A(f's_add_u32 {sT[7]}, {sT[7]}, {L_CS1}'); A(f'v_lshl_add_u32 {V(94)}, {V(vLANE)}, 2, {sT[7]}')
    NS = 6; tok = {}
    def dma_m0(s): A(f's_add_u32 m0, {sLD}, {(s % NS) * 8192}')
    def dma1(s, f):
        tok[s] = A(f'buffer_load_dwordx4 {V(vL16)}, {SWS}, {sXS} offen offset:{1024*f} sc1 lds')
        if f == 1: A(f's_add_u32 {sXS}, {sXS}, 8192')
    def start_dma():
        flag_check(vF, vFA, sPF, L + 1)
        for s in range(4): dma_m0(s); dma1(s, 0); dma1(s, 1)
    A(f'ds_read_b32 {V(CSW)}, {V(94)}')
    A.wait_vm(tokB[-1]); flag_set(vON, vZ, sFL, imm=256)
    start_dma()
    sflag(vON, vZ, stA, LY.F_S1)
    stamp('p4poll')
    LA = 6
    xr = lambda n: V(XR + 4 * (n % NXR), 4)
    xtok = {}
    def xread(n):
        s, t = divmod(n, 8); c = 4
        if t == 0:
            A.wait_vm(tok[s]); A('s_barrier'); c += 8
        nd = None
        if s + 4 < 16:
            if t == 1: nd = (s + 4, 0)
            if t == 5: nd = (s + 4, 1)
        if nd and nd[1] == 0: dma_m0(nd[0])
        xtok[n] = A(f'ds_read_b128 {xr(n)}, {V(vXA)} offset:{(s % NS) * 8192 + t * 1024}')
        if nd: dma1(*nd); c += 8
        return c
    htok = {}
    def epi_ops(rb):
        a = ACC4[rb & 1]; sa = SA + rb
        st = [[f'v_mul_f32 {V(a+r)}, {V(a+r)}, {V(sa)}' for r in range(16)],
              [f'v_exp_f32 {V(E+r)}, {V(a+r)}' for r in range(16)],
              [f'v_fma_f32 {V(E+r)}, {V(E+r)}, {V(vNL)}, {V(vNL)}' for r in range(16)],
              [f'v_rcp_f32 {V(E+r)}, {V(E+r)}' for r in range(16)],
              [f'v_mul_f32 {V(a+r)}, {V(a+r)}, {V(E+r)}' for r in range(16)]]
        ops = []
        for step in range(16 + 2 * 5):
            for k in range(5):
                r = step - 2 * k
                if 0 <= r < 16: ops.append(st[k][r])
            r = step - 10
            if 0 <= r < 16 and r & 1:
                ops.append(f'v_cvt_pk_bf16_f32 {V(HP + r//2)}, {V(a+r-1)}, {V(a+r)}')
        def hstore():
            lines = [f'buffer_store_dwordx4 {V(HP + 4*f, 4)}, {V(vL16)}, {SWS}, {sHO} offen offset:{1024*f}' for f in range(2)]
            if OPT.get('hsc1', 1) >> L & 1:
                for l_ in lines: htok[rb] = A(l_ + ' sc1')
            else: htok[rb] = store_dual(lines)
            A(f's_add_u32 {sHO}, {sHO}, {112*1024}')
        return ops, hstore
    def hflag(rb):
        A.wait_vm(htok[rb]); flag_set(vON, vZ, sHFL, imm=LY.F_H + 256 * rb)
    sHA, sHB, sP5F = sU[3], sU[4], sU[14]
    p5setup = [f's_lshl2_add_u32 {sHA}, {sC}, {sRH}', f's_mul_i32 {sHA}, {sHA}, {112*1024}', f's_mul_i32 {sT[6]}, {sW}, {28*1024}',
               f's_add_u32 {sHA}, {sHA}, {sT[6]}', f's_add_u32 {sHA}, {sHA}, {LY.H_OFF}', f's_add_u32 {sHB}, {sHA}, {2*112*1024}',
               f's_lshl_b32 {sP5F}, {sRH}, 8', f's_mul_i32 {sT[6]}, {sW}, 56', f's_add_u32 {sP5F}, {sP5F}, {sT[6]}', f's_add_u32 {sP5F}, {sP5F}, {sFB}',
               f's_add_u32 {sP5F}, {sP5F}, {LY.F_H}',
               f'v_min_u32 {V(vFA)}, 13, {V(vLANE)}', f'v_lshlrev_b32 {V(vFA)}, 2, {V(vFA)}']
    if last: p5setup += own_tile_rowmajor(sXO)
    else: p5setup += out_scalars_ops(sXO, sFL, LY.X2_OFF, LY.F_X2)
    free = [132 + 4 * k for k in range(7)] + [124, 128]
    hslot = {}; hnext = [0]; hlimit = [0]
    def hload():
        n = hnext[0]
        if n >= hlimit[0] or not free: return False
        X, i = divmod(n, 28); so = [sHA, sHB][X]; b = free.pop(0); hslot[n] = b; hnext[0] += 1
        A(f'buffer_load_dwordx4 {V(b,4)}, {V(vL16)}, {SWS}, {so} offen offset:{(i & 3)*1024} sc1')
        if i & 3 == 3: A(f's_add_u32 {so}, {so}, 4096')
        return True
    F = Fill(); BG = Fill()
    if first:
        for t_ in range(W2EARLY, 56): BG.adds(w2_load_ops(t_))
    for n in range(LA): xread(n)
    A(f's_add_u32 {sPF}, {sPF}, 256')
    delayed = {}
    S1, S2 = HP, HP + 1
    F.adds(p5setup[:-2 - (5 if last else 10)])
    for n in range(128):
        rb, ks = divmod(n, 32); a = ACC4[rb & 1]
        if n == OPT.get('nsi', 3): F.q.insert(0, ((lambda: flag_issue(vF, vSF, sSF)), 4))
        if n == OPT.get('nsc', 11):
            flag_check(vF, vSF, sSF, L + 1)
            for o in stat_load_ops(E, E + 4, vSA, sST): F.add(o, 12)
            F.add(lambda: flag_issue(vF, vFA, sPF), 12)
            F.adds([f's_lshl_b32 {sT[0]}, {sW}, 8', f's_add_u32 {sT[0]}, {sT[0]}, {L_STAT}',
                    f'v_and_b32 {V(vSF)}, 31, {V(vLANE)}', f'v_lshlrev_b32 {V(vSF)}, 2, {V(vSF)}', f'v_add_u32 {V(E+8)}, {sT[0]}, {V(vSF)}', f'v_add_u32 {V(vSF)}, {L_STAT}, {V(vSF)}'])
        if n == OPT.get('nsr', 24):
            F.adds(stat_reduce_ops(E, E + 4, S1, S2))
            F.adds(stats_finish_ops(S1, S2, E, E + 1, E + 2, E + 3)); F.adds(split_pack_ops(E + 2, E + 2, E))
            F.adds([f'v_mul_f32 {V(E+3)}, {V(vNL)}, {V(E+3)}', f'ds_write2_b32 {V(E+8)}, {V(E+2)}, {V(E+3)} offset0:0 offset1:32'])
        if n == 26: flag_check(vF, vFA, sPF, L + 1); F.adds(p5setup[-2 - (5 if last else 10):])
        if n == 34: F.flush(); A.wait_lgkm()
        if ks == 0 and rb > 1: F.flush()
        if OPT.get('p4st') and L == OPT.get('stl', 1) and n % 8 == 0: stamp(f'b{n}')
        if n % 2 == 0 and n + 1 in xtok: A.wait_lgkm(xtok[n + 1])
        A(f'{MFMA} {V(a,16)}, {W1REG(ks)}, {xr(n)}, {"0" if ks == 0 else V(a,16)}')
        used = 2
        if n + LA < 128: used += xread(n + LA)
        if n == 34:
            A(f'ds_read_b32 {V(NMW)}, {V(vSF)}')
            A(f'ds_read2st64_b32 {V(NMS,2)}, {V(vSF)} offset0:0 offset1:1'); A(f'ds_read2st64_b32 {V(NMS+2,2)}, {V(vSF)} offset0:2 offset1:3')
            A(f'ds_read2_b32 {V(SA,2)}, {V(vSF)} offset0:32 offset1:96'); A(f'ds_read2_b32 {V(SA+2,2)}, {V(vSF)} offset0:160 offset1:224')
            used = 26
        if n == 36: A(f'{MFMA} {V(ACC4[0],16)}, {V(CSW,4)}, {V(NMW,4)}, {V(ACC4[0],16)}')
        if rb > 0 and ks == 28: A(f'v_mov_b32 {V(NMW)}, {V(NMS + rb)}'); used += 4
        if rb > 0 and ks == 30:
            F.run(16); A(f'{MFMA} {V(a,16)}, {V(CSW,4)}, {V(NMW,4)}, {V(a,16)}'); used = 2
        if (ks == 2 and rb > 1) or n == 38:
            ops, hs = epi_ops(rb - 1); F.adds(ops); F.add(hs, 20)
            F.add(lambda rb=rb: delayed.__setitem__('h', rb - 1), 0)
        if 'h' in delayed:
            delayed[n + (OPT.get('hdel', 22) if OPT.get('hsc1', 1) >> L & 1 else 16)] = delayed.pop('h')
        if n in delayed: F.q.insert(0, ((lambda r=delayed[n]: hflag(r)), 20))
        if n == OPT.get('p5i', 112): F.q.insert(0, ((lambda: flag_issue(vF, vFA, sP5F)), 4))
        if n == OPT.get('p5c', 122):
            flag_check(vF, vFA, sP5F, L + 1); hlimit[0] = 28
        F.run(OPT.get('p4b', 26) - used)
        if first and n % 2 == 1 and (n + LA) % 4 == 3: BG.run(8)
        if first and n % 4 == 0: BG.run(4)
        if hlimit[0]: hload()
    F.flush(); BG.flush()
    pend_flags = [delayed[x] for x in delayed if isinstance(x, int) and x >= 128] + ([delayed['h']] if 'h' in delayed else [])
    stamp('p4main')
    free += [20, 24, 28, 32]
    while hload(): pass
    A5 = [52, 84]
    ops, hs = epi_ops(3); F.adds(ops); F.add(hs, 20)
    marks = {}
    F.add(lambda: marks.__setitem__('e', 1), 0)
    vRW, vRR, vOUT = vP[0], vP[3], vFA
    tokA, tokB, stA, stB = [], [], [], []
    hf_at = None; bchk = None
    for n in range(56):
        X, i = divmod(n, 28); a = A5[X]
        if OPT.get('p5st') and L == OPT.get('stl', 1) and n % 7 == 0: stamp(f'c{n}')
        if n == 9:
            for r in pend_flags: hflag(r)
        if n == 20: A('s_barrier')
        if n == 28: F.flush()
        for nh in range(2):
            A(f'{MFMA} {V(a + 16*nh, 16)}, {W2REG(i, nh)}, {V(hslot[n],4)}, {"0" if i == 0 else V(a + 16*nh, 16)}')
            F.run(OPT.get('p5b', 28) if X == 0 else 20)
        free.append(hslot[n])
        if 'e' in marks and hf_at is None:
            hf_at = n + (OPT.get('hdel5', 9) if OPT.get('hsc1', 1) >> L & 1 else 5)
            free += [36, 40, 44, 48]
            F.adds(red_addr_ops(vRW, vRR, L_S))
            F.add(f's_add_u32 {sP5F}, {sP5F}, 512')
        if n == hf_at:
            F.flush(); hflag(3); bchk = min(n + OPT.get('b5i', 4), 26)
        if bchk is not None and n == bchk: flag_issue(vF, vFA, sP5F)
        if bchk is not None and n == min(bchk + OPT.get('b5c', 5), 27):
            flag_check(vF, vFA, sP5F, L + 1); hlimit[0] = 56
        if n == 29:
            if last: F.adds(rowmajor_addr(vOUT, vF))
            F.adds(unpack_ops(116, 0)); F.adds(send_ops(A5[0], vRW, 24576)); F.adds(add8_ops(A5[0], A5[0], 116, False))
            F.add(lambda: (A.wait_lgkm(), A('s_barrier')), 8)
            F.adds(recv_ops(A5[0] + 8, vRR, 24576))
            for _ in range(3): F.add('s_nop 0', 20)
            F.adds(finish_ops(A5[0], A5[0] + 8, 0, False, sXO, tokA, last, vOUT))
            F.add(f's_add_u32 {sXO}, {sXO}, 65536')
            F.adds(unpack_ops(116, 1))
        if n == 46 and not last:
            F.flush(); A.wait_vm(tokA[-1]); flag_set(vON, vZ, sFL)
        hload(); hload()
    assert bchk is not None and hlimit[0] == 56
    F.flush()
    a = A5[1]
    emit(send_ops(a, vRW, 0)); emit(add8_ops(a, a, 116, True))
    A.wait_lgkm(); A('s_barrier')
    emit(recv_ops(a + 8, vRR, 0))
    emit(finish_ops(a, a + 8, 1, True, sXO, tokB, last, vOUT))
    if not last:
        A.wait_lgkm(); A('s_barrier')
        emit(scomb_ops(A5[0], LY.ST2_OFF, stB))
        A.wait_vm(tokB[-1]); flag_set(vON, vZ, sFL, imm=256)
        PENDING.append(lambda: sflag(156, 157, stB, LY.F_S2))
        A(f'v_mov_b32 v156, {L + 2}'); A(f'v_mov_b32 v157, 0')
    stamp('p5end')
    return True
PENDING = []

def main():
    startup()
    if STOP == 0: return
    for L in range(2):
        p1(L)
        if STOP <= 5 * L + 1: return
        r = p2(L)
        if STOP <= 5 * L + 2:
            A.wait_vm(); return
        if not ffn(L, r['tok'], r['flag']): return
        if STOP <= 5 * L + 5: return
main()
finish()

hdr = open('cdna_kernels/' + NAME + '.s.ref').read().split('\n')
hdr = [l for l in hdr if l.startswith(';') and '@launch' not in l]
src = '\n'.join(hdr) + f'\n; @launch grid=(256,1,1) block=(256,1,1) lds={LDS_BYTES}\n'
src += f'''.amdgcn_target "amdgcn-amd-amdhsa--gfx950"
.text
.globl {NAME}_kernel
.p2align 8
.type {NAME}_kernel,@function
{NAME}_kernel:
'''
body = A.finalize()
src += body.replace('CODE_SPAN', '(L_codeend-L_pcref)')
src += f'''.section .rodata,"a"
.p2align 6
.amdhsa_kernel {NAME}_kernel
  .amdhsa_next_free_vgpr 512
  .amdhsa_next_free_sgpr 102
  .amdhsa_accum_offset 256
  .amdhsa_group_segment_fixed_size 0
  .amdhsa_kernarg_size 72
  .amdhsa_user_sgpr_count 2
  .amdhsa_user_sgpr_kernarg_segment_ptr 1
  .amdhsa_system_sgpr_workgroup_id_x 1
.end_amdhsa_kernel
'''
out = [a for a in sys.argv[1:] if a.endswith('.s')]
open(out[0] if out else 'k.s', 'w').write(src)
if STAMPS: open((out[0] if out else 'k.s') + '.names', 'w').write(' '.join(stamp_names))
```

```python
import sys, struct
from asmlib import Asm, V, Areg, S
import layout as LY

NAME = "interleave_layers__sliding_block__dense_activation_silu__prompt"
STOP = 99; STAMPS = False; FORCE_SLOW = False; CYC = False; OPT = {}
for arg in sys.argv[1:]:
    if arg.startswith('stop='): STOP = int(arg[5:])
    elif '=' in arg: OPT[arg.split('=')[0]] = int(arg.split('=')[1])
    if arg == 'stamps': STAMPS = True
    if arg == 'slow': FORCE_SLOW = True
    if arg == 'cyc': STAMPS = True; CYC = True

A = Asm()
MFMA = 'v_mfma_f32_32x32x16_bf16'
LOG2E = 1.4426950408889634
def f32(x): return '0x%08x' % struct.unpack('<I', struct.pack('<f', x))[0]

SWS, SX, SWQKV, SWO, SW1, SW2, SOUT, SDBG = 's[4:7]', 's[8:11]', 's[12:15]', 's[16:19]', 's[20:23]', 's[24:27]', 's[28:31]', 's[32:35]'
sC, sJ, sW, sFAST, sRH, sCB = 's36', 's37', 's38', 's39', 's40', 's41'
sT = ['s42', 's43', 's44', 's45', 's46', 's47', 's48', 's49']
sFB = 's50'
sXCC = 's51'
sRBG = 's52'
sSPIN = 's53'
sROT = 's1'
sU = ['s54', 's55', 's56', 's57', 's58', 's59', 's92', 's93', 's94', 's95', 's98', 's99', 's100', 's101', 's0']
SMASK0 = 60
vLANE, vL16, vTR, vSTAMP = 0, 1, 2, 3
vRES = 4
vP = list(range(12, 20))
def W1REG(ks): return Areg(224 + 4 * ks, 4) if ks < 8 else V(160 + 4 * (ks - 8), 4)
def W2REG(i, nh): return Areg((i * 2 + nh) * 4, 4)
WOB = 96
def WOREG(i, nh): return V(WOB + (i * 2 + nh) * 4, 4)
L_WQ = 0
L_S = 98304
KVSLOT = 4112
L_KV = L_S
L_MISC = L_S + 49408
L_CSQ = L_MISC
L_CS1 = L_MISC + 1024
L_STAT = L_MISC + 2048
L_BNC = L_MISC + 3072
L_PMASK = L_MISC + 7168
L_SP = L_MISC + 9216
LDS_BYTES = 163840

TRANS = ('v_exp', 'v_rcp', 'v_rsq')
class Fill:
    def __init__(self, vm=0): self.q = []; self.vm = vm
    def add(self, op, cost=None):
        if cost is None:
            cost = 4
            if isinstance(op, str):
                if op.startswith(TRANS): cost = 8
                if op.startswith('ds_write_b128'): cost = 8
                if op.startswith('buffer_') and self.vm: cost = self.vm
            elif self.vm: cost = self.vm
        self.q.append((op, cost))
    def adds(self, ops):
        for o in ops: self.add(o)
    def _do(self, op):
        if isinstance(op, str): A(op)
        else: op()
    def run(self, budget):
        while self.q and self.q[0][1] <= budget:
            op, c = self.q.pop(0); self._do(op); budget -= c
        return budget
    def flush(self):
        while self.q: self._do(self.q.pop(0)[0])

nstamp = [0]; stamp_names = []
def stamp(name=''):
    if not STAMPS: return
    if OPT.get('span') and name not in ('start', 'end') and not (OPT['span'] == 2 and name in ('p1x', 'kend', 'p1end', 'p2end', 'p5end')): return
    k = nstamp[0]; nstamp[0] += 1; stamp_names.append(name)
    assert k < 64
    A('s_memtime s[96:97]' if CYC else 's_memrealtime s[96:97]')
    A('s_waitcnt lgkmcnt(0)')
    A(f'v_writelane_b32 {V(vSTAMP)}, s96, {k}')

OOL = []
def flag_issue(vtmp, vaddr, soff, srd=SWS):
    return A(f'buffer_load_dword {V(vtmp)}, {V(vaddr)}, {srd}, {soff} offen sc1')
def flag_check(vtmp, vaddr, soff, expect, srd=SWS, sleep=0):
    sp = A.newlabel('Lspin'); bk = A.newlabel('Lback')
    A(f'v_cmp_gt_u32 vcc, {expect}, {V(vtmp)}')
    A(f's_cbranch_vccnz {sp}')
    A.label(bk)
    OOL.append(f'''{sp}:
    s_mov_b32 {sSPIN}, 0
{sp}_l:
    buffer_load_dword {V(vtmp)}, {V(vaddr)}, {srd}, {soff} offen sc1
    s_add_u32 {sSPIN}, {sSPIN}, 1
    s_cmp_gt_u32 {sSPIN}, 0x40000
    s_cbranch_scc1 L_exit
    s_waitcnt vmcnt(0)
    v_cmp_gt_u32 vcc, {expect}, {V(vtmp)}
    s_cbranch_vccz {bk}
    s_sleep {sleep}
    s_branch {sp}_l''')
def poll(vtmp, vaddr, soff, expect, srd=SWS):
    flag_issue(vtmp, vaddr, soff, srd); flag_check(vtmp, vaddr, soff, expect, srd)

def flag_check_multi(vtmps, nafter, vaddr, soff, expect, sleep=0):
    sp = A.newlabel('Lspin'); bk = A.newlabel('Lback')
    A(f'v_cmp_gt_u32 vcc, {expect}, {V(vtmps[0])}')
    A(f's_cbranch_vccnz {sp}')
    A.label(bk)
    txt = f'{sp}:\n'
    for k in range(1, len(vtmps)):
        txt += f'    s_waitcnt vmcnt({nafter[k]})\n    v_cmp_gt_u32 vcc, {expect}, {V(vtmps[k])}\n    s_cbranch_vccz {bk}\n'
    txt += f'''    s_mov_b32 {sSPIN}, 0
{sp}_l:
    buffer_load_dword {V(vtmps[0])}, {V(vaddr)}, {SWS}, {soff} offen sc1
    s_add_u32 {sSPIN}, {sSPIN}, 1
    s_cmp_gt_u32 {sSPIN}, 0x40000
    s_cbranch_scc1 L_exit
    s_waitcnt vmcnt(0)
    v_cmp_gt_u32 vcc, {expect}, {V(vtmps[0])}
    s_cbranch_vccz {bk}
    s_sleep {sleep}
    s_branch {sp}_l'''
    OOL.append(txt)

def store_dual(lines):
    A.dual(sFAST, lines, [l + ' sc1' for l in lines])
    return A.items[-1][2][-1]
def flag_set(vval, vzero, soff, fastok=True, imm=0, wave=None):
    ln = f'buffer_store_dword {V(vval)}, {V(vzero)}, {SWS}, {soff} offen offset:{imm}'
    if OPT.get('fexec'): A('s_mov_b64 exec, 1')
    if fastok: store_dual([ln])
    else: A(ln + ' sc1')
    if OPT.get('fexec'): A('s_mov_b64 exec, -1')

def finish():
    A.label('L_end')
    if STAMPS:
        A('s_waitcnt vmcnt(0) lgkmcnt(0)')
        stamp('end')
        A(f's_lshl_b32 {sT[0]}, s2, 2'); A(f's_add_u32 {sT[0]}, {sT[0]}, {sW}'); A(f's_lshl_b32 {sT[0]}, {sT[0]}, 8')
        A(f's_add_u32 {sT[0]}, {sT[0]}, {LY.STAMP_OFF}')
        A(f'v_lshlrev_b32 v20, 2, {V(vLANE)}')
        A(f'buffer_store_dword {V(vSTAMP)}, v20, {SWS}, {sT[0]} offen')
        if 'dbg' in OPT:
            A(f's_cmp_lg_u32 s2, {OPT["dbg"]}'); A('s_cbranch_scc1 L_exit'); A(f's_cmp_lg_u32 {sW}, 2'); A('s_cbranch_scc1 L_exit')
            A(f'v_readlane_b32 s42, {V(vSTAMP)}, 0'); A(f'v_subrev_u32 {V(vSTAMP)}, s42, {V(vSTAMP)}')
            A(f'v_subrev_u32 v20, {4*OPT.get("dbg0", 1)}, v20')
            A('s_mov_b32 s34, 64')
            A(f'buffer_store_dword {V(vSTAMP)}, v20, {SDBG}, 0 offen')
    A.label('L_exit')
    A('s_endpgm')
    for b in OOL: A.raw(b)
    A.place_ool()
    A.label('L_codeend')
    A.raw('    s_endpgm')

def startup():
    A('s_cmp_ge_u32 s2, 256'); A('s_cbranch_scc1 L_exit')
    for sreg, off in ((8, 0), (12, 8), (4, 64), (16, 16), (20, 32), (24, 40), (28, 48), (32, 56)):
        A(f's_load_dwordx2 s[{sreg}:{sreg+1}], s[0:1], {off}')
    if STAMPS: A(f'v_mov_b32 v3, 0')
    stamp('start')
    t0, t1 = vP[0], vP[1]
    A(f'v_lshrrev_b32 {V(t0)}, 6, v0')
    A(f'v_lshlrev_b32 {V(t1)}, 4, v0')
    A(f'v_readfirstlane_b32 {sW}, {V(t0)}')
    A(f'v_and_b32 {V(vLANE)}, 63, v0')
    A(f'v_lshlrev_b32 {V(vL16)}, 4, {V(vLANE)}')
    A(f's_and_b32 {sT[0]}, s2, 7'); A(f's_lshl_b32 {sT[0]}, {sT[0]}, 1')
    A(f's_bfe_u32 {sT[1]}, s2, 0x10003')
    A(f's_or_b32 {sC}, {sT[0]}, {sT[1]}')
    A(f's_lshr_b32 {sJ}, s2, 4')
    A(f's_and_b32 {sRH}, {sJ}, 1'); A(f's_lshr_b32 {sCB}, {sJ}, 1')
    A(f's_lshl2_add_u32 {sRBG}, {sC}, {sW}')
    A(f's_lshl_b32 {sFB}, {sC}, 13')
    A(f's_getreg_b32 {sXCC}, hwreg(HW_REG_XCC_ID)'); A(f's_and_b32 {sXCC}, {sXCC}, 15')
    A(f's_mov_b32 {sFAST}, 0')
    A(f's_and_b32 s3, {sW}, 1'); A(f's_lshl1_add_u32 s3, s3, {sRH}'); A(f's_lshl3_add_u32 s3, s3, {sCB}'); A(f's_lshl2_add_u32 s3, s3, {sFB}'); A(f's_cmp_lt_u32 {sW}, 2'); A(f's_cselect_b32 s3, s3, 0x70000000')
    A(f's_and_b32 {sT[0]}, {sJ}, 1'); A(f's_lshl_b32 {sT[0]}, {sT[0]}, 1'); A(f's_and_b32 {sT[1]}, {sC}, 1'); A(f's_lshl2_add_u32 {sT[0]}, {sT[1]}, {sT[0]}')
    for sreg, nbytes in ((8, 2048*512*2), (12, 512*1536*2), (4, 0x10000000), (16, 512*512*2), (20, 512*1792*2), (24, 1792*512*2), (28, 2048*512*2), (32, 256)):
        A(f's_mov_b32 s{sreg+2}, {nbytes}'); A(f's_mov_b32 s{sreg+3}, 0x20000')
    A('s_waitcnt lgkmcnt(0)')
    A(f's_and_b32 {sROT}, {sT[0]}, {OPT.get("rot", 2)}')
    if OPT.get('tlb'):
        A(f'v_lshlrev_b32 {V(t0)}, 19, {V(vLANE)}'); A(f'v_min_u32 {V(t0)}, {LY.WS_END - 4096}, {V(t0)}')
        A(f's_lshl_b32 {sT[7]}, s2, 7'); A(f's_and_b32 {sT[7]}, {sT[7]}, 0xf80')
        A(f'buffer_load_dword a37, {V(t0)}, {SWS}, {sT[7]} offen')
    A(f's_lshl2_add_u32 {sT[0]}, {sJ}, {sW}'); A(f's_cmp_eq_u32 {sT[0]}, 3')
    nl = A.newlabel('Lnolead')
    A(f's_cbranch_scc0 {nl}')
    A.optional(True)
    for r in range(4): A(f'v_mov_b32 {V(20 + r)}, 0')
    A(f's_add_u32 {sT[0]}, {sFB}, 4096')
    for q in range(3): A(f'buffer_store_dwordx4 v[20:23], {V(vL16)}, {SWS}, {sFB} offen offset:{1024*q} sc1')
    for q in range(4): A(f'buffer_store_dwordx4 v[20:23], {V(vL16)}, {SWS}, {sT[0]} offen offset:{1024*q} sc1')
    A.optional(False)
    A.label(nl)
    A.assume_drained()
    if not OPT.get('nocode'):
        A('s_getpc_b64 s[96:97]')
        A(f's_lshr_b32 {sT[7]}, s2, 3'); A(f's_lshl2_add_u32 {sT[7]}, {sT[7]}, {sW}'); A(f's_lshl_b32 {sT[7]}, {sT[7]}, 9')
        A(f'v_and_b32 {V(t0)}, 3, {V(vLANE)}'); A(f'v_lshl_add_u32 {V(t0)}, {V(t0)}, 7, {sT[7]}'); A(f'v_min_u32 {V(t0)}, CODE_SPAN, {V(t0)}')
        A.label('L_pcref')
        A(f'global_load_dword a36, {V(t0)}, s[96:97]')

def leader_announce(nyoung, vone, vzero):
    A(f's_lshl2_add_u32 {sT[0]}, {sJ}, {sW}'); A(f's_cmp_eq_u32 {sT[0]}, 3')
    nl = A.newlabel('Lnoann')
    A(f's_cbranch_scc0 {nl}')
    A.raw(f'    s_lshl_b32 {sT[0]}, {sC}, 2\n    s_waitcnt vmcnt({nyoung})\n    s_mov_b64 exec, 1\n'
          f'    buffer_store_dword {V(vone)}, {V(vzero)}, {SDBG}, {sT[0]} offen offset:64 sc1\n    s_mov_b64 exec, -1')
    A.label(nl)

def tr_addr():
    t0 = vP[0]
    A(f'v_lshrrev_b32 {V(t0)}, 5, {V(vLANE)}'); A(f'v_lshlrev_b32 {V(vTR)}, 9, {V(t0)}')
    A(f'v_bfe_u32 {V(t0)}, {V(vLANE)}, 2, 2'); A(f'v_lshl_add_u32 {V(vTR)}, {V(t0)}, 6, {V(vTR)}')
    A(f'v_bfe_u32 {V(t0)}, {V(vLANE)}, 4, 1'); A(f'v_lshl_add_u32 {V(vTR)}, {V(t0)}, 5, {V(vTR)}')
    A(f'v_and_b32 {V(t0)}, 1, {V(vLANE)}'); A(f'v_lshl_add_u32 {V(vTR)}, {V(t0)}, 4, {V(vTR)}')
    A(f'v_bfe_u32 {V(t0)}, {V(vLANE)}, 1, 1'); A(f'v_lshl_add_u32 {V(vTR)}, {V(t0)}, 3, {V(vTR)}')

def make_masks(B):
    t0, t1, t2 = vP[0], vP[1], vP[2]
    A(f'v_and_b32 {V(t0)}, 31, {V(vLANE)}'); A(f'v_lshrrev_b32 {V(t1)}, 5, {V(vLANE)}'); A(f'v_lshlrev_b32 {V(t1)}, 2, {V(t1)}')
    A(f'v_sub_u32 {V(t0)}, {V(t0)}, {V(t1)}')
    for r in range(16):
        A(f'v_cmp_le_i32 s[{SMASK0+2*r}:{SMASK0+2*r+1}], {(r & 3) + 8 * (r >> 2)}, {V(t0)}')
    A(f'v_mov_b32 {V(t0)}, 0xffff'); A(f'v_mov_b32 {V(t1)}, 0xffff0000')
    for t in range(8):
        A(f'v_cndmask_b32 {V(B+t)}, 0, {V(t0)}, s[{SMASK0+4*t}:{SMASK0+4*t+1}]')
        A(f'v_cndmask_b32 {V(t2)}, 0, {V(t1)}, s[{SMASK0+4*t+2}:{SMASK0+4*t+3}]')
        A(f'v_or_b32 {V(B+t)}, {V(B+t)}, {V(t2)}')
    A(f'v_add_u32 {V(t0)}, {L_PMASK}, {V(vL16)}')
    A(f'ds_write_b128 {V(t0)}, {V(B,4)}'); A(f'ds_write_b128 {V(t0)}, {V(B+4,4)} offset:1024')

def rowmajor_addr(v, vt):
    return [f'v_and_b32 {V(v)}, 31, {V(vLANE)}', f'v_lshlrev_b32 {V(v)}, 10, {V(v)}',
            f'v_lshrrev_b32 {V(vt)}, 5, {V(vLANE)}', f'v_lshl_add_u32 {V(v)}, {V(vt)}, 4, {V(v)}']
def own_tile_rowmajor(s):
    return [f's_lshl2_add_u32 {s}, {sC}, {sRH}', f's_lshl_b32 {s}, {s}, 15',
            f's_lshl2_add_u32 {sT[7]}, {sCB}, {sW}', f's_lshl_b32 {sT[7]}, {sT[7]}, 5', f's_add_u32 {s}, {s}, {sT[7]}']

def stats_finish_ops(s1, s2, ta, tb, nm, rs):
    return [f'v_mov_b32 {V(ta)}, {V(s1)}', f'v_mov_b32 {V(tb)}, {V(s2)}',
            f'v_permlane32_swap_b32 {V(ta)}, {V(s1)}', f'v_permlane32_swap_b32 {V(tb)}, {V(s2)}',
            f'v_add_f32 {V(s1)}, {V(s1)}, {V(ta)}', f'v_add_f32 {V(s2)}, {V(s2)}, {V(tb)}',
            f'v_mul_f32 {V(nm)}, {f32(-1.0/512)}, {V(s1)}', f'v_mul_f32 {V(ta)}, {f32(1.0/512)}, {V(s2)}',
            f'v_fma_f32 {V(ta)}, -{V(nm)}, {V(nm)}, {V(ta)}', f'v_max_f32 {V(ta)}, 0, {V(ta)}',
            f'v_add_f32 {V(ta)}, {f32(1e-5)}, {V(ta)}', f'v_rsq_f32 {V(rs)}, {V(ta)}']
def stat_addr_ops(v, vt):
    return [f'v_lshrrev_b32 {V(v)}, 5, {V(vLANE)}', f'v_lshlrev_b32 {V(v)}, 10, {V(v)}',
            f'v_and_b32 {V(vt)}, 31, {V(vLANE)}', f'v_lshl_add_u32 {V(v)}, {V(vt)}, 3, {V(v)}']
def stat_load_ops(b0, b1, vaddr, soff):
    return [f'buffer_load_dwordx2 {V(b, 2)}, {V(vaddr)}, {SWS}, {soff} offen offset:{256*i} sc1' for i, b in enumerate((b0, b0 + 2, b1, b1 + 2))]
def stat_reduce_ops(b0, b1, s1, s2):
    return [f'v_add_f32 {V(b0+i)}, {V(b0+i)}, {V(b1+i)}' for i in range(4)] + \
           [f'v_add_f32 {V(s1)}, {V(b0)}, {V(b0+2)}', f'v_add_f32 {V(s2)}, {V(b0+1)}, {V(b0+3)}']
def split_pack_ops(dst, x, t):
    return [f'v_cvt_pk_bf16_f32 {V(t)}, {V(x)}, {V(x)}', f'v_and_b32 {V(t)}, 0xffff0000, {V(t)}',
            f'v_sub_f32 {V(t)}, {V(x)}, {V(t)}', f'v_cvt_pk_bf16_f32 {V(dst)}, {V(x)}, {V(t)}']
def cs_pack_ops(dst, x, t):
    return [f'v_cvt_pk_bf16_f32 {V(dst)}, {V(x)}, {V(x)}', f'v_and_b32 {V(t)}, 0xffff0000, {V(dst)}',
            f'v_sub_f32 {V(t)}, {V(x)}, {V(t)}', f'v_cvt_pk_bf16_f32 {V(t)}, {V(t)}, {V(t)}',
            f'v_cndmask_b32 {V(dst)}, {V(t)}, {V(dst)}, vcc']
def spart_ops(y, p, X, pk):
    if pk:
        ops = [f'v_pk_mul_f32 {V(p+2,2)}, {V(y,2)}, {V(y,2)}', f'v_pk_add_f32 {V(p,2)}, {V(y,2)}, {V(y+2,2)}']
        ops += [f'v_pk_fma_f32 {V(p+2,2)}, {V(y+r,2)}, {V(y+r,2)}, {V(p+2,2)}' for r in (2, 4, 6)]
        ops += [f'v_pk_add_f32 {V(p,2)}, {V(p,2)}, {V(y+r,2)}' for r in (4, 6)]
        ops += [f'v_add_f32 {V(p)}, {V(p)}, {V(p+1)}', f'v_add_f32 {V(p+1)}, {V(p+2)}, {V(p+3)}']
    else:
        ops = [f'v_mul_f32 {V(p+1)}, {V(y)}, {V(y)}', f'v_add_f32 {V(p)}, {V(y)}, {V(y+1)}', f'v_fmac_f32 {V(p+1)}, {V(y+1)}, {V(y+1)}']
        for r in range(2, 8): ops += [f'v_add_f32 {V(p)}, {V(p)}, {V(y+r)}', f'v_fmac_f32 {V(p+1)}, {V(y+r)}, {V(y+r)}']
    ops += [f's_lshl_b32 {sT[7]}, {sW}, 9', f's_add_u32 {sT[7]}, {sT[7]}, {L_SP + 2048*X}',
            f'v_lshl_add_u32 {V(p+2)}, {V(vLANE)}, 3, {sT[7]}', f'ds_write_b64 {V(p+2)}, {V(p,2)}']
    return ops
def scomb_ops(t, stoff, toks):
    ops = [f's_and_b32 {sT[7]}, {sW}, 1', f's_lshl_b32 {sT[6]}, {sT[7]}, 11', f's_add_u32 {sT[6]}, {sT[6]}, {L_SP}',
           f'v_lshl_add_u32 {V(t+8)}, {V(vLANE)}, 3, {sT[6]}',
           f'ds_read2st64_b64 {V(t,4)}, {V(t+8)} offset0:0 offset1:1', f'ds_read2st64_b64 {V(t+4,4)}, {V(t+8)} offset0:2 offset1:3',
           f's_lshl1_add_u32 {sT[6]}, {sC}, {sT[7]}', f's_lshl1_add_u32 {sT[6]}, {sT[6]}, {sRH}', f's_lshl3_add_u32 {sT[6]}, {sT[6]}, {sCB}', f's_lshl_b32 {sT[6]}, {sT[6]}, 8',
           f's_add_u32 {sT[6]}, {sT[6]}, {stoff}', f's_cmp_lt_u32 {sW}, 2', f's_cselect_b32 {sT[6]}, {sT[6]}, 0x70000000',
           f'v_and_b32 {V(t+9)}, 31, {V(vLANE)}', f'v_lshlrev_b32 {V(t+9)}, 3, {V(t+9)}',
           f'v_pk_add_f32 {V(t,2)}, {V(t,2)}, {V(t+2,2)}', f'v_pk_add_f32 {V(t+4,2)}, {V(t+4,2)}, {V(t+6,2)}', f'v_pk_add_f32 {V(t,2)}, {V(t,2)}, {V(t+4,2)}',
           f'v_mov_b32 {V(t+2)}, {V(t)}', f'v_mov_b32 {V(t+3)}, {V(t+1)}',
           f'v_permlane32_swap_b32 {V(t+2)}, {V(t)}', f'v_permlane32_swap_b32 {V(t+3)}, {V(t+1)}',
           f'v_pk_add_f32 {V(t,2)}, {V(t,2)}, {V(t+2,2)}']
    def st():
        toks.append(store_dual([f'buffer_store_dwordx2 {V(t,2)}, {V(t+9)}, {SWS}, {sT[6]} offen']))
    ops.append(st)
    return ops
sSFL = 's3'
def sflag(vval, vzero, toks, foff):
    A.wait_vm(toks[-1]); flag_set(vval, vzero, sSFL, imm=foff, wave='lt2')

def raw_addr_ops(v, vt, rowbytes):
    return [f'v_lshrrev_b32 {V(v)}, 2, {V(vLANE)}', f'v_mul_u32_u24 {V(v)}, {rowbytes}, {V(v)}',
            f'v_and_b32 {V(vt)}, 3, {V(vLANE)}', f'v_lshl_add_u32 {V(v)}, {V(vt)}, 4, {V(v)}']
def raw64_addr_ops(v0):
    return [f'v_lshrrev_b32 {V(v0)}, 2, {V(vLANE)}', f'v_lshlrev_b32 {V(v0)}, 10, {V(v0)}',
            f'v_and_b32 {V(v0+1)}, 3, {V(vLANE)}', f'v_lshl_add_u32 {V(v0)}, {V(v0+1)}, 4, {V(v0)}',
            f's_lshl_b32 {sT[7]}, {sW}, 5', f'v_xor_b32 {V(v0)}, {sT[7]}, {V(v0)}', f'v_xor_b32 {V(v0+1)}, 64, {V(v0)}']
def bounce_addr_ops(vw, vr):
    return [f's_lshl_b32 {sT[7]}, {sW}, 10', f's_add_u32 {sT[7]}, {sT[7]}, {L_BNC}',
            f'v_add_u32 {V(vw)}, {sT[7]}, {V(vL16)}', f'v_add_u32 {V(vr)}, {sT[7]}, {V(vTR)}']
def sub(reg4, lo):
    k = reg4[0]; a = int(reg4[2:reg4.index(':')])
    return f'{k}[{a+lo}:{a+lo+1}]'
_bslot = [0]
def wtrans_ops(reg4, vw, vr):
    o = 0
    return [f'ds_write_b128 {V(vw)}, {reg4} offset:{o}',
            f'ds_read_b64_tr_b16 {sub(reg4,0)}, {V(vr)} offset:{o}',
            f'ds_read_b64_tr_b16 {sub(reg4,2)}, {V(vr)} offset:{o+256}']
def emit(ops):
    for o in ops:
        if isinstance(o, str): A(o)
        else: o()

sW1O, sW2O, sWOO = sU[10], sU[11], sU[12]
def wt_setup_ops():
    return [f's_lshl2_add_u32 {sW1O}, {sJ}, {sW}', f's_lshl_b32 {sW1O}, {sW1O}, 15', f's_add_u32 {sW1O}, {sW1O}, {LY.WT_OFF}',
            f's_cmp_ge_u32 {sJ}, 14', f's_cselect_b32 {sW1O}, 0x70000000, {sW1O}',
            f's_lshl2_add_u32 {sT[7]}, {sCB}, {sW}', f's_mul_i32 {sW2O}, {sT[7]}, {56*1024}', f's_add_u32 {sW2O}, {sW2O}, {LY.WT_OFF + 1792*1024}',
            f's_lshl_b32 {sWOO}, {sT[7]}, 14', f's_add_u32 {sWOO}, {sWOO}, {LY.WT_OFF + 3584*1024}']
WSC = ' sc1' + (' nt' if OPT.get('wnt') else '')
def w1_load_ops(ks):
    ops = [f'buffer_load_dwordx4 {W1REG(ks)}, {V(vL16)}, {SWS}, {sW1O} offen offset:{(ks & 3)*1024}{WSC}']
    if ks & 3 == 3: ops.append(f's_add_u32 {sW1O}, {sW1O}, 4096')
    return ops
def w2_load_ops(t):
    ops = [f'buffer_load_dwordx4 {W2REG(t >> 1, t & 1)}, {V(vL16)}, {SWS}, {sW2O} offen offset:{(t & 3)*1024}{WSC}']
    if t & 3 == 3: ops.append(f's_add_u32 {sW2O}, {sW2O}, 4096')
    return ops
def wo_load_ops(g):
    so = sT[7] if g else sWOO
    return ([f's_add_u32 {sT[7]}, {sWOO}, {4096*g}'] if g else []) + \
           [f'buffer_load_dwordx4 {WOREG((4*g + q) >> 1, q & 1)}, {V(vL16)}, {SWS}, {so} offen offset:{q*1024}{WSC}' for q in range(4)]

SCV = 's[92:95]'
def conv_issue(R, vt):
    g, u, cw, i0, wq, so, st2 = sT[0], sT[1], sT[2], sT[3], sT[4], sT[5], sT[6]
    A(f's_lshl_b32 {g}, {sC}, 4'); A(f's_add_u32 {g}, {g}, {sJ}'); A(f's_lshl2_add_u32 {g}, {g}, {sW}')
    A(f's_sub_u32 {u}, {g}, 448'); A(f's_mul_i32 {cw}, {u}, 4682'); A(f's_lshr_b32 {cw}, {cw}, 16')
    A(f's_mul_i32 {i0}, {cw}, 14'); A(f's_sub_u32 {i0}, {u}, {i0}')
    A(f's_and_b32 {wq}, {cw}, 3'); A(f's_mul_i32 {so}, {wq}, 14'); A(f's_add_u32 {so}, {so}, {i0}')
    A(f's_mov_b64 s[92:93], s[24:25]'); A(f's_mov_b32 s94, s26'); A(f's_mov_b32 s95, 0x20000')
    l1 = A.newlabel('Lcv'); l2 = A.newlabel('Lcv')
    A(f's_cmp_lt_u32 {g}, 896'); A(f's_cbranch_scc1 {l1}')
    A.optional(True)
    A(f's_sub_u32 {u}, {g}, 896'); A(f's_lshr_b32 {cw}, {u}, 2'); A(f's_and_b32 {wq}, {cw}, 3'); A(f's_and_b32 {so}, {u}, 15')
    A(f's_mov_b64 s[92:93], s[16:17]'); A(f's_mov_b32 s94, s18')
    A.optional(False)
    A.label(l1)
    A(f's_lshl_b32 {so}, {so}, 15'); A(f's_lshr_b32 {cw}, {cw}, 2'); A(f's_lshl_b32 {cw}, {cw}, 7'); A(f's_add_u32 {so}, {so}, {cw}')
    A(f's_mov_b32 {st2}, 16384'); A(f's_lshl_b32 {wq}, {wq}, 5')
    A(f'v_lshrrev_b32 {V(vt)}, 2, {V(vLANE)}'); A(f'v_and_b32 {V(vt+2)}, 3, {V(vLANE)}'); A(f'v_lshlrev_b32 {V(vt+2)}, 4, {V(vt+2)}')
    A(f'v_lshl_add_u32 {V(vt+3)}, {V(vt)}, 10, {V(vt+2)}'); A(f'v_xor_b32 {V(vt+3)}, {wq}, {V(vt+3)}'); A(f'v_xor_b32 {V(vt+1)}, 64, {V(vt+3)}')
    A(f's_cmp_ge_u32 {g}, 448'); A(f's_cbranch_scc1 {l2}')
    A.optional(True)
    A(f's_and_b32 {so}, {g}, 7'); A(f's_mul_i32 {so}, {so}, {64*3584}'); A(f's_lshr_b32 {u}, {g}, 3'); A(f's_lshl_b32 {u}, {u}, 6'); A(f's_add_u32 {so}, {so}, {u}')
    A(f's_mov_b32 {st2}, {32*3584}')
    A(f's_mov_b64 s[92:93], s[20:21]'); A(f's_mov_b32 s94, s22')
    A(f'v_mul_u32_u24 {V(vt+3)}, 3584, {V(vt)}'); A(f'v_add_u32 {V(vt+3)}, {V(vt+3)}, {V(vt+2)}'); A(f'v_add_u32 {V(vt+1)}, {16*3584}, {V(vt+3)}')
    A.optional(False)
    A.label(l2)
    A(f's_add_u32 {st2}, {st2}, {so}')
    for q in range(4):
        A(f'buffer_load_dwordx4 {Areg(R + 4*q, 4)}, {V(vt+1 if q & 1 else vt+3)}, {SCV}, {st2 if q >= 2 else so} offen')
def wflag_addr_ops(v, t, t2):
    return [f's_lshl2_add_u32 {sT[6]}, {sJ}, {sW}', f's_min_u32 {sT[6]}, {sT[6]}, 55', f's_lshl_b32 {sT[6]}, {sT[6]}, 3',
            f'v_add_u32 {V(v)}, {sT[6]}, {V(vLANE)}',
            f's_lshl2_add_u32 {sT[7]}, {sCB}, {sW}', f's_mul_i32 {sT[6]}, {sT[7]}, 14', f's_add_u32 {sT[6]}, {sT[6]}, 440',
            f'v_add_u32 {V(t)}, {sT[6]}, {V(vLANE)}', f'v_cmp_gt_u32 vcc, 8, {V(vLANE)}',
            f's_lshl_b32 {sT[6]}, {sT[7]}, 2', f's_add_u32 {sT[6]}, {sT[6]}, 874',
            f'v_cndmask_b32 {V(v)}, {V(t)}, {V(v)}, vcc',
            f'v_min_u32 {V(t)}, 25, {V(vLANE)}', f'v_add_u32 {V(t)}, {sT[6]}, {V(t)}', f'v_cmp_gt_u32 vcc, 22, {V(vLANE)}', 's_nop 0',
            f'v_cndmask_b32 {V(v)}, {V(t)}, {V(v)}, vcc',
            f'v_lshrrev_b32 {V(t)}, 6, {V(v)}', f'v_lshlrev_b32 {V(t)}, 13, {V(t)}', f'v_and_b32 {V(t2)}, 3, {V(v)}', f'v_lshl_add_u32 {V(t)}, {V(t2)}, 2, {V(t)}',
            f'v_bfe_u32 {V(v)}, {V(v)}, 2, 4', f'v_lshl_add_u32 {V(v)}, {V(v)}, 7, {V(t)}', f'v_add_u32 {V(v)}, {LY.F_KV + 2048}, {V(v)}']

def pretouch_ops(T):
    ops = [f's_lshl_b32 {sT[2]}, {sRBG}, 15', f's_lshl_b32 {sT[3]}, {sJ}, 11', f's_add_u32 {sT[2]}, {sT[2]}, {sT[3]}', f's_add_u32 {sT[2]}, {sT[2]}, {LY.O_OFF}',
           f's_lshl2_add_u32 {sT[3]}, {sC}, {sRH}', f's_lshl_b32 {sT[3]}, {sT[3]}, 5', f's_lshl2_add_u32 {sT[4]}, {sCB}, {sW}', f's_add_u32 {sT[3]}, {sT[3]}, {sT[4]}',
           f's_lshl_b32 {sT[3]}, {sT[3]}, 10', f's_add_u32 {sT[3]}, {sT[3]}, {LY.X1_OFF}',
           f'v_and_b32 {V(T)}, 15, {V(vLANE)}', f'v_lshl_add_u32 {V(T)}, {V(T)}, 7, {sT[2]}',
           f'v_and_b32 {V(T+1)}, 7, {V(vLANE)}', f'v_lshl_add_u32 {V(T+1)}, {V(T+1)}, 7, {sT[3]}',
           f'v_bfe_u32 {V(T+2)}, {V(vLANE)}, 3, 1', f'v_lshl_add_u32 {V(T+1)}, {V(T+2)}, 16, {V(T+1)}',
           f'v_lshrrev_b32 {V(T+2)}, 5, {V(vLANE)}', f'v_lshl_add_u32 {V(T+1)}, {V(T+2)}, 21, {V(T+1)}',
           f'v_cmp_gt_u32 vcc, 16, {V(vLANE)}',
           f's_lshl_b32 {sT[2]}, {sW}, 11', f's_add_u32 {sT[2]}, {sT[2]}, {sFB}',
           f'v_cndmask_b32 {V(T)}, {V(T+1)}, {V(T)}, vcc',
           f's_lshl_b32 {sT[3]}, {sC}, 13', f's_and_b32 {sT[4]}, {sJ}, 3', f's_lshl_b32 {sT[4]}, {sT[4]}, 11', f's_add_u32 {sT[3]}, {sT[3]}, {sT[4]}', f's_add_u32 {sT[3]}, {sT[3]}, {LY.ST1_OFF}',
           f's_cmp_lt_u32 {sW}, 2', f's_cselect_b32 {sT[2]}, {sT[2]}, {sT[3]}',
           f'v_and_b32 {V(T+1)}, 15, {V(vLANE)}', f'v_lshl_add_u32 {V(T+1)}, {V(T+1)}, 7, {sT[2]}',
           f'v_cmp_gt_u32 vcc, 48, {V(vLANE)}', 's_nop 0',
           f'v_cndmask_b32 {V(T)}, {V(T+1)}, {V(T)}, vcc',
           f'buffer_load_dword a35, {V(T)}, {SWS}, 0 offen sc1']
    assert LY.X2_OFF - LY.X1_OFF == 1 << 21
    return ops

P2Q, P2SA, P2SB, P2P, P2K, P2V, P2O, P2SC = 20, 28, 44, 60, 68, 72, 80, 96
W2EARLY = OPT.get('w2e', 0); W1EARLY = OPT.get('w1e', 16); W1TAIL = OPT.get('w1t', 4)

L0 = {}; QEPI = []
def p1(L):
    first = (L == 0)
    XR = 20; aq, ak, av = 84, 100, 116; WB = 132; NMW = 156
    xop = lambda ks: V(XR + 4 * (ks % 16), 4)
    wreg = lambda ks, p: WB + ((ks & 1) * 3 + p) * 4
    vNM, vRS, vS1, vS2, vTRH, vA, vB, vC = vP
    F = Fill(); D = Fill(OPT.get('p1vm', 12))
    stage_tok = {}
    sXB, sXK, sXS, sSTO, sSF = sU[0], sU[1], sU[2], sU[5], 's96' if not STAMPS else 's33'
    CK, CV = wreg(0, 0), wreg(1, 0)
    stoks = []; cvtok = []
    if first:
        vXG, vWA, vBR0, vBR1, vTRC = 224, 228, 229, 230, 231
        vHS, vHV, vONE, vZERO, vWF, vWV, vPT, vL4, vBW, vBRD = 234, 235, 236, 237, 238, 239, 240, 241, 242, 243
        TT = 192
        ONES, CW, CSA, CSB, CVR = 0, 8, 16, 64, 48
        sXL, sWB, sWS, sWL, sCO, sC1, sFL = sU[3], sU[4], sU[13], sU[14], sU[7], sU[8], sU[9]
        A(f'v_bfe_u32 {V(21)}, {V(vLANE)}, 2, 3')
        A(f'v_lshlrev_b32 {V(20)}, 10, {V(21)}')
        A(f'v_lshrrev_b32 {V(22)}, 5, {V(vLANE)}'); A(f'v_lshl_add_u32 {V(20)}, {V(22)}, 6, {V(20)}')
        A(f'v_and_b32 {V(22)}, 3, {V(vLANE)}'); A(f'v_lshrrev_b32 {V(23)}, 2, {V(21)}'); A(f'v_xor_b32 {V(22)}, {V(22)}, {V(23)}')
        A(f'v_lshl_add_u32 {V(vXG)}, {V(22)}, 4, {V(20)}')
        A(f'v_xor_b32 {V(22)}, 2, {V(22)}')
        A(f'v_lshl_add_u32 {V(vXG+1)}, {V(22)}, 4, {V(20)}')
        A(f'v_add_u32 {V(vXG+2)}, {2*7168}, {V(vXG)}'); A(f'v_add_u32 {V(vXG+3)}, {3*7168}, {V(vXG+1)}'); A(f'v_add_u32 {V(vXG+1)}, 7168, {V(vXG+1)}')
        A(f's_lshl_b32 {sXB}, {sRBG}, 15')
        A(f's_mul_i32 {sXL}, {sW}, 12288'); A(f's_add_u32 {sXL}, {sXL}, {L_S}')
        emit(raw_addr_ops(vWA, 20, 3072))
        A(f's_mul_i32 {sWB}, {sW}, {16*3072}'); A(f's_lshl_b32 {sT[5]}, {sJ}, 6'); A(f's_add_u32 {sWB}, {sWB}, {sT[5]}')
        A(f's_mul_i32 {sWL}, {sW}, 3072')
        def xdma_ops(s):
            ops = [f's_xor_b32 {sXK}, {sROT}, {s}', f's_add_u32 m0, {sXL}, {(s % 3) * 4096}', f's_lshl_b32 {sXS}, {sXK}, 7', f's_add_u32 {sXS}, {sXS}, {sXB}']
            for g in range(4):
                ops.append(lambda g=g: stage_tok.__setitem__(('x', s), A(f'buffer_load_dwordx4 {V(vXG + g)}, {SX}, {sXS} offen offset:{1024*g} lds')))
                ops[-1].st = ('x', s)
            return ops
        def wdma_ops(s):
            ops = [f's_xor_b32 {sWS}, {sROT}, {s}', f's_mul_i32 {sWS}, {sWS}, {64*3072}', f's_add_u32 m0, {sWL}, {s*4*3072}', f's_add_u32 {sWS}, {sWS}, {sWB}']
            for p in (1, 2, 0):
                ops.append(lambda p=p: stage_tok.__setitem__(('w', s), A(f'buffer_load_dwordx4 {V(vWA)}, {SWQKV}, {sWS} offen offset:{1024*p} lds')))
                ops[-1].st = ('w', s)
            return ops
        nq = 0 if OPT.get('nocode') else 1
        if not OPT.get('nowarm'):
            A(f'v_min_u32 {V(20)}, 15, {V(vLANE)}'); A(f'v_lshlrev_b32 {V(20)}, 7, {V(20)}'); A(f'v_min_u32 {V(21)}, {11*128}, {V(20)}')
            A(f's_lshl2_add_u32 {sT[0]}, {sJ}, {sW}'); A(f's_lshl_b32 {sT[0]}, {sT[0]}, 11'); A(f's_lshl_b32 {sT[1]}, {sC}, 17'); A(f's_add_u32 {sT[0]}, {sT[0]}, {sT[1]}')
            A(f's_lshl2_add_u32 {sT[1]}, s2, {sW}'); A(f's_mul_i32 {sT[1]}, {sT[1]}, {12*128}')
            A(f'buffer_load_dword a32, {V(21)}, {SWQKV}, {sT[1]} offen')
            A(f'buffer_load_dword a33, {V(20)}, {SX}, {sT[0]} offen'); nq += 2
        resid_ops = rowmajor_addr(vA, vC) + own_tile_rowmajor(sT[6]) + \
            [f'buffer_load_dwordx4 {V(vRES, 4)}, {V(vA)}, {SX}, {sT[6]} offen', f's_add_u32 {sT[6]}, {sT[6]}, 65536',
             f'buffer_load_dwordx4 {V(vRES + 4, 4)}, {V(vA)}, {SX}, {sT[6]} offen']
        if not OPT.get('x_nostat'): emit(resid_ops)
        else: nq -= 2
        emit(xdma_ops(0)); emit(wdma_ops(0)); nq += 9
        if OPT.get('tlb2', 0):
            sh = OPT.get('tsh', 20)
            A(f'v_lshlrev_b32 {V(20)}, {sh}, {V(vLANE)}'); A(f'v_min_u32 {V(21)}, {LY.WS_END - 128}, {V(20)}')
            A(f'v_min_u32 {V(22)}, {512*1792*2 - 128}, {V(20)}'); A(f'v_min_u32 {V(23)}, {512*512*2 - 128}, {V(20)}')
            A(f'buffer_load_dword a39, {V(21)}, {SWS}, 0 offen'); A(f'buffer_load_dword a40, {V(22)}, {SW1}, 0 offen')
            A(f'buffer_load_dword a41, {V(22)}, {SW2}, 0 offen'); A(f'buffer_load_dword a42, {V(23)}, {SWO}, 0 offen')
            A(f'buffer_load_dword a43, {V(22)}, {SOUT}, 0 offen'); A(f'buffer_load_dword a44, {V(20)}, {SDBG}, 0 offen'); nq += 6
        if OPT.get('s0st'): stamp('iss')
        tr_addr()
        make_masks(32)
        A(f'v_bfe_u32 {V(21)}, {V(vLANE)}, 3, 2'); A(f'v_lshlrev_b32 {V(vBR0)}, 10, {V(21)}')
        A(f'v_and_b32 {V(21)}, 7, {V(vLANE)}'); A(f'v_lshl_add_u32 {V(vBR0)}, {V(21)}, 6, {V(vBR0)}')
        A(f'v_add_u32 {V(vBR0)}, {sXL}, {V(vBR0)}')
        A(f'v_bfe_u32 {V(21)}, {V(vLANE)}, 2, 2'); A(f'v_lshrrev_b32 {V(22)}, 5, {V(vLANE)}'); A(f'v_xor_b32 {V(21)}, {V(21)}, {V(22)}')
        A(f'v_xor_b32 {V(22)}, 2, {V(21)}')
        A(f'v_lshl_add_u32 {V(vBR1)}, {V(22)}, 4, {V(vBR0)}')
        A(f'v_lshl_add_u32 {V(vBR0)}, {V(21)}, 4, {V(vBR0)}')
        A(f'v_mov_b32 {V(21)}, 0x3f803f80')
        for r in range(4): A(f'v_accvgpr_write_b32 {Areg(ONES + r)}, {V(21)}')
        A(f's_min_u32 {sT[0]}, {sW}, 2'); A(f's_lshl_b32 {sT[0]}, {sT[0]}, 10')
        A(f'v_add_u32 {V(vTRC)}, {sT[0]}, {V(vTR)}'); A(f'v_add_u32 {V(vTRC+1)}, {16*3072}, {V(vTRC)}')
        A(f'v_and_b32 {V(vHS)}, 15, {V(vLANE)}'); A(f'v_lshl_add_u32 {V(vHS)}, {V(vHS)}, 2, 64')
        A(f'v_mov_b32 {V(vONE)}, 1'); A(f'v_mov_b32 {V(vZERO)}, 0'); A(f'v_lshlrev_b32 {V(vL4)}, 2, {V(vLANE)}')
        emit(bounce_addr_ops(vBW, vBRD)); emit(wt_setup_ops()); emit(wflag_addr_ops(vWF, 20, 21))
        pt = pretouch_ops(20); emit(pt[:-1]); A(f'v_mov_b32 {V(vPT)}, {V(20)}')
        leader_announce(nq, vONE, vZERO)
        def conv_scalars():
            A(f's_lshl_b32 {sFL}, {sJ}, 7'); A(f's_lshl2_add_u32 {sFL}, {sW}, {sFL}'); A(f's_add_u32 {sFL}, {sFL}, {sFB}'); A(f's_add_u32 {sFL}, {sFL}, {LY.F_KV}')
            A(f's_lshl_b32 {sT[0]}, {sC}, 4'); A(f's_add_u32 {sT[0]}, {sT[0]}, {sJ}'); A(f's_lshl2_add_u32 {sT[0]}, {sT[0]}, {sW}')
            A(f's_lshl_b32 {sCO}, {sT[0]}, 12'); A(f's_add_u32 {sCO}, {sCO}, {LY.WT_OFF}')
            A(f's_lshl_b32 {sC1}, {sT[0]}, 7'); A(f's_add_u32 {sC1}, {sC1}, {LY.CS1_OFF}')
            A(f's_cmp_ge_u32 {sT[0]}, 448'); A(f's_cselect_b32 {sC1}, 0x70000000, {sC1}')
        if OPT.get('s0st'): stamp('setup')
        emit(xdma_ops(1)); emit(wdma_ops(1))
        def warm3():
            A(f's_lshl2_add_u32 {sT[1]}, s2, {sW}'); A(f's_lshl_b32 {sT[2]}, {sT[1]}, 9'); A(f's_mul_i32 {sT[1]}, {sT[1]}, {14*128}')
            A(f'v_min_u32 {V(TT+24)}, 13, {V(vLANE)}'); A(f'v_lshlrev_b32 {V(TT+24)}, 7, {V(TT+24)}'); A(f'v_min_u32 {V(TT+25)}, {3*128}, {V(TT+24)}')
            A(f'buffer_load_dword a34, {V(TT+24)}, {SW1}, {sT[1]} offen'); A(f'buffer_load_dword a35, {V(TT+25)}, {SWO}, {sT[2]} offen')
            A(f'buffer_load_dword a38, {V(TT+24)}, {SW2}, {sT[1]} offen')
        if OPT.get('warm3', 1) == 1: warm3()
        if OPT.get('s0st'): stamp('iss1')
        for X in range(2): emit(unpack_ops(TT, X)); emit(spart_ops(TT, TT + 8, X, True))
        A.wait_lgkm()
        conv_tr = []; conv_st = [f'v_and_b32 {V(TT+22)}, 127, {V(vL4)}']
        for q in range(4): conv_tr += wtrans_ops(Areg(CVR + 4*q, 4), vBW, vBRD)
        for q in range(4):
            conv_st += [f'buffer_store_dwordx4 {Areg(CVR + 4*q, 4)}, {V(vL16)}, {SWS}, {sCO} offen offset:{1024*q} sc1',
                        f'{MFMA} {Areg(CSB,16)}, {Areg(ONES,4)}, {Areg(CVR + 4*q, 4)}, {"0" if q == 0 else Areg(CSB,16)}']
        conv_last = lambda: cvtok.append(A(f'buffer_store_dword {Areg(CSB)}, {V(TT+22)}, {SWS}, {sC1} offen sc1'))
    else:
        A(f'v_and_b32 {V(vA)}, 31, {V(vLANE)}'); A(f'v_lshlrev_b32 {V(vA)}, 2, {V(vA)}')
        A(f's_lshl_b32 {sT[0]}, {sW}, 7'); A(f's_add_u32 {sT[0]}, {sT[0]}, {sFB}'); A(f's_add_u32 {sT[0]}, {sT[0]}, {LY.F_X2}')
        flag_issue(vB, vA, sT[0])
        A(f's_lshl_b32 {sXB}, {sRBG}, 15'); A(f's_add_u32 {sXB}, {sXB}, {LY.X2_OFF}'); A(f's_lshl_b32 {sXK}, {sROT}, 12')
    A(f'v_add_u32 {V(vTRH)}, {16*3072}, {V(vTR)}')
    def wread(ks, parts):
        base = vTR if ks < 16 else vTRH
        for p in parts:
            r = wreg(ks, p); o = L_WQ + (ks % 16) * 3072 + p * 1024
            A(f'ds_read_b64_tr_b16 {V(r, 2)}, {V(base)} offset:{o}')
            A(f'ds_read_b64_tr_b16 {V(r + 2, 2)}, {V(base)} offset:{o + 256}')
    def cread(ks):
        r = CW + 4 * (ks & 1); b_ = vTRC + (ks >= 16); o = L_WQ + (ks % 16) * 3072
        A(f'ds_read_b64_tr_b16 {Areg(r, 2)}, {V(b_)} offset:{o}'); A(f'ds_read_b64_tr_b16 {Areg(r + 2, 2)}, {V(b_)} offset:{o + 256}')
    xrtok = {}
    def xfrag(st_):
        A.wait_vm(stage_tok[('x', st_)])
        for q in range(4):
            xrtok[st_] = A(f'ds_read_b128 {xop(4*st_ + q)}, {V(vBR1 if q & 1 else vBR0)} offset:{(st_ % 3) * 4096 + 512*(q>>1)}')
    def ready(ks):
        if first and ks % 4 == 0:
            A.wait_vm(stage_tok[('w', ks // 4)]); A('s_barrier')
    def xload_op(ks):
        ops = []
        if ks & 3 == 0: ops += [f's_xor_b32 {sXS}, {sXK}, {(ks >> 2) << 12}', f's_add_u32 {sXS}, {sXS}, {sXB}']
        return ops + [f'buffer_load_dwordx4 {xop(ks)}, {V(vL16)}, {SWS}, {sXS} offen offset:{(ks & 3) * 1024} sc1']
    xq = [] if first else list(range(32))
    def xissue(limit):
        if xq and xq[0] < limit: emit(xload_op(xq.pop(0))); return 4
        return 0
    SB0, SB1 = (TT + 12, TT + 16) if first else (CK, CV)
    sflag_ops = [f'v_and_b32 {V(vA)}, 7, {V(vLANE)}', f'v_lshlrev_b32 {V(vA)}, 2, {V(vA)}',
                 f's_lshl_b32 {sSF}, {sW}, 5', f's_add_u32 {sSF}, {sSF}, {sFB}', f's_add_u32 {sSF}, {sSF}, {LY.F_S2}',
                 lambda: flag_issue(vB, vA, sSF)] + stat_addr_ops(vC, vS1) + \
                [f's_lshl_b32 {sSTO}, {sRBG}, 11', f's_add_u32 {sSTO}, {sSTO}, {LY.ST2_OFF}']
    sload_ops = [lambda: flag_check(vB, vA, sSF, L + 1)] + stat_load_ops(SB0, SB1, vC, sSTO)
    nm_ops = stat_reduce_ops(SB0, SB1, vS1, vS2) + stats_finish_ops(vS1, vS2, vA, vB, vNM, vRS) + split_pack_ops(NMW, vNM, vA) + \
             [f'v_mov_b32 {V(NMW+1)}, 0', f'v_mov_b32 {V(NMW+2)}, 0', f'v_mov_b32 {V(NMW+3)}, 0',
              f's_lshl_b32 {sT[0]}, {sW}, 8', f's_add_u32 {sT[0]}, {sT[0]}, {L_STAT}',
              f'v_and_b32 {V(vA)}, 31, {V(vLANE)}', f'v_lshl_add_u32 {V(vA)}, {V(vA)}, 2, {sT[0]}',
              f'ds_write_b32 {V(vA)}, {V(vRS)}',
              f'v_lshrrev_b32 {V(vB)}, 5, {V(vLANE)}', f'v_lshl_add_u32 {V(vB)}, {V(vB)}, 4, {sT[0]}',
              f'v_lshlrev_b32 {V(vA)}, 2, {V(vLANE)}', f'v_add_u32 {V(vA)}, {L_CSQ}, {V(vA)}']
    sKV = sU[3]
    if not first:
        wread(0, [1, 2, 0])
        flag_check(vB, vA, sT[0], L)
        stamp('p1poll')
        for ks in range(OPT.get('p1pre', 12)): xissue(16)
        for p_ in PENDING: p_()
    else:
        xfrag(0); ready(0); wread(0, [1, 2, 0]); cread(0)
        stamp('p1x')
        if not OPT.get('x_nostat'):
            emit(scomb_ops(TT, LY.ST2_OFF, stoks))
            flag_issue(vHV, vHS, '0', SDBG)
        D.adds(xdma_ops(2)); D.adds(wdma_ops(2))
        if OPT.get('warm3', 1) == 2: D.add(warm3)
        XL = OPT.get('xl', 2)
        xat = {st_: max(st_, min(4*st_ - 2, 4*st_ - 4*XL + 2)) if st_ < 4 else max(4*(st_ - 4) + 3, 4*st_ - 4*XL + 2) for st_ in range(1, 8)}
        def xslot_free(st_):
            if st_ + 3 < 8:
                D.add(lambda: A.wait_lgkm(xrtok[st_]), 0); D.adds(xdma_ops(st_ + 3))
        xslot_free(0); D.adds(wdma_ops(3))
        if OPT.get('warm3', 1) == 3: D.add(warm3)
        wnext = [4]
    def fill(b):
        if D.q: b = D.run(b)
        F.run(b)
    for ks in range(32):
        if OPT.get('p1st') and ks % 4 == 0: stamp(f'k{ks}')
        c = lambda a: '0' if ks == 0 else V(a, 16)
        x = xop(ks)
        nparts = [1, 2, 0] if ks + 1 < 16 else [1, 2]
        if ks + 1 < 32: ready(ks + 1)
        A(f'{MFMA} {V(ak,16)}, {V(wreg(ks,1),4)}, {x}, {c(ak)}')
        if ks + 1 < 32: wread(ks + 1, nparts[:1])
        else: wread(16, [0])
        fill(12 - xissue(ks + 16))
        A(f'{MFMA} {V(av,16)}, {x}, {V(wreg(ks,2),4)}, {c(av)}')
        if ks + 1 < 32: wread(ks + 1, nparts[1:2])
        fill(12)
        if ks < 16:
            A(f'{MFMA} {V(aq,16)}, {V(wreg(ks,0),4)}, {x}, {c(aq)}')
            if len(nparts) > 2: wread(ks + 1, nparts[2:])
            fill(12 - xissue(ks + 17))
        if first:
            A(f'{MFMA} {Areg(CSA,16)}, {Areg(ONES,4)}, {Areg(CW + 4*(ks&1),4)}, {"0" if ks == 0 else Areg(CSA,16)}')
            if ks + 1 < 32: cread(ks + 1)
            fill(12)
            for st_ in range(1, 8):
                if xat[st_] == ks:
                    while ('x', st_) not in stage_tok or any(getattr(o, 'st', None) == ('x', st_) for o, _ in D.q): D._do(D.q.pop(0)[0])
                    xfrag(st_); xslot_free(st_)
                    if wnext[0] < 8: D.adds(wdma_ops(wnext[0])); wnext[0] += 1
            if ks % 4 == 2 and ks // 4 + 1 < 8:
                key = ('w', ks // 4 + 1)
                while key not in stage_tok or any(getattr(o, 'st', None) == key for o, _ in D.q): D._do(D.q.pop(0)[0])
            if ks == OPT.get('sf0', 11): F.adds(sflag_ops)
            if ks == OPT.get('sl0', 15): F.flush(); emit(sload_ops)
            if not D.q and wnext[0] == 8 and ('x', 7) in stage_tok and 'b' not in L0 and ks >= OPT.get('bmin', 15):
                L0['b'] = ks
                if not OPT.get('x_noconv'): F.flush(); conv_issue(CVR, TT + 24)
                conv_scalars()
            if 'b' in L0 and ks == min(L0['b'] + OPT.get('cvd', 6), 29):
                F.adds(conv_tr); F.adds(conv_st); F.add('s_nop 7'); F.add(conv_last)
            if ks == OPT.get('sfk', 7) and not OPT.get('x_nostat'):
                flag_check(vHV, vHS, '0', 1, SDBG, sleep=2)
                sflag(vONE, vZERO, stoks, LY.F_S2)
            if ks == 26: F.adds(nm_ops)
            if ks == 30: F.flush()
        else:
            if ks == 10: F.adds(sflag_ops)
            if ks == 15: F.flush(); F.adds(sload_ops)
            if ks == 20: F.adds(nm_ops)
            if ks == 27:
                F.flush()
                for r in (1, 2, 3): A(f'v_mov_b32 {V(CK + r)}, 0'); A(f'v_mov_b32 {V(CV + r)}, 0')
                A(f'ds_read_b32 {V(CK)}, {V(vA)} offset:256'); A(f'ds_read_b32 {V(CV)}, {V(vA)} offset:512'); A(f'ds_read_b32 {V(CV + 2)}, {V(vA)}')
            if ks == 29: A(f'{MFMA} {V(ak,16)}, {V(CK,4)}, {V(NMW,4)}, {V(ak,16)}')
            if ks == 30:
                A(f'{MFMA} {V(av,16)}, {V(NMW,4)}, {V(CV,4)}, {V(av,16)}')
                A(f'{MFMA} {V(aq,16)}, {V(CV+2,4)}, {V(NMW,4)}, {V(aq,16)}')
        if ks == (27 if first else 28):
            F.adds([f's_lshl_b32 {sKV}, {sJ}, 6', f's_add_u32 {sKV}, {sKV}, {sRBG}', f's_lshl_b32 {sKV}, {sKV}, 12',
                    f's_add_u32 {sKV}, {sKV}, {LY.KV_OFF + L*LY.KV_LAYER}',
                    f's_add_u32 {sT[0]}, {sW}, 4', f's_mul_i32 {sT[0]}, {sT[0]}, {KVSLOT}', f's_add_u32 {sT[0]}, {sT[0]}, {L_KV}',
                    f'v_add_u32 {V(vC)}, {sT[0]}, {V(vL16)}'])
            if first:
                F.adds([f'v_mov_b32 {V(TT + r)}, 0' for r in (1, 3, 5, 6, 7)])
                F.adds([f's_min_u32 {sT[1]}, {sW}, 2', f's_lshl_b32 {sT[1]}, {sT[1]}, 8', f's_add_u32 {sT[1]}, {sT[1]}, {L_CSQ}', f'v_add_u32 {V(TT+11)}, {sT[1]}, {V(vL4)}'])
    F.flush()
    assert not xq and not D.q
    if OPT.get('p1st') or OPT.get('span') == 2: stamp('kend')
    RSR = [wreg(0, 1), wreg(0, 2), wreg(1, 1), wreg(1, 2)]
    for g in range(4): F.add(f'ds_read_b128 {V(RSR[g], 4)}, {V(vB)} offset:{32*g}')
    if first:
        WK, WV, WQ = TT, TT + 2, TT + 4
        F.adds([f'v_cmp_gt_u32 vcc, 32, {V(vLANE)}', f'v_accvgpr_read_b32 {V(TT+8)}, {Areg(CSA)}'])
        F.adds(cs_pack_ops(TT + 9, TT + 8, TT + 10))
        F.adds([f'ds_write_b32 {V(TT+11)}, {V(TT+9)}', lambda: (A.wait_lgkm(), A('s_barrier')),
                f'ds_read_b32 {V(WK)}, {V(vA)} offset:256', f'ds_read_b32 {V(WV)}, {V(vA)} offset:512', f'ds_read_b32 {V(WQ)}, {V(vA)}'])
        F.add('s_nop 0', 56)
        F.adds([f'{MFMA} {V(ak,16)}, {V(WK,4)}, {V(NMW,4)}, {V(ak,16)}', f'{MFMA} {V(av,16)}, {V(NMW,4)}, {V(WV,4)}, {V(av,16)}',
                f'{MFMA} {V(aq,16)}, {V(WQ,4)}, {V(NMW,4)}, {V(aq,16)}'])
    kvtok = []
    for acc, isv in ((ak, False), (av, True)):
        for half in range(2):
            for r in range(8 * half, 8 * half + 8):
                sc = V(RSR[r >> 2] + (r & 3)) if isv else V(vRS)
                F.add(f'v_mul_f32 {V(acc+r)}, {V(acc+r)}, {sc}')
            for r in range(8 * half, 8 * half + 8, 2):
                F.add(f'v_cvt_pk_bf16_f32 {V(acc + r//2)}, {V(acc+r)}, {V(acc+r+1)}')
            f = 2 * isv + half
            F.add(lambda acc=acc, half=half, f=f: kvtok.append(A(f'buffer_store_dwordx4 {V(acc + 4*half, 4)}, {V(vL16)}, {SWS}, {sKV} offen offset:{1024*f} sc1')))
    for f, reg in enumerate((ak, ak + 4, av, av + 4)): F.add(f'ds_write_b128 {V(vC)}, {V(reg, 4)} offset:{1024*f}')
    T = ak + 8
    F.adds([f'v_min_u32 {V(vA)}, 11, {V(vLANE)}', f'v_lshrrev_b32 {V(vS2)}, 1, {V(vA)}', f'v_and_b32 {V(vS2)}, 6, {V(vS2)}', f'v_bfe_u32 {V(vS2)}, 18, {V(vS2)}, 2',
            f'v_mov_b32 {V(T)}, 0x3f803f80', f'v_cmp_ge_u32 vcc, {sC}, {V(vS2)}',
            f'v_mul_u32_u24 {V(vA)}, {KVSLOT}, {V(vA)}', f'v_add_u32 {V(vA)}, {L_KV + 4096}, {V(vA)}',
            f'v_cndmask_b32 {V(T)}, 0, {V(T)}, vcc'] + [f'v_mov_b32 {V(T+r)}, {V(T)}' for r in range(1, 4)] +
           [f'ds_write_b128 {V(vA)}, {V(T,4)}',
            f's_lshl_b32 {sT[0]}, {sJ}, 7', f's_lshl2_add_u32 {sT[0]}, {sW}, {sT[0]}', f's_add_u32 {sT[0]}, {sT[0]}, {sFB}', f's_add_u32 {sT[0]}, {sT[0]}, {LY.F_KV}',
            f's_add_u32 {sT[1]}, {sXCC}, {(L + 1) << 8}',
            f'v_mov_b32 {V(vS1)}, {sT[1]}', f'v_mov_b32 {V(vC)}, 0', f'v_mul_f32 {V(vNM)}, {f32(0.25 * LOG2E)}, {V(vRS)}'])
    for ks in range(16, 32):
        if ks + 1 < 32: wread(ks + 1, [0])
        A(f'{MFMA} {V(aq,16)}, {V(wreg(ks,0),4)}, {xop(ks)}, {V(aq,16)}')
        F.run(OPT.get('qtb', 56) if len(kvtok) < 4 else 16)
    F.flush()
    if OPT.get('p1st'): stamp('qtail')
    QEPI[:] = [f'v_pk_mul_f32 {V(aq+r,2)}, {V(aq+r,2)}, {V(vNM,2)} op_sel_hi:[1,0]' for r in range(0, 16, 2)] + \
              [f'v_cvt_pk_bf16_f32 {V(P2Q + r//2)}, {V(aq+r)}, {V(aq+r+1)}' for r in range(0, 16, 2)]
    A.wait_vm(kvtok[-1]); flag_set(vS1, vC, sT[0], fastok=False)
    if first:
        flag_set(vONE, vZERO, sFL, fastok=False, imm=2048)
        L0.update(cvtok=cvtok, vONE=vONE, vZERO=vZERO, vWF=vWF, vWV=vWV, vPT=vPT, vL4=vL4)
    stamp('p1end')

def cs_final_ops(T, n, dst_lds):
    ops = []
    while n > 1:
        n //= 2
        ops += [f'v_add_f32 {V(T+i)}, {V(T+i)}, {V(T+n+i)}' for i in range(n)]
    ops += [f'v_mov_b32 {V(T+1)}, {V(T)}', f'v_cmp_gt_u32 vcc, 32, {V(vLANE)}', f'v_lshl_add_u32 {V(T+3)}, {V(vLANE)}, 2, {dst_lds}',
            f'v_permlane32_swap_b32 {V(T+1)}, {V(T)}', f'v_add_f32 {V(T)}, {V(T)}, {V(T+1)}']
    return ops + cs_pack_ops(T + 1, T, T + 2) + [f'ds_write_b32 {V(T+3)}, {V(T+1)}']

sBAD = 's[96:97]' if not STAMPS else 's[34:35]'
def p2(L):
    first = (L == 0)
    vKR, vV0, vV1, vPM, vA, vB, vKM, vD = vP
    vVA = [vV0, vV1]
    sWS_, sO, sHF, sHD, sHF2, sHD2 = sU[0], sU[1], sU[2], sU[3], sU[4], sU[5]
    A(f's_sub_u32 {sHF}, {sT[0]}, 8192'); A(f's_sub_u32 {sHF2}, {sT[0]}, 16384')
    A(f's_sub_u32 {sHD2}, {sHD}, 32768'); A(f's_sub_u32 {sHD}, {sHD}, 16384')
    A(f's_cmp_lt_u32 {sC}, 1'); A(f's_cselect_b32 {sHF}, {sT[0]}, {sHF}'); A(f's_cselect_b32 {sHD}, 0x7ff00000, {sHD}')
    A(f's_cmp_lt_u32 {sC}, 2'); A(f's_cselect_b32 {sHF2}, {sHF}, {sHF2}'); A(f's_cselect_b32 {sHD2}, 0x7ff00000, {sHD2}')
    A(f'v_and_b32 {V(vA)}, 1, {V(vLANE)}'); A(f's_sub_u32 {sT[1]}, {sHF}, {sHF2}'); A(f'v_mul_lo_u32 {V(vA)}, {V(vA)}, {sT[1]}')
    if not first and OPT.get('woe', 1):
        for g_ in range(1, 4): emit(wo_load_ops(g_))
    emit(QEPI)
    A(f's_mul_i32 {sWS_}, {sW}, {KVSLOT}')
    A(f'v_add_u32 {V(vKM)}, {L_KV}, {V(vL16)}'); A(f'v_add_u32 {V(vKR)}, {sWS_}, {V(vKM)}')
    A(f'v_add_u32 {V(vPM)}, {L_PMASK}, {V(vL16)}')
    A(f's_lshl_b32 {sO}, {sRBG}, 15'); A(f's_lshl_b32 {sT[1]}, {sJ}, 11'); A(f's_add_u32 {sO}, {sO}, {sT[1]}'); A(f's_add_u32 {sO}, {sO}, {LY.O_OFF}')
    A(f's_mov_b64 {sBAD}, 0')
    vstate = [None, None]
    def vset(f, hd, aset, t0=None, t1=None):
        t0 = vA if t0 is None else t0; t1 = vB if t1 is None else t1
        st = vstate[f]
        if st == (hd, aset): return
        if st is not None and st[0] == hd:
            A(f'v_add_u32 {V(vVA[f])}, {sWS_}, {V(vVA[f])}' if aset == 'o' else f'v_subrev_u32 {V(vVA[f])}, {sWS_}, {V(vVA[f])}')
        else:
            kb = vKR if aset == 'o' else vKM
            A(f'v_bfe_u32 {V(t0)}, {V(vLANE)}, 4, 1'); A(f'v_cmp_eq_u32 vcc, {hd}, {V(t0)}')
            A(f'v_sub_u32 {V(t0)}, {V(kb)}, {V(vL16)}'); A(f'v_add_u32 {V(t1)}, {2048 + 1024*f}, {V(kb)}'); A(f'v_add_u32 {V(t0)}, 4096, {V(t0)}')
            A(f'v_cndmask_b32 {V(vVA[f])}, {V(t0)}, {V(t1)}, vcc')
        vstate[f] = (hd, aset)
    vset(0, 0, 'm', P2SA, P2SA + 1); vset(1, 0, 'm', P2SA, P2SA + 1)
    A(f's_add_u32 {sT[1]}, {sWS_}, {L_KV}'); A(f's_add_u32 {sT[2]}, {sT[1]}, {8*KVSLOT}')
    smp = [P2SB, P2SB + 1, P2SB + 2, P2SB + 3]
    for k, r in enumerate(smp):
        A(f's_sleep {OPT.get("hs0", 2) if k == 0 else OPT.get("hs1", 3)}')
        flag_issue(r, vA, sHF2)
    flag_check_multi(smp, [3, 2, 1, 0], vA, sHF2, (L + 1) << 8)
    stamp('halopoll')
    A(f's_mov_b32 m0, {sT[2]}')
    for f in range(4): t1 = A(f'buffer_load_dwordx4 {V(vL16)}, {SWS}, {sHD} offen offset:{1024*f} sc1 lds')
    A(f's_mov_b32 m0, {sT[1]}')
    for f in range(4): t2 = A(f'buffer_load_dwordx4 {V(vL16)}, {SWS}, {sHD2} offen offset:{1024*f} sc1 lds')
    BG = Fill()
    if first or not OPT.get('woe', 1):
        for g_ in range(1, 4): BG.adds(wo_load_ops(g_))
    if first:
        vCA, vCV = 248, 249
        A(f'v_lshrrev_b32 {V(P2P)}, 2, {V(vLANE)}'); A(f'v_lshlrev_b32 {V(P2P)}, 7, {V(P2P)}'); A(f'v_and_b32 {V(P2P+1)}, 3, {V(vLANE)}')
        A(f'v_lshl_add_u32 {V(vCA)}, {V(P2P+1)}, 2, {V(P2P)}')
        A(f's_add_u32 {sHF}, {sFB}, {LY.F_KV}')
        A(f'buffer_load_dword a35, {V(L0["vPT"])}, {SWS}, 0 offen sc1')
        if OPT.get('hpt') == 1:
            A(f's_mul_i32 {sT[4]}, {sC}, {4*112*1024}'); A(f's_lshl2_add_u32 {sT[3]}, {sJ}, {sW}'); A(f's_min_u32 {sT[3]}, {sT[3]}, 55'); A(f's_lshl_b32 {sT[3]}, {sT[3]}, 11')
            A(f's_add_u32 {sT[4]}, {sT[4]}, {sT[3]}'); A(f's_add_u32 {sT[4]}, {sT[4]}, {LY.H_OFF}')
            A(f'v_lshrrev_b32 {V(P2P)}, 4, {V(vLANE)}'); A(f'v_mul_u32_u24 {V(P2P)}, {112*1024}, {V(P2P)}')
            A(f'v_and_b32 {V(P2P+1)}, 15, {V(vLANE)}'); A(f'v_lshl_add_u32 {V(P2P)}, {V(P2P+1)}, 7, {V(P2P)}')
            A(f'buffer_load_dword a223, {V(P2P)}, {SWS}, {sT[4]} offen sc1')
        BG.q[0:0] = [(o, 4) for o in [f's_lshl2_add_u32 {sT[3]}, {sJ}, {sW}', f's_min_u32 {sT[3]}, {sT[3]}, 55', f's_lshl_b32 {sT[3]}, {sT[3]}, 10', f's_add_u32 {sT[3]}, {sT[3]}, {LY.CS1_OFF}'] +
                     [f'buffer_load_dword {V(244+t_)}, {V(L0["vL4"])}, {SWS}, {sT[3]} offen offset:{256*t_} sc1' for t_ in range(4)]]
        for ks in range(min(W1EARLY, 24)): BG.adds(w1_load_ops(ks))
        BG.adds([f's_lshl_b32 {sT[2]}, {sW}, 8', f's_add_u32 {sT[2]}, {sT[2]}, {L_CS1}'])
        BG.add(lambda: emit(cs_final_ops(244, 4, sT[2])))
        for ks in range(24, W1EARLY): BG.adds(w1_load_ops(ks))
        for t_ in range(W2EARLY): BG.adds(w2_load_ops(t_))
    A.wait_vm(t1); A.wait_lgkm(); A('s_barrier')
    stamp('halodma')
    Sb = [P2SA, P2SB]
    mid = lambda hd: [(hd, 'f', 'm', p) for p in (8, 9, 10, 11)]
    out = lambda hd: [(hd, 'x', 'o', 4)] + [(hd, 'f', 'o', d) for d in (3, 2, 1)]
    units = mid(0) + out(0) + out(1) + mid(1)
    def kread(hd, aset, p): A(f'ds_read_b128 {V(P2K,4)}, {V(vKR if aset == "o" else vKM)} offset:{p*KVSLOT + 1024*hd}')
    def vread(f, hd, aset, p, base):
        vset(f, hd, aset)
        A(f'ds_read_b128 {V(base,4)}, {V(vVA[f])} offset:{p*KVSLOT}')
    qk = lambda hd, s: A(f'{MFMA} {V(s,16)}, {V(P2K,4)}, {V(P2Q + 4*hd, 4)}, 0')
    def pv(vb, pb, start=False):
        A(f'{MFMA} {V(P2O,16)}, {V(vb,4)}, {V(pb,4)}, {"0" if start else V(P2O,16)}')
    otok = []
    def o_epilogue_ops(hd, tmp):
        ob, lb = (P2O, P2O + 8) if hd == 0 else (P2O + 8, P2O)
        ops = [f'v_rcp_f32 {V(vA)}, {V(lb)}', f'v_subrev_u32 {V(lb+4)}, {(127-40) << 23}, {V(lb)}']
        ops += [f'v_mul_f32 {V(ob+r)}, {V(ob+r)}, {V(vA)}' for r in range(8)]
        ops += [f'v_cmp_lt_u32 vcc, {80 << 23}, {V(lb+4)}']
        ops += [f'v_cvt_pk_bf16_f32 {V(tmp + r//2)}, {V(ob+r)}, {V(ob+r+1)}' for r in range(0, 8, 2)]
        ops += [f's_or_b64 {sBAD}, {sBAD}, vcc']
        ops.append(lambda: otok.append(store_dual([f'buffer_store_dwordx4 {V(tmp,4)}, {V(vL16)}, {SWS}, {sO} offen offset:{1024*hd}'])))
        return ops
    u0, u1 = units[0], units[1]
    kread(u0[0], u0[2], u0[3]); vread(0, u0[0], u0[2], u0[3], P2V); qk(0, Sb[0]); kread(u1[0], u1[2], u1[3])
    bgb = 0 if first else 4
    pendPV1 = None
    for n, (hd, kind, aset, d) in enumerate(units):
        if OPT.get('p2st') and L == 1 and n % 2 == 0: stamp(f'u{n}')
        s = Sb[n & 1]; nxt = Sb[(n + 1) & 1]
        nu = units[n + 1] if n + 1 < len(units) else None
        nu2 = units[n + 2] if n + 2 < len(units) else None
        start = (n % 8 == 0)
        E = lambda r: A(f'v_exp_f32 {V(s+r)}, {V(s+r)}')
        C = lambda t: A(f'v_cvt_pk_bf16_f32 {V(P2P + t)}, {V(s+2*t)}, {V(s+2*t+1)}')
        def posA():
            if pendPV1: pv(*pendPV1)
            vread(1, hd, aset, d, P2V + 4)
        def posB():
            if nu:
                qk(nu[0], nxt)
                if n == 3: A.wait_vm(t2); A('s_barrier')
                if nu[1] == 'x': kread(nu[0], 'o', 0)
                elif nu2: kread(nu2[0], nu2[2], nu2[3])
        def posB2():
            if nu and nu[1] == 'x':
                qk(nu[0], P2SC); kread(nu2[0], nu2[2], nu2[3])
        def posC_next_v0():
            if nu: vread(0, nu[0], nu[2], nu[3], P2V)
        if kind == 'f':
            E(0); E(1); posA(); E(2); E(3); C(0); E(4); E(5); BG.run(bgb); C(1); posB(); E(6); E(7); C(2); E(8); C(3); E(9); E(10)
            pv(P2V, P2P, start); posC_next_v0()
            E(11); C(4); E(12); E(13); BG.run(bgb); C(5); posB2(); E(14); E(15); C(6); BG.run(bgb); C(7)
            pendPV1 = (P2V + 4, P2P + 4)
        else:
            M = lambda r: A(f'v_cndmask_b32 {V(s+r)}, {V(P2SC+r)}, {V(s+r)}, s[{SMASK0+2*r}:{SMASK0+2*r+1}]')
            M(0); M(1); posA()
            for r in range(2, 16): M(r)
            A(f'ds_read_b128 {V(P2SC,4)}, {V(vPM)}'); A(f'ds_read_b128 {V(P2SC+4,4)}, {V(vPM)} offset:1024')
            vread(0, hd, 'o', 0, P2SC + 8); vread(1, hd, 'o', 0, P2SC + 12)
            posB()
            if hd == 1: emit(o_epilogue_ops(0, P2O + 8))
            E(0); E(1); E(2); E(3); C(0); E(4); E(5); C(1); E(6); E(7); C(2); E(8); C(3); E(9)
            for t in range(4): A(f'v_and_b32 {V(P2SC+t)}, {V(P2SC+t)}, {V(P2P+t)}')
            E(10); E(11)
            pv(P2V, P2SC, start); posC_next_v0()
            for t in range(4): A(f'v_xor_b32 {V(P2P+t)}, {V(P2SC+t)}, {V(P2P+t)}')
            C(4); E(12); E(13)
            pv(P2SC + 8, P2P)
            C(5); E(14); E(15); C(6); BG.run(bgb); C(7)
            for t in range(4, 8): A(f'v_and_b32 {V(P2SC+t)}, {V(P2SC+t)}, {V(P2P+t)}')
            for t in range(4, 6): A(f'v_xor_b32 {V(P2P+t)}, {V(P2SC+t)}, {V(P2P+t)}')
            pv(P2V + 4, P2SC + 4)
            for t in range(6, 8): A(f'v_xor_b32 {V(P2P+t)}, {V(P2SC+t)}, {V(P2P+t)}')
            pendPV1 = (P2SC + 12, P2P + 4)
        if first and n == OPT.get('wfi', 0): flag_issue(L0['vWV'], L0['vWF'], '0'); flag_issue(vCV, vCA, sHF)
        if first and n == OPT.get('wfc', 3):
            flag_check(L0['vWV'], L0['vWF'], '0', 1, sleep=2); bgb = OPT.get('bgb', 8)
            flag_check(vCV, vCA, sHF, 256)
            A(f'v_and_b32 {V(vCV)}, 255, {V(vCV)}'); A(f'v_cmp_ne_u32 vcc, {sXCC}, {V(vCV)}')
            A(f's_cmp_eq_u64 vcc, 0'); A(f's_cselect_b32 {sFAST}, {0 if FORCE_SLOW else 1}, 0')
        if n == 9:
            BG.q[0:0] = [(o, 4) for o in wo_load_ops(0)]
    pv(*pendPV1)
    BG.flush()
    A(f's_lshl_b32 {sT[0]}, {sW}, 6'); A(f's_lshl2_add_u32 {sT[0]}, {sJ}, {sT[0]}'); A(f's_add_u32 {sT[0]}, {sT[0]}, {sFB}')
    emit(o_epilogue_ops(1, P2SA))
    fb = A.newlabel('Lsafe'); bk = A.newlabel('Lsafeback')
    A(f's_cmp_lg_u64 {sBAD}, 0' if not OPT.get('forcesafe') else 's_cmp_eq_u32 s2, s2'); A(f's_cbranch_scc1 {fb}')
    A.label(bk)
    OOL.append(safe_softmax(fb, bk, vKR, vKM, sWS_, sO))
    A(f'v_mov_b32 {V(vB)}, {L + 1}'); A(f'v_mov_b32 {V(vD)}, 0')
    A('s_barrier')
    return dict(flag=(vB, vD, sT[0]), tok=otok)

def safe_softmax(entry, back, vKR, vKM, sWS_, sO):
    B = Asm()
    Q, S_, P_, K_, V_, O_, vM, vT, vAD, vVD = 60, 28, 44, 64, 72, 80, 52, 53, 54, 55
    sH, sI, sOFFS, sPASS = sT[1], sT[2], sT[3], sT[4]
    sA_, sB_, sMK = 's[46:47]', 's[48:49]', 'vcc'
    sPASS = sSPIN
    B.label(entry)
    B('s_waitcnt vmcnt(0) lgkmcnt(0)'); B('s_nop 15')
    B(f's_mov_b32 {sH}, 0')
    B.label(entry + '_h')
    B(f's_cmp_eq_u32 {sH}, 1'); B('s_cselect_b64 vcc, -1, 0')
    for r in range(4): B(f'v_cndmask_b32 {V(Q+r)}, {V(P2Q+r)}, {V(P2Q+4+r)}, vcc')
    B(f'v_mov_b32 {V(vM)}, 0xff800000')
    for r in range(16): B(f'v_mov_b32 {V(O_+r)}, 0')
    B(f's_mov_b32 {sPASS}, 0')
    B.label(entry + '_p')
    B(f's_mov_b32 {sI}, 0')
    B.label(entry + '_b')
    B(f's_add_u32 {sOFFS}, {sI}, {sW}'); B(f's_add_u32 s46, {sI}, 3'); B(f's_cmp_lt_u32 {sI}, 5'); B(f's_cselect_b32 {sOFFS}, {sOFFS}, s46')
    B(f's_lshr_b32 s46, {sOFFS}, 2'); B('s_mov_b32 s47, 0'); B('s_cmp_eq_u32 s46, 0'); B('s_cselect_b32 s47, 2, s47'); B('s_cmp_eq_u32 s46, 2'); B('s_cselect_b32 s47, 1, s47')
    B(f's_cmp_lt_u32 {sC}, s47'); B(f's_cbranch_scc1 {entry}_n')
    B(f's_mul_i32 {sOFFS}, {sOFFS}, {KVSLOT}')
    B(f'v_add_u32 {V(vAD)}, {sOFFS}, {V(vKM)}')
    B(f's_lshl_b32 s46, {sH}, 10'); B(f'v_add_u32 {V(vT)}, s46, {V(vAD)}')
    B(f'ds_read_b128 {V(K_,4)}, {V(vT)}')
    B(f'v_bfe_u32 {V(vT)}, {V(vLANE)}, 4, 1'); B(f'v_cmp_eq_u32 vcc, {sH}, {V(vT)}')
    B(f'v_sub_u32 {V(vT)}, {V(vAD)}, {V(vL16)}'); B(f'v_add_u32 {V(vT)}, 4096, {V(vT)}')
    for f in range(2):
        B(f'v_add_u32 {V(vVD+f)}, {2048 + 1024*f}, {V(vAD)}'); B(f'v_cndmask_b32 {V(vVD+f)}, {V(vT)}, {V(vVD+f)}, vcc')
        B(f'ds_read_b128 {V(V_+4*f,4)}, {V(vVD+f)}')
    B(f'{MFMA} {V(S_,16)}, {V(K_,4)}, {V(Q,4)}, 0')
    B(f's_cmp_lg_u32 {sI}, 0'); B(f's_cselect_b64 {sA_}, -1, 0')
    B(f's_cmp_lg_u32 {sI}, 4'); B(f's_cselect_b64 {sB_}, -1, 0')
    B(f'v_mov_b32 {V(vT)}, 0xff800000')
    for r in range(16):
        m = f's[{SMASK0+2*r}:{SMASK0+2*r+1}]'
        B(f's_and_b64 vcc, {m}, {sA_}'); B(f's_andn2_b64 {sBAD}, {sB_}, {m}'); B(f's_or_b64 vcc, vcc, {sBAD}')
        B(f'v_cndmask_b32 {V(S_+r)}, {V(vT)}, {V(S_+r)}, vcc')
    B(f's_cmp_eq_u32 {sPASS}, 1'); B(f's_cbranch_scc1 {entry}_2')
    for r in range(0, 16, 2): B(f'v_max3_f32 {V(vM)}, {V(S_+r)}, {V(S_+r+1)}, {V(vM)}')
    B(f's_branch {entry}_n')
    B.label(entry + '_2')
    for r in range(16): B(f'v_sub_f32 {V(S_+r)}, {V(S_+r)}, {V(vM)}')
    for r in range(16): B(f'v_exp_f32 {V(S_+r)}, {V(S_+r)}')
    for t in range(8): B(f'v_cvt_pk_bf16_f32 {V(P_+t)}, {V(S_+2*t)}, {V(S_+2*t+1)}')
    for f in range(2): B(f'{MFMA} {V(O_,16)}, {V(V_+4*f,4)}, {V(P_+4*f,4)}, {V(O_,16)}')
    B.label(entry + '_n')
    B('s_waitcnt lgkmcnt(0)'); B('s_nop 15')
    B(f's_add_u32 {sI}, {sI}, 1'); B(f's_cmp_lt_u32 {sI}, 9'); B(f's_cbranch_scc1 {entry}_b')
    B(f'v_mov_b32 {V(vT)}, {V(vM)}'); B(f'v_permlane32_swap_b32 {V(vT)}, {V(vM)}'); B(f'v_max_f32 {V(vM)}, {V(vM)}, {V(vT)}')
    B(f's_add_u32 {sPASS}, {sPASS}, 1'); B(f's_cmp_lt_u32 {sPASS}, 2'); B(f's_cbranch_scc1 {entry}_p')
    B(f's_cmp_eq_u32 {sH}, 1'); B('s_cselect_b64 vcc, -1, 0')
    B(f'v_cndmask_b32 {V(vT)}, {V(O_+8)}, {V(O_)}, vcc'); B(f'v_rcp_f32 {V(vT)}, {V(vT)}')
    for r in range(8): B(f'v_cndmask_b32 {V(S_+r)}, {V(O_+r)}, {V(O_+8+r)}, vcc')
    for r in range(8): B(f'v_mul_f32 {V(S_+r)}, {V(S_+r)}, {V(vT)}')
    for t in range(4): B(f'v_cvt_pk_bf16_f32 {V(P_+t)}, {V(S_+2*t)}, {V(S_+2*t+1)}')
    B(f's_lshl_b32 s46, {sH}, 10'); B(f's_add_u32 s46, s46, {sO}')
    B(f'buffer_store_dwordx4 {V(P_,4)}, {V(vL16)}, {SWS}, s46 offen sc1')
    B('s_waitcnt vmcnt(0)')
    B(f's_add_u32 {sH}, {sH}, 1'); B(f's_cmp_lt_u32 {sH}, 2'); B(f's_cbranch_scc1 {entry}_h')
    B(f's_branch {back}')
    return B.finalize().rstrip('\n')

def red_addr_ops(vw, vr, area):
    ops = []
    for q in (1, 2, 3):
        ops += [f's_xor_b32 {sT[7]}, {sW}, {q}', f's_mul_i32 {sT[7]}, {sT[7]}, 6144', f's_add_u32 {sT[7]}, {sT[7]}, {area + (q-1)*2048}',
                f'v_add_u32 {V(vw + q - 1)}, {sT[7]}, {V(vL16)}']
    ops += [f's_mul_i32 {sT[7]}, {sW}, 6144', f's_add_u32 {sT[7]}, {sT[7]}, {area}', f'v_add_u32 {V(vr)}, {sT[7]}, {V(vL16)}']
    return ops
def send_ops(acc, vw, off):
    return [f'ds_write_b128 {V(vw + q - 1)}, {V(acc + 8*q + 4*h, 4)} offset:{off + 1024*h}' for q in (1, 2, 3) for h in range(2)]
def recv_ops(dst, vr, off):
    return [f'ds_read_b128 {V(dst + 4*k, 4)}, {V(vr)} offset:{off + 1024*k}' for k in range(6)]
def unpack_ops(dst, X):
    ops = []
    for t in range(4):
        ops += [f'v_lshlrev_b32 {V(dst + 2*t)}, 16, {V(vRES + 4*X + t)}', f'v_and_b32 {V(dst + 2*t + 1)}, 0xffff0000, {V(vRES + 4*X + t)}']
    return ops
def add8_ops(y, a, b, pk):
    if pk: return [f'v_pk_add_f32 {V(y+r,2)}, {V(a+r,2)}, {V(b+r,2)}' for r in range(0, 8, 2)]
    return [f'v_add_f32 {V(y+r)}, {V(a+r)}, {V(b+r)}' for r in range(8)]

def finish_ops(y, part, X, pk, sxo, toks, last=False, vout=None):
    ops = add8_ops(part, part, part + 8, pk) + add8_ops(y, y, part + 16, pk) + add8_ops(y, y, part, pk)
    ops += [f'v_cvt_pk_bf16_f32 {V(vRES + 4*X + r//2)}, {V(y+r)}, {V(y+r+1)}' for r in range(0, 8, 2)]
    if last:
        ops.append(lambda: toks.append(A(f'buffer_store_dwordx4 {V(vRES + 4*X, 4)}, {V(vout)}, {SOUT}, {sxo} offen')))
        return ops
    ops.append(lambda: toks.append(store_dual([f'buffer_store_dwordx4 {V(vRES + 4*X, 4)}, {V(vL16)}, {SWS}, {sxo} offen'])))
    return ops + spart_ops(y, part, X, pk)

def out_scalars_ops(sxo, sfl, xoff, foff):
    return [f's_lshl2_add_u32 {sT[6]}, {sC}, {sRH}', f's_lshl2_add_u32 {sT[7]}, {sCB}, {sW}',
            f's_lshl_b32 {sxo}, {sT[6]}, 5', f's_add_u32 {sxo}, {sxo}, {sT[7]}', f's_lshl_b32 {sxo}, {sxo}, 10', f's_add_u32 {sxo}, {sxo}, {xoff}',
            f's_lshl_b32 {sfl}, {sRH}, 5', f's_add_u32 {sfl}, {sfl}, {sT[7]}', f's_lshl2_add_u32 {sfl}, {sfl}, {sFB}', f's_add_u32 {sfl}, {sfl}, {foff}']

def ffn(L, otok, oflag):
    first = (L == 0); last = (L == 1)
    vRW, vRR, vFA, vON, vF, vZ = vP[0], vP[3], vP[4], vP[5], vP[6], vP[7]
    assert (vON, vZ) == oflag[:2]
    sXO, sFL, sSA, sSB, sPF = sU[0], sU[2], sU[3], sU[4], sU[5]
    sXS, sLD, sHO, sHFL, sST, sSF = sU[1], sU[6], sU[7], sU[8], sU[9], sU[13]
    def p4_scalars():
        A(f's_lshl_b32 {sXS}, {sC}, 17'); A(f's_lshl_b32 {sT[2]}, {sW}, 11'); A(f's_add_u32 {sXS}, {sXS}, {sT[2]}'); A(f's_add_u32 {sXS}, {sXS}, {LY.X1_OFF}')
        A(f's_add_u32 {sLD}, {sT[2]}, {L_S}')
        A(f's_mul_i32 {sHO}, {sC}, {4*112*1024}'); A(f's_lshl2_add_u32 {sT[3]}, {sJ}, {sW}'); A(f's_lshl_b32 {sT[2]}, {sT[3]}, 11')
        A(f's_add_u32 {sHO}, {sHO}, {sT[2]}'); A(f's_add_u32 {sHO}, {sHO}, {LY.H_OFF}')
        A(f's_lshl2_add_u32 {sHFL}, {sT[3]}, {sFB}')
        A(f's_cmp_ge_u32 {sJ}, 14'); A(f's_cselect_b32 {sXS}, 0x70000000, {sXS}'); A(f's_cselect_b32 {sHO}, 0x70000000, {sHO}')
        A(f's_lshl_b32 {sST}, {sRBG}, 11'); A(f's_add_u32 {sST}, {sST}, {LY.ST1_OFF}')
        A(f's_lshl_b32 {sSF}, {sW}, 5'); A(f's_add_u32 {sSF}, {sSF}, {sFB}'); A(f's_add_u32 {sSF}, {sSF}, {LY.F_S1}')
    A(f'v_bfe_u32 {V(vFA)}, {V(vLANE)}, 2, 1'); A(f'v_lshlrev_b32 {V(vFA)}, 7, {V(vFA)}')
    A(f'v_and_b32 {V(vF)}, 3, {V(vLANE)}'); A(f'v_lshl_add_u32 {V(vFA)}, {V(vF)}, 2, {V(vFA)}')
    A(f's_lshl_b32 {sPF}, {sRH}, 6'); A(f's_lshl_b32 {sT[1]}, {sW}, 4'); A(f's_add_u32 {sPF}, {sPF}, {sT[1]}'); A(f's_add_u32 {sPF}, {sPF}, {sFB}')
    A(f's_lshl2_add_u32 {sSA}, {sC}, {sRH}'); A(f's_lshl_b32 {sSA}, {sSA}, 15'); A(f's_lshl_b32 {sT[1]}, {sW}, 13'); A(f's_add_u32 {sSA}, {sSA}, {sT[1]}')
    A(f's_add_u32 {sSA}, {sSA}, {LY.O_OFF}'); A(f's_add_u32 {sSB}, {sSA}, 65536'); A(f's_add_u32 {sT[4]}, {sSA}, 4096'); A(f's_add_u32 {sT[5]}, {sSB}, 4096')
    emit(red_addr_ops(vRW, vRR, L_S))
    emit(out_scalars_ops(sXO, sFL, LY.X1_OFF, LY.F_X1))
    A.wait_vm(otok[-1]); flag_set(*oflag, imm=LY.F_O)
    stamp('p2end')
    p4_scalars()
    def h_pretouch():
        A(f'v_lshrrev_b32 {V(90)}, 4, {V(vLANE)}'); A(f'v_mul_u32_u24 {V(90)}, {112*1024}, {V(90)}')
        A(f'v_and_b32 {V(91)}, 15, {V(vLANE)}'); A(f'v_lshl_add_u32 {V(90)}, {V(91)}, 7, {V(90)}')
        A(f'buffer_load_dword a223, {V(90)}, {SWS}, {sHO} offen sc1')
    smp = [92, 93, 94]
    for k, r in enumerate(smp):
        if k or OPT.get('os0', 0): A(f's_sleep {OPT.get("os0", 0) if k == 0 else OPT.get("os1", 2)}')
        flag_issue(r, vFA, sPF)
    flag_check_multi(smp, [2, 1, 0], vFA, sPF, L + 1)
    stamp('p3poll')
    ACC = 20
    slot = {}
    def oload(n, base):
        X, i = divmod(n, 8); slot[n] = base
        so = [[sSA, sT[4]], [sSB, sT[5]]][X][i >> 2]
        A(f'buffer_load_dwordx4 {V(base,4)}, {V(vL16)}, {SWS}, {so} offen offset:{(i & 3)*1024} sc1')
    for n in range(11): oload(n, 52 + 4 * n)
    A(f'v_lshlrev_b32 {V(vFA)}, 2, {V(vLANE)}')
    A(f's_add_u32 {sPF}, {sFB}, {LY.F_X1}')
    F = Fill()
    tokA, tokB, stA, stB = [], [], [], []
    yA = 72
    for n in range(16):
        X, i = divmod(n, 8)
        if OPT.get('p3st') and L == 1 and n in (0, 1, 4, 8, 12): stamp(f'a{n}')
        if n == 8:
            emit(unpack_ops(yA, 0)); emit(send_ops(ACC, vRW, 0)); emit(add8_ops(yA, yA, ACC, True))
            if OPT.get('p3st') and L == 1: stamp('sendA')
        for nh in range(2):
            A(f'{MFMA} {V(ACC + 16*nh, 16)}, {WOREG(i, nh)}, {V(slot[n],4)}, {"0" if i == 0 else V(ACC + 16*nh, 16)}')
            F.run(24)
        if n < 5: oload(11 + n, slot[n])
        if first and n == 5:
            for ks in range(W1EARLY, 32): F.adds(w1_load_ops(ks))
        if n == 10:
            A.wait_lgkm(); A('s_barrier')
            F.adds(recv_ops(96, vRR, 0)); F.adds(finish_ops(yA, 96, 0, False, sXO, tokA))
    if OPT.get('p3st') and L == 1: stamp('p3m')
    yB = 52
    while not tokA: F._do(F.q.pop(0)[0])
    emit(unpack_ops(yB, 1))
    emit(send_ops(ACC, vRW, 24576)); emit(add8_ops(yB, yB, ACC, True))
    F.flush()
    A(f's_add_u32 {sXO}, {sXO}, 65536')
    A.wait_vm(tokA[-1]); flag_set(vON, vZ, sFL)
    A.wait_lgkm(); A('s_barrier')
    if OPT.get('p3st') and L == 1: stamp('barB')
    emit(recv_ops(124, vRR, 24576))
    fin = finish_ops(yB, 124, 1, True, sXO, tokB)
    k_ = OPT.get('x1i', 12)
    emit(fin[:k_]); flag_issue(vF, vFA, sPF); emit(fin[k_:])
    stamp('p3end')
    if STOP <= 5 * L + 3:
        A.wait_vm(); return False
    ACC4 = [20, 36, 144]; XR = 52; NXR = 8; CSW = 84; NMW = 88; NMS = 92; SA = 96; E = 100; HP = 116
    vXA, vSA, vNL, vSF = vP[0], vP[1], vP[2], vP[3]
    NS = 6; tok = {}
    def dma_m0(s): A(f's_add_u32 m0, {sLD}, {(s % NS) * 8192}')
    def dma1(s, f):
        tok[s] = A(f'buffer_load_dwordx4 {V(vL16)}, {SWS}, {sXS} offen offset:{1024*f} sc1 lds')
        if f == 1: A(f's_add_u32 {sXS}, {sXS}, 8192')
    A(f'v_add_u32 {V(vXA)}, {L_S}, {V(vL16)}')
    A(f'v_mov_b32 {V(vNL)}, {f32(-LOG2E)}')
    A.wait_lgkm(); A('s_barrier')
    emit(scomb_ops(100, LY.ST1_OFF, stA))
    flag_check(vF, vFA, sPF, L + 1)
    for s in range(4): dma_m0(s); dma1(s, 0); dma1(s, 1)
    A.wait_vm(tokB[-1]); flag_set(vON, vZ, sFL, imm=256)
    emit(stat_addr_ops(vSA, vSF))
    A(f'v_and_b32 {V(vSF)}, 7, {V(vLANE)}'); A(f'v_lshlrev_b32 {V(vSF)}, 2, {V(vSF)}')
    for r in (1, 2, 3, 5, 6, 7): A(f'v_mov_b32 {V(CSW + r)}, 0')
    A(f's_lshl_b32 {sT[7]}, {sW}, 8'); A(f's_add_u32 {sT[7]}, {sT[7]}, {L_CS1}'); A(f'v_lshl_add_u32 {V(94)}, {V(vLANE)}, 2, {sT[7]}')
    A(f'ds_read_b32 {V(CSW)}, {V(94)}')
    sflag(vON, vZ, stA, LY.F_S1)
    stamp('p4poll')
    LA = OPT.get('la', 6)
    xslots = [XR + 4 * k for k in range(8)] + ([124, 128] if LA > 7 else [])
    xr = lambda n: V(xslots[n % len(xslots)], 4)
    xtok = {}
    def xread(n):
        s, t = divmod(n, 8); c = 4
        if t == 0 and not (OPT.get('x_nobar') and s > 5 and L == 1):
            if s in tok: A.wait_vm(tok[s])
            A('s_barrier'); c += 8
        nd = None
        if s + 4 < 16 and not (OPT.get('x_nodma') and s > 1 and L == 1):
            if t == 1: nd = (s + 4, 0)
            if t == 5: nd = (s + 4, 1)
        if nd and nd[1] == 0: dma_m0(nd[0])
        xtok[n] = A(f'ds_read_b128 {xr(n)}, {V(vXA)} offset:{(s % NS) * 8192 + t * 1024}')
        if nd: dma1(*nd); c += 8
        return c
    htok = {}
    AB = [0, 2, 1, 0]
    def epi_ops(rb):
        a = ACC4[AB[rb]]; sa = SA + rb
        st = [[f'v_mul_f32 {V(a+r)}, {V(a+r)}, {V(sa)}' for r in range(16)],
              [f'v_exp_f32 {V(E+r)}, {V(a+r)}' for r in range(16)],
              [f'v_fma_f32 {V(E+r)}, {V(E+r)}, {V(vNL)}, {V(vNL)}' for r in range(16)],
              [f'v_rcp_f32 {V(E+r)}, {V(E+r)}' for r in range(16)],
              [f'v_mul_f32 {V(a+r)}, {V(a+r)}, {V(E+r)}' for r in range(16)]]
        ops = []
        for step in range(16 + 2 * 5):
            for k in range(5):
                r = step - 2 * k
                if 0 <= r < 16: ops.append(st[k][r])
            r = step - 10
            if 0 <= r < 16 and r & 1:
                ops.append(f'v_cvt_pk_bf16_f32 {V(HP + r//2)}, {V(a+r-1)}, {V(a+r)}')
        def hstore():
            lines = [f'buffer_store_dwordx4 {V(HP + 4*f, 4)}, {V(vL16)}, {SWS}, {sHO} offen offset:{1024*f}' for f in range(2)]
            if OPT.get('hsc1', 1) >> L & 1:
                for l_ in lines: htok[rb] = A(l_ + ' sc1')
            else: htok[rb] = store_dual(lines)
            A(f's_add_u32 {sHO}, {sHO}, {112*1024}')
        return ops, hstore
    def hflag(rb):
        A.wait_vm(htok[rb]); flag_set(vON, vZ, sHFL, imm=LY.F_H + 256 * rb)
    sHA, sHB, sP5F = sU[3], sU[4], sU[14]
    p5setup = [f's_lshl2_add_u32 {sHA}, {sC}, {sRH}', f's_mul_i32 {sHA}, {sHA}, {112*1024}', f's_mul_i32 {sT[6]}, {sW}, {28*1024}',
               f's_add_u32 {sHA}, {sHA}, {sT[6]}', f's_add_u32 {sHA}, {sHA}, {LY.H_OFF}', f's_add_u32 {sHB}, {sHA}, {2*112*1024}',
               f's_mul_i32 {sP5F}, {sW}, 56', f's_add_u32 {sP5F}, {sP5F}, {sFB}',
               f's_add_u32 {sP5F}, {sP5F}, {LY.F_H + 256}',
               f'v_min_u32 {V(vFA)}, 13, {V(vLANE)}', f'v_lshlrev_b32 {V(vFA)}, 2, {V(vFA)}']
    if last: p5setup += own_tile_rowmajor(sXO)
    else: p5setup += out_scalars_ops(sXO, sFL, LY.X2_OFF, LY.F_X2)
    free = [132, 136, 140] + ([] if LA > 7 else [124, 128])
    hslot = {}; hnext = [0]; hlimit = [0]
    hlast = [-1000]; inp5 = [False]
    def hload(force=False):
        n = hnext[0]
        if n >= hlimit[0] or not free: return False
        if not force and clock[0] < hlast[0] + (OPT.get('hgap', 40) if inp5[0] else OPT.get('hgap4', 80)): return False
        hlast[0] = clock[0]
        X, i = divmod(n, 28); so = [sHA, sHB][X]; b = free.pop(0); hslot[n] = b; hnext[0] += 1
        A(f'buffer_load_dwordx4 {V(b,4)}, {V(vL16)}, {SWS}, {so} offen offset:{(i & 3)*1024} sc1')
        if i & 3 == 3: A(f's_add_u32 {so}, {so}, 4096')
        return True
    F = Fill(); BG = Fill()
    if first:
        for t_ in range(W2EARLY, 56): BG.adds(w2_load_ops(t_))
    for n in range(LA): xread(n)
    A(f's_add_u32 {sPF}, {sPF}, 256')
    S1, S2 = HP, HP + 1
    NV = 40 - LA
    clock = [0]; ev = {}; todo = []
    hd_ = OPT.get('hdel', 750) if OPT.get('hsc1', 1) >> L & 1 else OPT.get('hdelp', 360)
    def at(t, fn): todo.append((t, fn)); todo.sort(key=lambda x: x[0])
    def tick(dt):
        clock[0] += dt
        while todo and todo[0][0] <= clock[0]: todo.pop(0)[1]()
    def stored(rb):
        if OPT.get('dbgs'): print(f'L{L} H{rb} stored at clock {clock[0]}', file=sys.stderr)
        if rb & 1: at(clock[0] + hd_, lambda: flagged(rb))
        if rb >= 1: free.extend(ACC4[AB[rb]] + 4 * k for k in range(4))
        if rb == 3:
            F.adds(red_addr_ops(vP[0], vP[3], L_S))
    def flagged(rb):
        hflag(rb)
        if rb in (1, 3):
            def smp():
                if rb == 3: A(f's_add_u32 {sP5F}, {sP5F}, 512')
                flag_issue(vF, vFA, sP5F); at(clock[0] + OPT.get('p5c', 300), chk)
            def chk():
                flag_check(vF, vFA, sP5F, L + 1); hlimit[0] = 28 if rb == 1 else 56
                if rb == 1: ev['Aload'] = clock[0]
                if OPT.get('dbgs'): print(f'L{L} loads of stream {rb>>1} start at clock {clock[0]}', file=sys.stderr)
            at(clock[0] + OPT.get('p5i', 300), smp)
    def queue_epi(rb):
        ops, hs = epi_ops(rb); F.adds(ops); F.add(hs, 20); F.add(lambda: stored(rb), 0)
    F.adds(p5setup[:-2 - (5 if last else 10)])
    for n in range(128):
        rb, ks = divmod(n, 32); a = ACC4[AB[rb]]
        if n == OPT.get('nsi', 3): F.q.insert(0, ((lambda: flag_issue(vF, vSF, sSF)), 4))
        if n == OPT.get('nsc', 12):
            flag_check(vF, vSF, sSF, L + 1)
            for o in stat_load_ops(E, E + 4, vSA, sST): F.add(o, 12)
            F.adds([f's_lshl_b32 {sT[0]}, {sW}, 8', f's_add_u32 {sT[0]}, {sT[0]}, {L_STAT}',
                    f'v_and_b32 {V(vSF)}, 31, {V(vLANE)}', f'v_lshlrev_b32 {V(vSF)}, 2, {V(vSF)}', f'v_add_u32 {V(E+8)}, {sT[0]}, {V(vSF)}', f'v_add_u32 {V(vSF)}, {L_STAT}, {V(vSF)}'])
        if n == OPT.get('nsr', 23):
            F.adds(stat_reduce_ops(E, E + 4, S1, S2))
            F.adds(stats_finish_ops(S1, S2, E, E + 1, E + 2, E + 3)); F.adds(split_pack_ops(E + 2, E + 2, E))
            F.adds([f'v_mul_f32 {V(E+3)}, {V(vNL)}, {V(E+3)}', f'ds_write2_b32 {V(E+8)}, {V(E+2)}, {V(E+3)} offset0:0 offset1:32'])
        if n == 14: F.q.insert(0, ((lambda: flag_issue(E + 12, vFA, sPF)), 4))
        if n == 32 - LA: flag_check(E + 12, vFA, sPF, L + 1); F.adds(p5setup[-2 - (5 if last else 10):])
        if n == NV: F.flush(); A.wait_lgkm()
        if n == 96:
            while 0 not in htok: F._do(F.q.pop(0)[0])
        if OPT.get('p4st') and L == OPT.get('stl', 1) and n % OPT['p4st'] == 0: stamp(f'b{n}')
        if n % 2 == 0 and n + 1 in xtok: A.wait_lgkm(xtok[n + 1])
        A(f'{MFMA} {V(a,16)}, {W1REG(ks)}, {xr(n)}, {"0" if ks == 0 else V(a,16)}')
        used = 2
        if n + LA < 128: used += xread(n + LA)
        if n == NV:
            A(f'ds_read_b32 {V(NMW)}, {V(vSF)}')
            A(f'ds_read2st64_b32 {V(NMS,2)}, {V(vSF)} offset0:0 offset1:1'); A(f'ds_read2st64_b32 {V(NMS+2,2)}, {V(vSF)} offset0:2 offset1:3')
            A(f'ds_read2_b32 {V(SA,2)}, {V(vSF)} offset0:32 offset1:96'); A(f'ds_read2_b32 {V(SA+2,2)}, {V(vSF)} offset0:160 offset1:224')
            used = 26
        if n == NV + 3: A(f'{MFMA} {V(ACC4[0],16)}, {V(CSW,4)}, {V(NMW,4)}, {V(ACC4[0],16)}')
        if rb > 0 and ks == 28: A(f'v_mov_b32 {V(NMW)}, {V(NMS + rb)}'); used += 4
        if rb > 0 and ks == 30:
            F.run(16); A(f'{MFMA} {V(a,16)}, {V(CSW,4)}, {V(NMW,4)}, {V(a,16)}'); used = 2
        if (ks == 2 and rb > 1) or n == NV + 5: queue_epi(rb - 1)
        tick(40)
        F.run((OPT.get('p4b', 32) if 1 not in htok else OPT.get('p4b2', 26)) - used)
        if first and n % 2 == 1 and (n + LA) % 4 == 3: BG.run(8)
        if first and n % 4 == 0: BG.run(4)
        if hlimit[0]: hload()
    BG.flush()
    stamp('p4main')
    A5 = [52, 84]; inp5[0] = True
    if OPT.get('dbgs'): print(f'L{L} P5 starts at clock {clock[0]}, pending ops {len(F.q)}', file=sys.stderr)
    if LA > 7: free.extend([124, 128])
    queue_epi(3)
    vRW, vRR, vOUT = vP[0], vP[3], vFA
    tokA, tokB, stA, stB = [], [], [], []
    while hlimit[0] == 0 or clock[0] < ev['Aload'] + OPT.get('p5lat', 400):
        before = len(F.q)
        F.run(40); tick(40)
        if hlimit[0]: hload()
        if not F.q and hlimit[0]: break
    for n in range(56):
        X, i = divmod(n, 28); a = A5[X]
        if OPT.get('p5st') and L == OPT.get('stl', 1) and n % 7 == 0: stamp(f'c{n}')
        if n == 20: A('s_barrier')
        if n == 28:
            F.flush()
            while hlimit[0] < 56: tick(100)
        while n not in hslot: assert hload(True)
        for nh in range(2):
            A(f'{MFMA} {V(a + 16*nh, 16)}, {W2REG(i, nh)}, {V(hslot[n],4)}, {"0" if i == 0 else V(a + 16*nh, 16)}')
            bud = OPT.get('p5b', 48) if 3 not in htok else 20
            rem = F.run(bud); tick(max(OPT.get('p5t', 32), 12 + bud - rem))
            if nh == 0: hload()
        free.append(hslot[n])
        if n == 29:
            if last: F.adds(rowmajor_addr(vOUT, vF))
            F.adds(unpack_ops(116, 0))
            for o in send_ops(A5[0], vRW, 24576): F.add(o, 20); F.add('s_nop 0', 20) if OPT.get('sgap', 1) else None
            F.adds(add8_ops(A5[0], A5[0], 116, False))
            F.add(lambda: (A.wait_lgkm(), A('s_barrier')), 8)
            F.adds(recv_ops(A5[0] + 8, vRR, 24576))
            for _ in range(3): F.add('s_nop 0', 20)
            F.adds(finish_ops(A5[0], A5[0] + 8, 0, False, sXO, tokA, last, vOUT))
            F.add(f's_add_u32 {sXO}, {sXO}, 65536')
            F.adds(unpack_ops(116, 1))
        if n == 50 and not last:
            F.flush(); A.wait_vm(tokA[-1]); flag_set(vON, vZ, sFL)
        hload()
    assert hlimit[0] == 56
    F.flush()
    a = A5[1]
    emit(send_ops(a, vRW, 0)); emit(add8_ops(a, a, 116, True))
    A.wait_lgkm(); A('s_barrier')
    emit(recv_ops(a + 8, vRR, 0))
    emit(finish_ops(a, a + 8, 1, True, sXO, tokB, last, vOUT))
    if not last:
        A.wait_lgkm(); A('s_barrier')
        emit(scomb_ops(A5[0], LY.ST2_OFF, stB))
        A.wait_vm(tokB[-1]); flag_set(vON, vZ, sFL, imm=256)
        PENDING.append(lambda: sflag(156, 157, stB, LY.F_S2))
        A(f'v_mov_b32 v156, {L + 2}'); A(f'v_mov_b32 v157, 0')
    stamp('p5end')
    return True
PENDING = []

def main():
    startup()
    if STOP == 0: return
    for L in range(2):
        p1(L)
        if STOP <= 5 * L + 1: return
        r = p2(L)
        if STOP <= 5 * L + 2:
            A.wait_vm(); return
        if not ffn(L, r['tok'], r['flag']): return
        if STOP <= 5 * L + 5: return
main()
finish()

hdr = open('cdna_kernels/' + NAME + '.s.ref').read().split('\n')
hdr = [l for l in hdr if l.startswith(';') and '@launch' not in l]
src = '\n'.join(hdr) + f'\n; @launch grid=(256,1,1) block=(256,1,1) lds={LDS_BYTES}\n'
src += f'''.amdgcn_target "amdgcn-amd-amdhsa--gfx950"
.text
.globl {NAME}_kernel
.p2align 8
.type {NAME}_kernel,@function
{NAME}_kernel:
'''
body = A.finalize()
src += body.replace('CODE_SPAN', '(L_codeend-L_pcref)')
src += f'''.section .rodata,"a"
.p2align 6
.amdhsa_kernel {NAME}_kernel
  .amdhsa_next_free_vgpr 512
  .amdhsa_next_free_sgpr 102
  .amdhsa_accum_offset 256
  .amdhsa_group_segment_fixed_size 0
  .amdhsa_kernarg_size 72
  .amdhsa_user_sgpr_count 2
  .amdhsa_user_sgpr_kernarg_segment_ptr 1
  .amdhsa_system_sgpr_workgroup_id_x 1
.end_amdhsa_kernel
'''
out = [a for a in sys.argv[1:] if a.endswith('.s')]
open(out[0] if out else 'k.s', 'w').write(src)
if STAMPS: open((out[0] if out else 'k.s') + '.names', 'w').write(' '.join(stamp_names))
```

```python
import sys, struct
from asmlib import Asm, V, Areg, S
import layout as LY

NAME = "interleave_layers__sliding_block__dense_activation_silu__prompt"
STOP = 99; STAMPS = False; FORCE_SLOW = False; CYC = False; OPT = {}
for arg in sys.argv[1:]:
    if arg.startswith('stop='): STOP = int(arg[5:])
    elif '=' in arg: OPT[arg.split('=')[0]] = int(arg.split('=')[1])
    if arg == 'stamps': STAMPS = True
    if arg == 'slow': FORCE_SLOW = True
    if arg == 'cyc': STAMPS = True; CYC = True

A = Asm()
MFMA = 'v_mfma_f32_32x32x16_bf16'
OV = OPT.get('ov', 1)
ORB = 112*1024 if OV else 32768
O_BASE = LY.H_OFF if OV else LY.O_OFF
X2_BASE = LY.X1_OFF if OV else LY.X2_OFF
LOG2E = 1.4426950408889634
def f32(x): return '0x%08x' % struct.unpack('<I', struct.pack('<f', x))[0]

SWS, SX, SWQKV, SWO, SW1, SW2, SOUT, SDBG = 's[4:7]', 's[8:11]', 's[12:15]', 's[16:19]', 's[20:23]', 's[24:27]', 's[28:31]', 's[32:35]'
sC, sJ, sW, sFAST, sRH, sCB = 's36', 's37', 's38', 's39', 's40', 's41'
sT = ['s42', 's43', 's44', 's45', 's46', 's47', 's48', 's49']
sFB = 's50'
sXCC = 's51'
sRBG = 's52'
sSPIN = 's53'
sROT = 's1'
sU = ['s54', 's55', 's56', 's57', 's58', 's59', 's92', 's93', 's94', 's95', 's98', 's99', 's100', 's101', 's0']
SMASK0 = 60
vLANE, vL16, vTR, vSTAMP = 0, 1, 2, 3
vRES = 4
vP = list(range(12, 20))
def W1REG(ks): return Areg(224 + 4 * ks, 4) if ks < 8 else V(160 + 4 * (ks - 8), 4)
def W2REG(i, nh): return Areg((i * 2 + nh) * 4, 4)
WOB = 96
def WOREG(i, nh): return V(WOB + (i * 2 + nh) * 4, 4)
L_WQ = 0
L_S = 98304
KVSLOT = 4112
L_KV = L_S
L_MISC = L_S + 49408
L_CSQ = L_MISC
L_CS1 = L_MISC + 1024
L_STAT = L_MISC + 2048
L_BNC = L_MISC + 3072
L_PMASK = L_MISC + 7168
L_SP = L_MISC + 9216
LDS_BYTES = 163840

TRANS = ('v_exp', 'v_rcp', 'v_rsq')
class Fill:
    def __init__(self, vm=0): self.q = []; self.vm = vm
    def add(self, op, cost=None):
        if cost is None:
            cost = 4
            if isinstance(op, str):
                if op.startswith(TRANS): cost = 8
                if op.startswith('ds_write_b128'): cost = 8
                if op.startswith('buffer_') and self.vm: cost = self.vm
            elif self.vm: cost = self.vm
        self.q.append((op, cost))
    def adds(self, ops):
        for o in ops: self.add(o)
    def _do(self, op):
        if isinstance(op, str): A(op)
        else: op()
    def run(self, budget):
        while self.q and self.q[0][1] <= budget:
            op, c = self.q.pop(0); self._do(op); budget -= c
        return budget
    def flush(self):
        while self.q: self._do(self.q.pop(0)[0])

nstamp = [0]; stamp_names = []
def stamp(name=''):
    if not STAMPS: return
    if OPT.get('span') and name not in ('start', 'end') and not (OPT['span'] == 2 and name in ('p1x', 'kend', 'p1end', 'p2end', 'p5end') + (('halodma',) if OPT.get('hst') else ())): return
    k = nstamp[0]; nstamp[0] += 1; stamp_names.append(name)
    assert k < 64
    A('s_memtime s[96:97]' if CYC else 's_memrealtime s[96:97]')
    A('s_waitcnt lgkmcnt(0)')
    A(f'v_writelane_b32 {V(vSTAMP)}, s96, {k}')

OOL = []
def flag_issue(vtmp, vaddr, soff, srd=SWS):
    return A(f'buffer_load_dword {V(vtmp)}, {V(vaddr)}, {srd}, {soff} offen sc1')
def flag_check(vtmp, vaddr, soff, expect, srd=SWS, sleep=0):
    sp = A.newlabel('Lspin'); bk = A.newlabel('Lback')
    A(f'v_cmp_gt_u32 vcc, {expect}, {V(vtmp)}')
    A(f's_cbranch_vccnz {sp}')
    A.label(bk)
    OOL.append(f'''{sp}:
    s_mov_b32 {sSPIN}, 0
{sp}_l:
    buffer_load_dword {V(vtmp)}, {V(vaddr)}, {srd}, {soff} offen sc1
    s_add_u32 {sSPIN}, {sSPIN}, 1
    s_cmp_gt_u32 {sSPIN}, 0x40000
    s_cbranch_scc1 L_exit
    s_waitcnt vmcnt(0)
    v_cmp_gt_u32 vcc, {expect}, {V(vtmp)}
    s_cbranch_vccz {bk}
    s_sleep {sleep}
    s_branch {sp}_l''')
def poll(vtmp, vaddr, soff, expect, srd=SWS):
    flag_issue(vtmp, vaddr, soff, srd); flag_check(vtmp, vaddr, soff, expect, srd)

def flag_check_multi(vtmps, nafter, vaddr, soff, expect, sleep=0):
    sp = A.newlabel('Lspin'); bk = A.newlabel('Lback')
    A(f'v_cmp_gt_u32 vcc, {expect}, {V(vtmps[0])}')
    A(f's_cbranch_vccnz {sp}')
    A.label(bk)
    txt = f'{sp}:\n'
    for k in range(1, len(vtmps)):
        txt += f'    s_waitcnt vmcnt({nafter[k]})\n    v_cmp_gt_u32 vcc, {expect}, {V(vtmps[k])}\n    s_cbranch_vccz {bk}\n'
    txt += f'''    s_mov_b32 {sSPIN}, 0
{sp}_l:
    buffer_load_dword {V(vtmps[0])}, {V(vaddr)}, {SWS}, {soff} offen sc1
    s_add_u32 {sSPIN}, {sSPIN}, 1
    s_cmp_gt_u32 {sSPIN}, 0x40000
    s_cbranch_scc1 L_exit
    s_waitcnt vmcnt(0)
    v_cmp_gt_u32 vcc, {expect}, {V(vtmps[0])}
    s_cbranch_vccz {bk}
    s_sleep {sleep}
    s_branch {sp}_l'''
    OOL.append(txt)

def store_dual(lines):
    A.dual(sFAST, lines, [l + ' sc1' for l in lines])
    return A.items[-1][2][-1]
def flag_set(vval, vzero, soff, fastok=True, imm=0, wave=None):
    ln = f'buffer_store_dword {V(vval)}, {V(vzero)}, {SWS}, {soff} offen offset:{imm}'
    if OPT.get('fexec'): A('s_mov_b64 exec, 1')
    if fastok: store_dual([ln])
    else: A(ln + ' sc1')
    if OPT.get('fexec'): A('s_mov_b64 exec, -1')

def finish():
    A.label('L_end')
    if STAMPS:
        A('s_waitcnt vmcnt(0) lgkmcnt(0)')
        stamp('end')
        A(f's_lshl_b32 {sT[0]}, s2, 2'); A(f's_add_u32 {sT[0]}, {sT[0]}, {sW}'); A(f's_lshl_b32 {sT[0]}, {sT[0]}, 8')
        A(f's_add_u32 {sT[0]}, {sT[0]}, {LY.STAMP_OFF}')
        A(f'v_lshlrev_b32 v20, 2, {V(vLANE)}')
        A(f'buffer_store_dword {V(vSTAMP)}, v20, {SWS}, {sT[0]} offen')
        if 'dbg' in OPT:
            A(f's_cmp_lg_u32 s2, {OPT["dbg"]}'); A('s_cbranch_scc1 L_exit'); A(f's_cmp_lg_u32 {sW}, 2'); A('s_cbranch_scc1 L_exit')
            A(f'v_readlane_b32 s42, {V(vSTAMP)}, 0'); A(f'v_subrev_u32 {V(vSTAMP)}, s42, {V(vSTAMP)}')
            A(f'v_subrev_u32 v20, {4*OPT.get("dbg0", 1)}, v20')
            A('s_mov_b32 s34, 64')
            A(f'buffer_store_dword {V(vSTAMP)}, v20, {SDBG}, 0 offen')
    A.label('L_exit')
    A('s_endpgm')
    for b in OOL: A.raw(b)
    A.place_ool()
    A.label('L_codeend')
    A.raw('    s_endpgm')

def startup():
    A('s_cmp_ge_u32 s2, 256'); A('s_cbranch_scc1 L_exit')
    for sreg, off in ((8, 0), (12, 8), (4, 64), (16, 16), (20, 32), (24, 40), (28, 48), (32, 56)):
        A(f's_load_dwordx2 s[{sreg}:{sreg+1}], s[0:1], {off}')
    if STAMPS: A(f'v_mov_b32 v3, 0')
    stamp('start')
    t0, t1 = vP[0], vP[1]
    A(f'v_lshrrev_b32 {V(t0)}, 6, v0')
    A(f'v_lshlrev_b32 {V(t1)}, 4, v0')
    A(f'v_readfirstlane_b32 {sW}, {V(t0)}')
    A(f'v_and_b32 {V(vLANE)}, 63, v0')
    A(f'v_lshlrev_b32 {V(vL16)}, 4, {V(vLANE)}')
    A(f's_and_b32 {sT[0]}, s2, 7'); A(f's_lshl_b32 {sT[0]}, {sT[0]}, 1')
    A(f's_bfe_u32 {sT[1]}, s2, 0x10003')
    A(f's_or_b32 {sC}, {sT[0]}, {sT[1]}')
    A(f's_lshr_b32 {sJ}, s2, 4')
    A(f's_and_b32 {sRH}, {sJ}, 1'); A(f's_lshr_b32 {sCB}, {sJ}, 1')
    A(f's_lshl2_add_u32 {sRBG}, {sC}, {sW}')
    A(f's_lshl_b32 {sFB}, {sC}, 13')
    A(f's_getreg_b32 {sXCC}, hwreg(HW_REG_XCC_ID)'); A(f's_and_b32 {sXCC}, {sXCC}, 15')
    A(f's_mov_b32 {sFAST}, 0')
    A(f's_and_b32 s3, {sW}, 1'); A(f's_lshl1_add_u32 s3, s3, {sRH}'); A(f's_lshl3_add_u32 s3, s3, {sCB}'); A(f's_lshl2_add_u32 s3, s3, {sFB}'); A(f's_cmp_lt_u32 {sW}, 2'); A(f's_cselect_b32 s3, s3, 0x70000000')
    A(f's_and_b32 {sT[0]}, {sJ}, 1'); A(f's_lshl_b32 {sT[0]}, {sT[0]}, 1'); A(f's_and_b32 {sT[1]}, {sC}, 1'); A(f's_lshl2_add_u32 {sT[0]}, {sT[1]}, {sT[0]}')
    for sreg, nbytes in ((8, 2048*512*2), (12, 512*1536*2), (4, 0x10000000), (16, 512*512*2), (20, 512*1792*2), (24, 1792*512*2), (28, 2048*512*2), (32, 256)):
        A(f's_mov_b32 s{sreg+2}, {nbytes}'); A(f's_mov_b32 s{sreg+3}, 0x20000')
    A('s_waitcnt lgkmcnt(0)')
    A(f's_and_b32 {sROT}, {sT[0]}, {OPT.get("rot", 2)}')
    if OPT.get('tlb'):
        A(f'v_lshlrev_b32 {V(t0)}, 19, {V(vLANE)}'); A(f'v_min_u32 {V(t0)}, {LY.WS_END - 4096}, {V(t0)}')
        A(f's_lshl_b32 {sT[7]}, s2, 7'); A(f's_and_b32 {sT[7]}, {sT[7]}, 0xf80')
        A(f'buffer_load_dword a37, {V(t0)}, {SWS}, {sT[7]} offen')
    A(f's_lshl2_add_u32 {sT[0]}, {sJ}, {sW}'); A(f's_cmp_eq_u32 {sT[0]}, 3')
    nl = A.newlabel('Lnolead')
    A(f's_cbranch_scc0 {nl}')
    A.optional(True)
    for r in range(4): A(f'v_mov_b32 {V(20 + r)}, 0')
    A(f's_add_u32 {sT[0]}, {sFB}, 4096')
    for q in range(3): A(f'buffer_store_dwordx4 v[20:23], {V(vL16)}, {SWS}, {sFB} offen offset:{1024*q} sc1')
    for q in range(4): A(f'buffer_store_dwordx4 v[20:23], {V(vL16)}, {SWS}, {sT[0]} offen offset:{1024*q} sc1')
    A.optional(False)
    A.label(nl)
    A.assume_drained()
    if not OPT.get('nocode'):
        A('s_getpc_b64 s[96:97]')
        A(f's_lshr_b32 {sT[7]}, s2, 3'); A(f's_lshl2_add_u32 {sT[7]}, {sT[7]}, {sW}'); A(f's_lshl_b32 {sT[7]}, {sT[7]}, 9')
        A(f'v_and_b32 {V(t0)}, 3, {V(vLANE)}'); A(f'v_lshl_add_u32 {V(t0)}, {V(t0)}, 7, {sT[7]}'); A(f'v_min_u32 {V(t0)}, CODE_SPAN, {V(t0)}')
        A.label('L_pcref')
        A(f'global_load_dword a36, {V(t0)}, s[96:97]')

def leader_announce(nyoung, vone, vzero):
    A(f's_lshl2_add_u32 {sT[0]}, {sJ}, {sW}'); A(f's_cmp_eq_u32 {sT[0]}, 3')
    nl = A.newlabel('Lnoann')
    A(f's_cbranch_scc0 {nl}')
    A.raw(f'    s_lshl_b32 {sT[0]}, {sC}, 2\n    s_waitcnt vmcnt({nyoung})\n    s_mov_b64 exec, 1\n'
          f'    buffer_store_dword {V(vone)}, {V(vzero)}, {SDBG}, {sT[0]} offen offset:64 sc1\n    s_mov_b64 exec, -1')
    A.label(nl)

def tr_addr():
    t0 = vP[0]
    A(f'v_lshrrev_b32 {V(t0)}, 5, {V(vLANE)}'); A(f'v_lshlrev_b32 {V(vTR)}, 9, {V(t0)}')
    A(f'v_bfe_u32 {V(t0)}, {V(vLANE)}, 2, 2'); A(f'v_lshl_add_u32 {V(vTR)}, {V(t0)}, 6, {V(vTR)}')
    A(f'v_bfe_u32 {V(t0)}, {V(vLANE)}, 4, 1'); A(f'v_lshl_add_u32 {V(vTR)}, {V(t0)}, 5, {V(vTR)}')
    A(f'v_and_b32 {V(t0)}, 1, {V(vLANE)}'); A(f'v_lshl_add_u32 {V(vTR)}, {V(t0)}, 4, {V(vTR)}')
    A(f'v_bfe_u32 {V(t0)}, {V(vLANE)}, 1, 1'); A(f'v_lshl_add_u32 {V(vTR)}, {V(t0)}, 3, {V(vTR)}')

def make_masks(B):
    t0, t1, t2 = vP[0], vP[1], vP[2]
    A(f'v_and_b32 {V(t0)}, 31, {V(vLANE)}'); A(f'v_lshrrev_b32 {V(t1)}, 5, {V(vLANE)}'); A(f'v_lshlrev_b32 {V(t1)}, 2, {V(t1)}')
    A(f'v_sub_u32 {V(t0)}, {V(t0)}, {V(t1)}')
    for r in range(16):
        A(f'v_cmp_le_i32 s[{SMASK0+2*r}:{SMASK0+2*r+1}], {(r & 3) + 8 * (r >> 2)}, {V(t0)}')
    A(f'v_mov_b32 {V(t0)}, 0xffff'); A(f'v_mov_b32 {V(t1)}, 0xffff0000')
    for t in range(8):
        A(f'v_cndmask_b32 {V(B+t)}, 0, {V(t0)}, s[{SMASK0+4*t}:{SMASK0+4*t+1}]')
        A(f'v_cndmask_b32 {V(t2)}, 0, {V(t1)}, s[{SMASK0+4*t+2}:{SMASK0+4*t+3}]')
        A(f'v_or_b32 {V(B+t)}, {V(B+t)}, {V(t2)}')
    A(f'v_add_u32 {V(t0)}, {L_PMASK}, {V(vL16)}')
    A(f'ds_write_b128 {V(t0)}, {V(B,4)}'); A(f'ds_write_b128 {V(t0)}, {V(B+4,4)} offset:1024')

def rowmajor_addr(v, vt):
    return [f'v_and_b32 {V(v)}, 31, {V(vLANE)}', f'v_lshlrev_b32 {V(v)}, 10, {V(v)}',
            f'v_lshrrev_b32 {V(vt)}, 5, {V(vLANE)}', f'v_lshl_add_u32 {V(v)}, {V(vt)}, 4, {V(v)}']
def own_tile_rowmajor(s):
    return [f's_lshl2_add_u32 {s}, {sC}, {sRH}', f's_lshl_b32 {s}, {s}, 15',
            f's_lshl2_add_u32 {sT[7]}, {sCB}, {sW}', f's_lshl_b32 {sT[7]}, {sT[7]}, 5', f's_add_u32 {s}, {s}, {sT[7]}']

def stats_finish_ops(s1, s2, ta, tb, nm, rs):
    return [f'v_mov_b32 {V(ta)}, {V(s1)}', f'v_mov_b32 {V(tb)}, {V(s2)}',
            f'v_permlane32_swap_b32 {V(ta)}, {V(s1)}', f'v_permlane32_swap_b32 {V(tb)}, {V(s2)}',
            f'v_add_f32 {V(s1)}, {V(s1)}, {V(ta)}', f'v_add_f32 {V(s2)}, {V(s2)}, {V(tb)}',
            f'v_mul_f32 {V(nm)}, {f32(-1.0/512)}, {V(s1)}', f'v_mul_f32 {V(ta)}, {f32(1.0/512)}, {V(s2)}',
            f'v_fma_f32 {V(ta)}, -{V(nm)}, {V(nm)}, {V(ta)}', f'v_max_f32 {V(ta)}, 0, {V(ta)}',
            f'v_add_f32 {V(ta)}, {f32(1e-5)}, {V(ta)}', f'v_rsq_f32 {V(rs)}, {V(ta)}']
def stat_addr_ops(v, vt):
    return [f'v_lshrrev_b32 {V(v)}, 5, {V(vLANE)}', f'v_lshlrev_b32 {V(v)}, 10, {V(v)}',
            f'v_and_b32 {V(vt)}, 31, {V(vLANE)}', f'v_lshl_add_u32 {V(v)}, {V(vt)}, 3, {V(v)}']
def stat_load_ops(b0, b1, vaddr, soff):
    return [f'buffer_load_dwordx2 {V(b, 2)}, {V(vaddr)}, {SWS}, {soff} offen offset:{256*i} sc1' for i, b in enumerate((b0, b0 + 2, b1, b1 + 2))]
def stat_reduce_ops(b0, b1, s1, s2):
    return [f'v_add_f32 {V(b0+i)}, {V(b0+i)}, {V(b1+i)}' for i in range(4)] + \
           [f'v_add_f32 {V(s1)}, {V(b0)}, {V(b0+2)}', f'v_add_f32 {V(s2)}, {V(b0+1)}, {V(b0+3)}']
def split_pack_ops(dst, x, t):
    return [f'v_cvt_pk_bf16_f32 {V(t)}, {V(x)}, {V(x)}', f'v_and_b32 {V(t)}, 0xffff0000, {V(t)}',
            f'v_sub_f32 {V(t)}, {V(x)}, {V(t)}', f'v_cvt_pk_bf16_f32 {V(dst)}, {V(x)}, {V(t)}']
def cs_pack_ops(dst, x, t):
    return [f'v_cvt_pk_bf16_f32 {V(dst)}, {V(x)}, {V(x)}', f'v_and_b32 {V(t)}, 0xffff0000, {V(dst)}',
            f'v_sub_f32 {V(t)}, {V(x)}, {V(t)}', f'v_cvt_pk_bf16_f32 {V(t)}, {V(t)}, {V(t)}',
            f'v_cndmask_b32 {V(dst)}, {V(t)}, {V(dst)}, vcc']
def spart_ops(y, p, X, pk):
    if pk:
        ops = [f'v_pk_mul_f32 {V(p+2,2)}, {V(y,2)}, {V(y,2)}', f'v_pk_add_f32 {V(p,2)}, {V(y,2)}, {V(y+2,2)}']
        ops += [f'v_pk_fma_f32 {V(p+2,2)}, {V(y+r,2)}, {V(y+r,2)}, {V(p+2,2)}' for r in (2, 4, 6)]
        ops += [f'v_pk_add_f32 {V(p,2)}, {V(p,2)}, {V(y+r,2)}' for r in (4, 6)]
        ops += [f'v_add_f32 {V(p)}, {V(p)}, {V(p+1)}', f'v_add_f32 {V(p+1)}, {V(p+2)}, {V(p+3)}']
    else:
        ops = [f'v_mul_f32 {V(p+1)}, {V(y)}, {V(y)}', f'v_add_f32 {V(p)}, {V(y)}, {V(y+1)}', f'v_fmac_f32 {V(p+1)}, {V(y+1)}, {V(y+1)}']
        for r in range(2, 8): ops += [f'v_add_f32 {V(p)}, {V(p)}, {V(y+r)}', f'v_fmac_f32 {V(p+1)}, {V(y+r)}, {V(y+r)}']
    ops += [f's_lshl_b32 {sT[7]}, {sW}, 9', f's_add_u32 {sT[7]}, {sT[7]}, {L_SP + 2048*X}',
            f'v_lshl_add_u32 {V(p+2)}, {V(vLANE)}, 3, {sT[7]}', f'ds_write_b64 {V(p+2)}, {V(p,2)}']
    return ops
def scomb_ops(t, stoff, toks):
    ops = [f's_and_b32 {sT[7]}, {sW}, 1', f's_lshl_b32 {sT[6]}, {sT[7]}, 11', f's_add_u32 {sT[6]}, {sT[6]}, {L_SP}',
           f'v_lshl_add_u32 {V(t+8)}, {V(vLANE)}, 3, {sT[6]}',
           f'ds_read2st64_b64 {V(t,4)}, {V(t+8)} offset0:0 offset1:1', f'ds_read2st64_b64 {V(t+4,4)}, {V(t+8)} offset0:2 offset1:3',
           f's_lshl1_add_u32 {sT[6]}, {sC}, {sT[7]}', f's_lshl1_add_u32 {sT[6]}, {sT[6]}, {sRH}', f's_lshl3_add_u32 {sT[6]}, {sT[6]}, {sCB}', f's_lshl_b32 {sT[6]}, {sT[6]}, 8',
           f's_add_u32 {sT[6]}, {sT[6]}, {stoff}', f's_cmp_lt_u32 {sW}, 2', f's_cselect_b32 {sT[6]}, {sT[6]}, 0x70000000',
           f'v_and_b32 {V(t+9)}, 31, {V(vLANE)}', f'v_lshlrev_b32 {V(t+9)}, 3, {V(t+9)}',
           f'v_pk_add_f32 {V(t,2)}, {V(t,2)}, {V(t+2,2)}', f'v_pk_add_f32 {V(t+4,2)}, {V(t+4,2)}, {V(t+6,2)}', f'v_pk_add_f32 {V(t,2)}, {V(t,2)}, {V(t+4,2)}',
           f'v_mov_b32 {V(t+2)}, {V(t)}', f'v_mov_b32 {V(t+3)}, {V(t+1)}',
           f'v_permlane32_swap_b32 {V(t+2)}, {V(t)}', f'v_permlane32_swap_b32 {V(t+3)}, {V(t+1)}',
           f'v_pk_add_f32 {V(t,2)}, {V(t,2)}, {V(t+2,2)}']
    def st():
        toks.append(store_dual([f'buffer_store_dwordx2 {V(t,2)}, {V(t+9)}, {SWS}, {sT[6]} offen']))
    ops.append(st)
    return ops
sSFL = 's3'
def sflag(vval, vzero, toks, foff):
    A.wait_vm(toks[-1]); flag_set(vval, vzero, sSFL, imm=foff, wave='lt2')

def raw_addr_ops(v, vt, rowbytes):
    return [f'v_lshrrev_b32 {V(v)}, 2, {V(vLANE)}', f'v_mul_u32_u24 {V(v)}, {rowbytes}, {V(v)}',
            f'v_and_b32 {V(vt)}, 3, {V(vLANE)}', f'v_lshl_add_u32 {V(v)}, {V(vt)}, 4, {V(v)}']
def raw64_addr_ops(v0):
    return [f'v_lshrrev_b32 {V(v0)}, 2, {V(vLANE)}', f'v_lshlrev_b32 {V(v0)}, 10, {V(v0)}',
            f'v_and_b32 {V(v0+1)}, 3, {V(vLANE)}', f'v_lshl_add_u32 {V(v0)}, {V(v0+1)}, 4, {V(v0)}',
            f's_lshl_b32 {sT[7]}, {sW}, 5', f'v_xor_b32 {V(v0)}, {sT[7]}, {V(v0)}', f'v_xor_b32 {V(v0+1)}, 64, {V(v0)}']
def bounce_addr_ops(vw, vr):
    return [f's_lshl_b32 {sT[7]}, {sW}, 10', f's_add_u32 {sT[7]}, {sT[7]}, {L_BNC}',
            f'v_add_u32 {V(vw)}, {sT[7]}, {V(vL16)}', f'v_add_u32 {V(vr)}, {sT[7]}, {V(vTR)}']
def sub(reg4, lo):
    k = reg4[0]; a = int(reg4[2:reg4.index(':')])
    return f'{k}[{a+lo}:{a+lo+1}]'
_bslot = [0]
def wtrans_ops(reg4, vw, vr):
    o = 0
    return [f'ds_write_b128 {V(vw)}, {reg4} offset:{o}',
            f'ds_read_b64_tr_b16 {sub(reg4,0)}, {V(vr)} offset:{o}',
            f'ds_read_b64_tr_b16 {sub(reg4,2)}, {V(vr)} offset:{o+256}']
def emit(ops):
    for o in ops:
        if isinstance(o, str): A(o)
        else: o()

sW1O, sW2O, sWOO = sU[10], sU[11], sU[12]
def wt_setup_ops():
    return [f's_lshl2_add_u32 {sW1O}, {sJ}, {sW}', f's_lshl_b32 {sW1O}, {sW1O}, 15', f's_add_u32 {sW1O}, {sW1O}, {LY.WT_OFF}',
            f's_cmp_ge_u32 {sJ}, 14', f's_cselect_b32 {sW1O}, 0x70000000, {sW1O}',
            f's_lshl2_add_u32 {sT[7]}, {sCB}, {sW}', f's_mul_i32 {sW2O}, {sT[7]}, {56*1024}', f's_add_u32 {sW2O}, {sW2O}, {LY.WT_OFF + 1792*1024}',
            f's_lshl_b32 {sWOO}, {sT[7]}, 14', f's_add_u32 {sWOO}, {sWOO}, {LY.WT_OFF + 3584*1024}']
WSC = ' sc1' + (' nt' if OPT.get('wnt') else '')
def w1_load_ops(ks):
    ops = [f'buffer_load_dwordx4 {W1REG(ks)}, {V(vL16)}, {SWS}, {sW1O} offen offset:{(ks & 3)*1024}{WSC}']
    if ks & 3 == 3: ops.append(f's_add_u32 {sW1O}, {sW1O}, 4096')
    return ops
def w2_load_ops(t):
    ops = [f'buffer_load_dwordx4 {W2REG(t >> 1, t & 1)}, {V(vL16)}, {SWS}, {sW2O} offen offset:{(t & 3)*1024}{WSC}']
    if t & 3 == 3: ops.append(f's_add_u32 {sW2O}, {sW2O}, 4096')
    return ops
def wo_load_ops(g):
    so = sT[7] if g else sWOO
    return ([f's_add_u32 {sT[7]}, {sWOO}, {4096*g}'] if g else []) + \
           [f'buffer_load_dwordx4 {WOREG((4*g + q) >> 1, q & 1)}, {V(vL16)}, {SWS}, {so} offen offset:{q*1024}{WSC}' for q in range(4)]

SCV = 's[92:95]'
def conv_issue(R, vt):
    g, u, cw, i0, wq, so, st2 = sT[0], sT[1], sT[2], sT[3], sT[4], sT[5], sT[6]
    A(f's_lshl_b32 {g}, {sC}, 4'); A(f's_add_u32 {g}, {g}, {sJ}'); A(f's_lshl2_add_u32 {g}, {g}, {sW}')
    A(f's_sub_u32 {u}, {g}, 448'); A(f's_mul_i32 {cw}, {u}, 4682'); A(f's_lshr_b32 {cw}, {cw}, 16')
    A(f's_mul_i32 {i0}, {cw}, 14'); A(f's_sub_u32 {i0}, {u}, {i0}')
    A(f's_and_b32 {wq}, {cw}, 3'); A(f's_mul_i32 {so}, {wq}, 14'); A(f's_add_u32 {so}, {so}, {i0}')
    A(f's_mov_b64 s[92:93], s[24:25]'); A(f's_mov_b32 s94, s26'); A(f's_mov_b32 s95, 0x20000')
    l1 = A.newlabel('Lcv'); l2 = A.newlabel('Lcv')
    A(f's_cmp_lt_u32 {g}, 896'); A(f's_cbranch_scc1 {l1}')
    A.optional(True)
    A(f's_sub_u32 {u}, {g}, 896'); A(f's_lshr_b32 {cw}, {u}, 2'); A(f's_and_b32 {wq}, {cw}, 3'); A(f's_and_b32 {so}, {u}, 15')
    A(f's_mov_b64 s[92:93], s[16:17]'); A(f's_mov_b32 s94, s18')
    A.optional(False)
    A.label(l1)
    A(f's_lshl_b32 {so}, {so}, 15'); A(f's_lshr_b32 {cw}, {cw}, 2'); A(f's_lshl_b32 {cw}, {cw}, 7'); A(f's_add_u32 {so}, {so}, {cw}')
    A(f's_mov_b32 {st2}, 16384'); A(f's_lshl_b32 {wq}, {wq}, 5')
    A(f'v_lshrrev_b32 {V(vt)}, 2, {V(vLANE)}'); A(f'v_and_b32 {V(vt+2)}, 3, {V(vLANE)}'); A(f'v_lshlrev_b32 {V(vt+2)}, 4, {V(vt+2)}')
    A(f'v_lshl_add_u32 {V(vt+3)}, {V(vt)}, 10, {V(vt+2)}'); A(f'v_xor_b32 {V(vt+3)}, {wq}, {V(vt+3)}'); A(f'v_xor_b32 {V(vt+1)}, 64, {V(vt+3)}')
    A(f's_cmp_ge_u32 {g}, 448'); A(f's_cbranch_scc1 {l2}')
    A.optional(True)
    A(f's_and_b32 {so}, {g}, 7'); A(f's_mul_i32 {so}, {so}, {64*3584}'); A(f's_lshr_b32 {u}, {g}, 3'); A(f's_lshl_b32 {u}, {u}, 6'); A(f's_add_u32 {so}, {so}, {u}')
    A(f's_mov_b32 {st2}, {32*3584}')
    A(f's_mov_b64 s[92:93], s[20:21]'); A(f's_mov_b32 s94, s22')
    A(f'v_mul_u32_u24 {V(vt+3)}, 3584, {V(vt)}'); A(f'v_add_u32 {V(vt+3)}, {V(vt+3)}, {V(vt+2)}'); A(f'v_add_u32 {V(vt+1)}, {16*3584}, {V(vt+3)}')
    A.optional(False)
    A.label(l2)
    A(f's_add_u32 {st2}, {st2}, {so}')
    for q in range(4):
        A(f'buffer_load_dwordx4 {Areg(R + 4*q, 4)}, {V(vt+1 if q & 1 else vt+3)}, {SCV}, {st2 if q >= 2 else so} offen')
def wflag_addr_ops(v, t, t2):
    return [f's_lshl2_add_u32 {sT[6]}, {sJ}, {sW}', f's_min_u32 {sT[6]}, {sT[6]}, 55', f's_lshl_b32 {sT[6]}, {sT[6]}, 3',
            f'v_add_u32 {V(v)}, {sT[6]}, {V(vLANE)}',
            f's_lshl2_add_u32 {sT[7]}, {sCB}, {sW}', f's_mul_i32 {sT[6]}, {sT[7]}, 14', f's_add_u32 {sT[6]}, {sT[6]}, 440',
            f'v_add_u32 {V(t)}, {sT[6]}, {V(vLANE)}', f'v_cmp_gt_u32 vcc, 8, {V(vLANE)}',
            f's_lshl_b32 {sT[6]}, {sT[7]}, 2', f's_add_u32 {sT[6]}, {sT[6]}, 874',
            f'v_cndmask_b32 {V(v)}, {V(t)}, {V(v)}, vcc',
            f'v_min_u32 {V(t)}, 25, {V(vLANE)}', f'v_add_u32 {V(t)}, {sT[6]}, {V(t)}', f'v_cmp_gt_u32 vcc, 22, {V(vLANE)}', 's_nop 0',
            f'v_cndmask_b32 {V(v)}, {V(t)}, {V(v)}, vcc',
            f'v_lshrrev_b32 {V(t)}, 6, {V(v)}', f'v_lshlrev_b32 {V(t)}, 13, {V(t)}', f'v_and_b32 {V(t2)}, 3, {V(v)}', f'v_lshl_add_u32 {V(t)}, {V(t2)}, 2, {V(t)}',
            f'v_bfe_u32 {V(v)}, {V(v)}, 2, 4', f'v_lshl_add_u32 {V(v)}, {V(v)}, 7, {V(t)}', f'v_add_u32 {V(v)}, {LY.F_KV + 2048}, {V(v)}']

def pretouch_ops(T):
    ops = [f's_mul_i32 {sT[2]}, {sRBG}, {ORB}', f's_lshl_b32 {sT[3]}, {sJ}, 11', f's_add_u32 {sT[2]}, {sT[2]}, {sT[3]}', f's_add_u32 {sT[2]}, {sT[2]}, {O_BASE}',
           f's_lshl2_add_u32 {sT[3]}, {sC}, {sRH}', f's_lshl_b32 {sT[3]}, {sT[3]}, 5', f's_lshl2_add_u32 {sT[4]}, {sCB}, {sW}', f's_add_u32 {sT[3]}, {sT[3]}, {sT[4]}',
           f's_lshl_b32 {sT[3]}, {sT[3]}, 10', f's_add_u32 {sT[3]}, {sT[3]}, {LY.X1_OFF}',
           f'v_and_b32 {V(T)}, 15, {V(vLANE)}', f'v_lshl_add_u32 {V(T)}, {V(T)}, 7, {sT[2]}',
           f'v_and_b32 {V(T+1)}, 7, {V(vLANE)}', f'v_lshl_add_u32 {V(T+1)}, {V(T+1)}, 7, {sT[3]}',
           f'v_bfe_u32 {V(T+2)}, {V(vLANE)}, 3, 1', f'v_lshl_add_u32 {V(T+1)}, {V(T+2)}, 16, {V(T+1)}',
           ] + ([] if OV else [f'v_lshrrev_b32 {V(T+2)}, 5, {V(vLANE)}', f'v_lshl_add_u32 {V(T+1)}, {V(T+2)}, 21, {V(T+1)}']) + [
           f'v_cmp_gt_u32 vcc, 16, {V(vLANE)}',
           f's_lshl_b32 {sT[2]}, {sW}, 11', f's_add_u32 {sT[2]}, {sT[2]}, {sFB}',
           f'v_cndmask_b32 {V(T)}, {V(T+1)}, {V(T)}, vcc',
           f's_lshl_b32 {sT[3]}, {sC}, 13', f's_and_b32 {sT[4]}, {sJ}, 3', f's_lshl_b32 {sT[4]}, {sT[4]}, 11', f's_add_u32 {sT[3]}, {sT[3]}, {sT[4]}', f's_add_u32 {sT[3]}, {sT[3]}, {LY.ST1_OFF}',
           f's_cmp_lt_u32 {sW}, 2', f's_cselect_b32 {sT[2]}, {sT[2]}, {sT[3]}',
           f'v_and_b32 {V(T+1)}, 15, {V(vLANE)}', f'v_lshl_add_u32 {V(T+1)}, {V(T+1)}, 7, {sT[2]}',
           f'v_cmp_gt_u32 vcc, 48, {V(vLANE)}', 's_nop 0',
           f'v_cndmask_b32 {V(T)}, {V(T+1)}, {V(T)}, vcc',
           f'buffer_load_dword a35, {V(T)}, {SWS}, 0 offen sc1']
    assert LY.X2_OFF - LY.X1_OFF == 1 << 21
    return ops

P2Q, P2SA, P2SB, P2P, P2K, P2V, P2O, P2SC = 20, 28, 44, 60, 68, 72, 80, 96
W2EARLY = OPT.get('w2e', 0); W1EARLY = OPT.get('w1e', 16); W1TAIL = OPT.get('w1t', 4)

L0 = {}; QEPI = []
def p1(L):
    first = (L == 0)
    XR = 20; aq, ak, av = 84, 100, 116; WB = 132; NMW = 156
    xop = lambda ks: V(XR + 4 * (ks % 16), 4)
    wreg = lambda ks, p: WB + ((ks & 1) * 3 + p) * 4
    vNM, vRS, vS1, vS2, vTRH, vA, vB, vC = vP
    F = Fill(); D = Fill(OPT.get('p1vm', 12))
    stage_tok = {}
    sXB, sXK, sXS, sSTO, sSF = sU[0], sU[1], sU[2], sU[5], 's96' if not STAMPS else 's33'
    CK, CV = wreg(0, 0), wreg(1, 0)
    stoks = []; cvtok = []
    if first:
        vXG, vWA, vBR0, vBR1, vTRC = 224, 228, 229, 230, 231
        vHS, vHV, vONE, vZERO, vWF, vWV, vPT, vL4, vBW, vBRD = 234, 235, 236, 237, 238, 239, 240, 241, 242, 243
        TT = 192
        ONES, CW, CSA, CSB, CVR = 0, 8, 16, 64, 48
        sXL, sWB, sWS, sWL, sCO, sC1, sFL = sU[3], sU[4], sU[13], sU[14], sU[7], sU[8], sU[9]
        A(f'v_bfe_u32 {V(21)}, {V(vLANE)}, 2, 3')
        A(f'v_lshlrev_b32 {V(20)}, 10, {V(21)}')
        A(f'v_lshrrev_b32 {V(22)}, 5, {V(vLANE)}'); A(f'v_lshl_add_u32 {V(20)}, {V(22)}, 6, {V(20)}')
        A(f'v_and_b32 {V(22)}, 3, {V(vLANE)}'); A(f'v_lshrrev_b32 {V(23)}, 2, {V(21)}'); A(f'v_xor_b32 {V(22)}, {V(22)}, {V(23)}')
        A(f'v_lshl_add_u32 {V(vXG)}, {V(22)}, 4, {V(20)}')
        A(f'v_xor_b32 {V(22)}, 2, {V(22)}')
        A(f'v_lshl_add_u32 {V(vXG+1)}, {V(22)}, 4, {V(20)}')
        A(f'v_add_u32 {V(vXG+2)}, {2*7168}, {V(vXG)}'); A(f'v_add_u32 {V(vXG+3)}, {3*7168}, {V(vXG+1)}'); A(f'v_add_u32 {V(vXG+1)}, 7168, {V(vXG+1)}')
        A(f's_lshl_b32 {sXB}, {sRBG}, 15')
        A(f's_mul_i32 {sXL}, {sW}, 12288'); A(f's_add_u32 {sXL}, {sXL}, {L_S}')
        emit(raw_addr_ops(vWA, 20, 3072))
        A(f's_mul_i32 {sWB}, {sW}, {16*3072}'); A(f's_lshl_b32 {sT[5]}, {sJ}, 6'); A(f's_add_u32 {sWB}, {sWB}, {sT[5]}')
        A(f's_mul_i32 {sWL}, {sW}, 3072')
        def xdma_ops(s):
            ops = [f's_xor_b32 {sXK}, {sROT}, {s}', f's_add_u32 m0, {sXL}, {(s % 3) * 4096}', f's_lshl_b32 {sXS}, {sXK}, 7', f's_add_u32 {sXS}, {sXS}, {sXB}']
            for g in range(4):
                ops.append(lambda g=g: stage_tok.__setitem__(('x', s), A(f'buffer_load_dwordx4 {V(vXG + g)}, {SX}, {sXS} offen offset:{1024*g} lds')))
                ops[-1].st = ('x', s)
            return ops
        def wdma_ops(s):
            ops = [f's_xor_b32 {sWS}, {sROT}, {s}', f's_mul_i32 {sWS}, {sWS}, {64*3072}', f's_add_u32 m0, {sWL}, {s*4*3072}', f's_add_u32 {sWS}, {sWS}, {sWB}']
            for p in (1, 2, 0):
                ops.append(lambda p=p: stage_tok.__setitem__(('w', s), A(f'buffer_load_dwordx4 {V(vWA)}, {SWQKV}, {sWS} offen offset:{1024*p} lds')))
                ops[-1].st = ('w', s)
            return ops
        nq = 0 if OPT.get('nocode') else 1
        def kvfill(layer, T):
            emit([f's_lshl_b32 {sT[0]}, {sJ}, 6', f's_add_u32 {sT[0]}, {sT[0]}, {sRBG}', f's_lshl_b32 {sT[0]}, {sT[0]}, 12', f's_add_u32 {sT[0]}, {sT[0]}, {LY.KV_OFF + layer*LY.KV_LAYER}'])
            for r in range(4): A(f'v_mov_b32 {V(T + r)}, -1')
            for f in range(4): A(f'buffer_store_dwordx4 {V(T, 4)}, {V(vL16)}, {SWS}, {sT[0]} offen offset:{1024*f} sc1')
        if not OPT.get('nowarm'):
            A(f'v_min_u32 {V(20)}, 15, {V(vLANE)}'); A(f'v_lshlrev_b32 {V(20)}, 7, {V(20)}'); A(f'v_min_u32 {V(21)}, {11*128}, {V(20)}')
            A(f's_lshl2_add_u32 {sT[0]}, {sJ}, {sW}'); A(f's_lshl_b32 {sT[0]}, {sT[0]}, 11'); A(f's_lshl_b32 {sT[1]}, {sC}, 17'); A(f's_add_u32 {sT[0]}, {sT[0]}, {sT[1]}')
            A(f's_lshl2_add_u32 {sT[1]}, s2, {sW}'); A(f's_mul_i32 {sT[1]}, {sT[1]}, {12*128}')
            A(f'buffer_load_dword a32, {V(21)}, {SWQKV}, {sT[1]} offen')
            A(f'buffer_load_dword a33, {V(20)}, {SX}, {sT[0]} offen'); nq += 2
        resid_ops = rowmajor_addr(vA, vC) + own_tile_rowmajor(sT[6]) + \
            [f'buffer_load_dwordx4 {V(vRES, 4)}, {V(vA)}, {SX}, {sT[6]} offen', f's_add_u32 {sT[6]}, {sT[6]}, 65536',
             f'buffer_load_dwordx4 {V(vRES + 4, 4)}, {V(vA)}, {SX}, {sT[6]} offen']
        if not OPT.get('x_nostat'): emit(resid_ops)
        else: nq -= 2
        emit(xdma_ops(0)); emit(wdma_ops(0)); nq += 9
        if OPT.get('tlb2', 0):
            sh = OPT.get('tsh', 20)
            A(f'v_lshlrev_b32 {V(20)}, {sh}, {V(vLANE)}'); A(f'v_min_u32 {V(21)}, {LY.WS_END - 128}, {V(20)}')
            A(f'v_min_u32 {V(22)}, {512*1792*2 - 128}, {V(20)}'); A(f'v_min_u32 {V(23)}, {512*512*2 - 128}, {V(20)}')
            A(f'buffer_load_dword a39, {V(21)}, {SWS}, 0 offen'); A(f'buffer_load_dword a40, {V(22)}, {SW1}, 0 offen')
            A(f'buffer_load_dword a41, {V(22)}, {SW2}, 0 offen'); A(f'buffer_load_dword a42, {V(23)}, {SWO}, 0 offen')
            A(f'buffer_load_dword a43, {V(22)}, {SOUT}, 0 offen'); A(f'buffer_load_dword a44, {V(20)}, {SDBG}, 0 offen'); nq += 6
        if OPT.get('s0st'): stamp('iss')
        tr_addr()
        make_masks(32)
        A(f'v_bfe_u32 {V(21)}, {V(vLANE)}, 3, 2'); A(f'v_lshlrev_b32 {V(vBR0)}, 10, {V(21)}')
        A(f'v_and_b32 {V(21)}, 7, {V(vLANE)}'); A(f'v_lshl_add_u32 {V(vBR0)}, {V(21)}, 6, {V(vBR0)}')
        A(f'v_add_u32 {V(vBR0)}, {sXL}, {V(vBR0)}')
        A(f'v_bfe_u32 {V(21)}, {V(vLANE)}, 2, 2'); A(f'v_lshrrev_b32 {V(22)}, 5, {V(vLANE)}'); A(f'v_xor_b32 {V(21)}, {V(21)}, {V(22)}')
        A(f'v_xor_b32 {V(22)}, 2, {V(21)}')
        A(f'v_lshl_add_u32 {V(vBR1)}, {V(22)}, 4, {V(vBR0)}')
        A(f'v_lshl_add_u32 {V(vBR0)}, {V(21)}, 4, {V(vBR0)}')
        A(f'v_mov_b32 {V(21)}, 0x3f803f80')
        for r in range(4): A(f'v_accvgpr_write_b32 {Areg(ONES + r)}, {V(21)}')
        A(f's_min_u32 {sT[0]}, {sW}, 2'); A(f's_lshl_b32 {sT[0]}, {sT[0]}, 10')
        A(f'v_add_u32 {V(vTRC)}, {sT[0]}, {V(vTR)}'); A(f'v_add_u32 {V(vTRC+1)}, {16*3072}, {V(vTRC)}')
        A(f'v_and_b32 {V(vHS)}, 15, {V(vLANE)}'); A(f'v_lshl_add_u32 {V(vHS)}, {V(vHS)}, 2, 64')
        A(f'v_mov_b32 {V(vONE)}, 1'); A(f'v_mov_b32 {V(vZERO)}, 0'); A(f'v_lshlrev_b32 {V(vL4)}, 2, {V(vLANE)}')
        emit(bounce_addr_ops(vBW, vBRD)); emit(wt_setup_ops()); emit(wflag_addr_ops(vWF, 20, 21))
        pt = pretouch_ops(20); emit(pt[:-1]); A(f'v_mov_b32 {V(vPT)}, {V(20)}')
        leader_announce(nq, vONE, vZERO)
        def conv_scalars():
            A(f's_lshl_b32 {sFL}, {sJ}, 7'); A(f's_lshl2_add_u32 {sFL}, {sW}, {sFL}'); A(f's_add_u32 {sFL}, {sFL}, {sFB}'); A(f's_add_u32 {sFL}, {sFL}, {LY.F_KV}')
            A(f's_lshl_b32 {sT[0]}, {sC}, 4'); A(f's_add_u32 {sT[0]}, {sT[0]}, {sJ}'); A(f's_lshl2_add_u32 {sT[0]}, {sT[0]}, {sW}')
            A(f's_lshl_b32 {sCO}, {sT[0]}, 12'); A(f's_add_u32 {sCO}, {sCO}, {LY.WT_OFF}')
            A(f's_lshl_b32 {sC1}, {sT[0]}, 7'); A(f's_add_u32 {sC1}, {sC1}, {LY.CS1_OFF}')
            A(f's_cmp_ge_u32 {sT[0]}, 448'); A(f's_cselect_b32 {sC1}, 0x70000000, {sC1}')
        if OPT.get('s0st'): stamp('setup')
        emit(xdma_ops(1)); emit(wdma_ops(1))
        def warm3():
            A(f's_lshl2_add_u32 {sT[1]}, s2, {sW}'); A(f's_lshl_b32 {sT[2]}, {sT[1]}, 9'); A(f's_mul_i32 {sT[1]}, {sT[1]}, {14*128}')
            A(f'v_min_u32 {V(TT+24)}, 13, {V(vLANE)}'); A(f'v_lshlrev_b32 {V(TT+24)}, 7, {V(TT+24)}'); A(f'v_min_u32 {V(TT+25)}, {3*128}, {V(TT+24)}')
            A(f'buffer_load_dword a34, {V(TT+24)}, {SW1}, {sT[1]} offen'); A(f'buffer_load_dword a35, {V(TT+25)}, {SWO}, {sT[2]} offen')
            A(f'buffer_load_dword a38, {V(TT+24)}, {SW2}, {sT[1]} offen')
        if OPT.get('warm3', 1) == 1: warm3()
        if OPT.get('s0st'): stamp('iss1')
        for X in range(2): emit(unpack_ops(TT, X)); emit(spart_ops(TT, TT + 8, X, True))
        A.wait_lgkm()
        conv_tr = []; conv_st = [f'v_and_b32 {V(TT+22)}, 127, {V(vL4)}']
        for q in range(4): conv_tr += wtrans_ops(Areg(CVR + 4*q, 4), vBW, vBRD)
        for q in range(4):
            conv_st += [f'buffer_store_dwordx4 {Areg(CVR + 4*q, 4)}, {V(vL16)}, {SWS}, {sCO} offen offset:{1024*q} sc1',
                        f'{MFMA} {Areg(CSB,16)}, {Areg(ONES,4)}, {Areg(CVR + 4*q, 4)}, {"0" if q == 0 else Areg(CSB,16)}']
        conv_last = lambda: cvtok.append(A(f'buffer_store_dword {Areg(CSB)}, {V(TT+22)}, {SWS}, {sC1} offen sc1'))
    else:
        A(f'v_and_b32 {V(vA)}, 31, {V(vLANE)}'); A(f'v_lshlrev_b32 {V(vA)}, 2, {V(vA)}')
        A(f's_lshl_b32 {sT[0]}, {sW}, 7'); A(f's_add_u32 {sT[0]}, {sT[0]}, {sFB}'); A(f's_add_u32 {sT[0]}, {sT[0]}, {LY.F_X2}')
        flag_issue(vB, vA, sT[0])
        A(f's_lshl_b32 {sXB}, {sRBG}, 15'); A(f's_add_u32 {sXB}, {sXB}, {X2_BASE}'); A(f's_lshl_b32 {sXK}, {sROT}, 12')
    A(f'v_add_u32 {V(vTRH)}, {16*3072}, {V(vTR)}')
    def wread(ks, parts):
        base = vTR if ks < 16 else vTRH
        for p in parts:
            r = wreg(ks, p); o = L_WQ + (ks % 16) * 3072 + p * 1024
            A(f'ds_read_b64_tr_b16 {V(r, 2)}, {V(base)} offset:{o}')
            A(f'ds_read_b64_tr_b16 {V(r + 2, 2)}, {V(base)} offset:{o + 256}')
    def cread(ks):
        r = CW + 4 * (ks & 1); b_ = vTRC + (ks >= 16); o = L_WQ + (ks % 16) * 3072
        A(f'ds_read_b64_tr_b16 {Areg(r, 2)}, {V(b_)} offset:{o}'); A(f'ds_read_b64_tr_b16 {Areg(r + 2, 2)}, {V(b_)} offset:{o + 256}')
    xrtok = {}
    def xfrag(st_):
        A.wait_vm(stage_tok[('x', st_)])
        for q in range(4):
            xrtok[st_] = A(f'ds_read_b128 {xop(4*st_ + q)}, {V(vBR1 if q & 1 else vBR0)} offset:{(st_ % 3) * 4096 + 512*(q>>1)}')
    def ready(ks):
        if first and ks % 4 == 0:
            A.wait_vm(stage_tok[('w', ks // 4)]); A('s_barrier')
    def xload_op(ks):
        ops = []
        if ks & 3 == 0: ops += [f's_xor_b32 {sXS}, {sXK}, {(ks >> 2) << 12}', f's_add_u32 {sXS}, {sXS}, {sXB}']
        return ops + [f'buffer_load_dwordx4 {xop(ks)}, {V(vL16)}, {SWS}, {sXS} offen offset:{(ks & 3) * 1024} sc1']
    xq = [] if first else list(range(32))
    def xissue(limit):
        if xq and xq[0] < limit: emit(xload_op(xq.pop(0))); return 4
        return 0
    SB0, SB1 = (TT + 12, TT + 16) if first else (CK, CV)
    sflag_ops = [f'v_and_b32 {V(vA)}, 7, {V(vLANE)}', f'v_lshlrev_b32 {V(vA)}, 2, {V(vA)}',
                 f's_lshl_b32 {sSF}, {sW}, 5', f's_add_u32 {sSF}, {sSF}, {sFB}', f's_add_u32 {sSF}, {sSF}, {LY.F_S2}',
                 lambda: flag_issue(vB, vA, sSF)] + stat_addr_ops(vC, vS1) + \
                [f's_lshl_b32 {sSTO}, {sRBG}, 11', f's_add_u32 {sSTO}, {sSTO}, {LY.ST2_OFF}']
    sload_ops = [lambda: flag_check(vB, vA, sSF, L + 1)] + stat_load_ops(SB0, SB1, vC, sSTO)
    nm_ops = stat_reduce_ops(SB0, SB1, vS1, vS2) + stats_finish_ops(vS1, vS2, vA, vB, vNM, vRS) + split_pack_ops(NMW, vNM, vA) + \
             [f'v_mov_b32 {V(NMW+1)}, 0', f'v_mov_b32 {V(NMW+2)}, 0', f'v_mov_b32 {V(NMW+3)}, 0',
              f's_lshl_b32 {sT[0]}, {sW}, 8', f's_add_u32 {sT[0]}, {sT[0]}, {L_STAT}',
              f'v_and_b32 {V(vA)}, 31, {V(vLANE)}', f'v_lshl_add_u32 {V(vA)}, {V(vA)}, 2, {sT[0]}',
              f'ds_write_b32 {V(vA)}, {V(vRS)}',
              f'v_lshrrev_b32 {V(vB)}, 5, {V(vLANE)}', f'v_lshl_add_u32 {V(vB)}, {V(vB)}, 4, {sT[0]}',
              f'v_lshlrev_b32 {V(vA)}, 2, {V(vLANE)}', f'v_add_u32 {V(vA)}, {L_CSQ}, {V(vA)}']
    sKV = sU[3]
    if not first:
        wread(0, [1, 2, 0])
        flag_check(vB, vA, sT[0], L)
        stamp('p1poll')
        for ks in range(OPT.get('p1pre', 12)): xissue(16)
        for p_ in PENDING: p_()
    else:
        xfrag(0); ready(0); wread(0, [1, 2, 0]); cread(0)
        stamp('p1x')
        if not OPT.get('x_nostat'):
            emit(scomb_ops(TT, LY.ST2_OFF, stoks))
            flag_issue(vHV, vHS, '0', SDBG)
        D.adds(xdma_ops(2)); D.adds(wdma_ops(2))
        if OPT.get('warm3', 1) == 2: D.add(warm3)
        XL = OPT.get('xl', 2)
        xat = {st_: max(st_, min(4*st_ - 2, 4*st_ - 4*XL + 2)) if st_ < 4 else max(4*(st_ - 4) + 3, 4*st_ - 4*XL + 2) for st_ in range(1, 8)}
        def xslot_free(st_):
            if st_ + 3 < 8:
                D.add(lambda: A.wait_lgkm(xrtok[st_]), 0); D.adds(xdma_ops(st_ + 3))
        xslot_free(0); D.adds(wdma_ops(3))
        if OPT.get('warm3', 1) == 3: D.add(warm3)
        wnext = [4]
    def fill(b):
        if D.q: b = D.run(b)
        F.run(b)
    for ks in range(32):
        if OPT.get('p1st') and ks % 4 == 0: stamp(f'k{ks}')
        c = lambda a: '0' if ks == 0 else V(a, 16)
        x = xop(ks)
        nparts = [1, 2, 0] if ks + 1 < 16 else [1, 2]
        if ks + 1 < 32: ready(ks + 1)
        A(f'{MFMA} {V(ak,16)}, {V(wreg(ks,1),4)}, {x}, {c(ak)}')
        if ks + 1 < 32: wread(ks + 1, nparts[:1])
        else: wread(16, [0])
        fill(12 - xissue(ks + 16))
        A(f'{MFMA} {V(av,16)}, {x}, {V(wreg(ks,2),4)}, {c(av)}')
        if ks + 1 < 32: wread(ks + 1, nparts[1:2])
        fill(12)
        if ks < 16:
            A(f'{MFMA} {V(aq,16)}, {V(wreg(ks,0),4)}, {x}, {c(aq)}')
            if len(nparts) > 2: wread(ks + 1, nparts[2:])
            fill(12 - xissue(ks + 17))
        if first:
            A(f'{MFMA} {Areg(CSA,16)}, {Areg(ONES,4)}, {Areg(CW + 4*(ks&1),4)}, {"0" if ks == 0 else Areg(CSA,16)}')
            if ks + 1 < 32: cread(ks + 1)
            fill(12)
            for st_ in range(1, 8):
                if xat[st_] == ks:
                    while ('x', st_) not in stage_tok or any(getattr(o, 'st', None) == ('x', st_) for o, _ in D.q): D._do(D.q.pop(0)[0])
                    xfrag(st_); xslot_free(st_)
                    if wnext[0] < 8: D.adds(wdma_ops(wnext[0])); wnext[0] += 1
            if ks % 4 == 2 and ks // 4 + 1 < 8:
                key = ('w', ks // 4 + 1)
                while key not in stage_tok or any(getattr(o, 'st', None) == key for o, _ in D.q): D._do(D.q.pop(0)[0])
            if ks == OPT.get('sf0', 11): F.adds(sflag_ops)
            if ks == OPT.get('sl0', 15): F.flush(); emit(sload_ops)
            if not D.q and wnext[0] == 8 and ('x', 7) in stage_tok and 'b' not in L0 and ks >= OPT.get('bmin', 15):
                L0['b'] = ks
                F.flush()
                if OPT.get('tag0', 0): kvfill(0, TT + 28); L0['fil'] = A.items[-1]
                conv_issue(CVR, TT + 24)
                conv_scalars()
            if 'b' in L0 and OPT.get('tag0', 0) and ks == L0['b'] + OPT.get('fild', 5):
                A.wait_vm(L0['fil']); flag_set(vONE, vZERO, sFL, fastok=False, imm=16)
            if 'b' in L0 and ks == min(L0['b'] + OPT.get('cvd', 6), 29):
                F.adds(conv_tr); F.adds(conv_st); F.add('s_nop 7'); F.add(conv_last)
            if ks == OPT.get('sfk', 7) and not OPT.get('x_nostat'):
                flag_check(vHV, vHS, '0', 1, SDBG, sleep=2)
                sflag(vONE, vZERO, stoks, LY.F_S2)
            if ks == 26: F.adds(nm_ops)
            if ks == 30:
                F.flush()
                if OPT.get('tag0', 0):
                    emit([f'v_min_u32 {V(vHS)}, 2, {V(vLANE)}', f'v_min_u32 {V(vHS)}, {sC}, {V(vHS)}', f'v_lshlrev_b32 {V(vHS)}, 13, {V(vHS)}',
                          f'v_sub_u32 {V(vHS)}, {sFL}, {V(vHS)}', f'v_add_u32 {V(vHS)}, 16, {V(vHS)}'])
                    flag_issue(vHV, vHS, '0'); L0.update(filv=vHV, fila=vHS, fils='0')
        else:
            if ks == 10: F.adds(sflag_ops)
            if ks == 15: F.flush(); F.adds(sload_ops)
            if ks == 2:
                F.adds([f's_lshl_b32 {sT[1]}, {sJ}, 7', f's_lshl2_add_u32 {sT[1]}, {sW}, {sT[1]}', f's_add_u32 {sT[1]}, {sT[1]}, {sFB}', f's_add_u32 {sT[1]}, {sT[1]}, {LY.F_KV + 2048 + 16}',
                        f'v_min_u32 {V(158)}, 2, {V(vLANE)}', f'v_min_u32 {V(158)}, {sC}, {V(158)}', f'v_lshlrev_b32 {V(158)}, 13, {V(158)}', f'v_sub_u32 {V(158)}, {sT[1]}, {V(158)}'])
            if ks == 16: F.add(lambda: flag_issue(159, 158, '0'))
            if ks == 20: F.adds(nm_ops[:22]); F.add(lambda: flag_check(159, 158, '0', 1, sleep=2), 8); F.adds(nm_ops[22:])
            if ks == 27:
                F.flush()
                for r in (1, 2, 3): A(f'v_mov_b32 {V(CK + r)}, 0'); A(f'v_mov_b32 {V(CV + r)}, 0')
                A(f'ds_read_b32 {V(CK)}, {V(vA)} offset:256'); A(f'ds_read_b32 {V(CV)}, {V(vA)} offset:512'); A(f'ds_read_b32 {V(CV + 2)}, {V(vA)}')
            if ks == 29: A(f'{MFMA} {V(ak,16)}, {V(CK,4)}, {V(NMW,4)}, {V(ak,16)}')
            if ks == 30:
                A(f'{MFMA} {V(av,16)}, {V(NMW,4)}, {V(CV,4)}, {V(av,16)}')
                A(f'{MFMA} {V(aq,16)}, {V(CV+2,4)}, {V(NMW,4)}, {V(aq,16)}')
        if ks == (27 if first else 28):
            F.adds([f's_lshl_b32 {sKV}, {sJ}, 6', f's_add_u32 {sKV}, {sKV}, {sRBG}', f's_lshl_b32 {sKV}, {sKV}, 12',
                    f's_add_u32 {sKV}, {sKV}, {LY.KV_OFF + L*LY.KV_LAYER}',
                    f's_add_u32 {sT[0]}, {sW}, 4', f's_mul_i32 {sT[0]}, {sT[0]}, {KVSLOT}', f's_add_u32 {sT[0]}, {sT[0]}, {L_KV}',
                    f'v_add_u32 {V(vC)}, {sT[0]}, {V(vL16)}'])
            if first:
                F.adds([f'v_mov_b32 {V(TT + r)}, 0' for r in (1, 3, 5, 6, 7)])
                F.adds([f's_min_u32 {sT[1]}, {sW}, 2', f's_lshl_b32 {sT[1]}, {sT[1]}, 8', f's_add_u32 {sT[1]}, {sT[1]}, {L_CSQ}', f'v_add_u32 {V(TT+11)}, {sT[1]}, {V(vL4)}'])
    F.flush()
    assert not xq and not D.q
    if OPT.get('p1st') or OPT.get('span') == 2: stamp('kend')
    RSR = [wreg(0, 1), wreg(0, 2), wreg(1, 1), wreg(1, 2)]
    for g in range(4): F.add(f'ds_read_b128 {V(RSR[g], 4)}, {V(vB)} offset:{32*g}')
    if first:
        WK, WV, WQ = TT, TT + 2, TT + 4
        F.adds([f'v_cmp_gt_u32 vcc, 32, {V(vLANE)}', f'v_accvgpr_read_b32 {V(TT+8)}, {Areg(CSA)}'])
        F.adds(cs_pack_ops(TT + 9, TT + 8, TT + 10))
        F.adds([f'ds_write_b32 {V(TT+11)}, {V(TT+9)}', lambda: (A.wait_lgkm(), A('s_barrier')),
                f'ds_read_b32 {V(WK)}, {V(vA)} offset:256', f'ds_read_b32 {V(WV)}, {V(vA)} offset:512', f'ds_read_b32 {V(WQ)}, {V(vA)}'])
        F.add('s_nop 0', 56)
        F.adds([f'{MFMA} {V(ak,16)}, {V(WK,4)}, {V(NMW,4)}, {V(ak,16)}', f'{MFMA} {V(av,16)}, {V(NMW,4)}, {V(WV,4)}, {V(av,16)}',
                f'{MFMA} {V(aq,16)}, {V(WQ,4)}, {V(NMW,4)}, {V(aq,16)}'])
    kvtok = []
    for acc, isv in ((ak, False), (av, True)):
        for half in range(2):
            for r in range(8 * half, 8 * half + 8):
                sc = V(RSR[r >> 2] + (r & 3)) if isv else V(vRS)
                F.add(f'v_mul_f32 {V(acc+r)}, {V(acc+r)}, {sc}')
            for r in range(8 * half, 8 * half + 8, 2):
                F.add(f'v_cvt_pk_bf16_f32 {V(acc + r//2)}, {V(acc+r)}, {V(acc+r+1)}')
            f = 2 * isv + half
            F.add(lambda acc=acc, half=half, f=f: kvtok.append(A(f'buffer_store_dwordx4 {V(acc + 4*half, 4)}, {V(vL16)}, {SWS}, {sKV} offen offset:{1024*f} sc1')))
    for f, reg in enumerate((ak, ak + 4, av, av + 4)): F.add(f'ds_write_b128 {V(vC)}, {V(reg, 4)} offset:{1024*f}')
    T = ak + 8
    F.adds([f'v_min_u32 {V(vA)}, 11, {V(vLANE)}', f'v_lshrrev_b32 {V(vS2)}, 1, {V(vA)}', f'v_and_b32 {V(vS2)}, 6, {V(vS2)}', f'v_bfe_u32 {V(vS2)}, 18, {V(vS2)}, 2',
            f'v_mov_b32 {V(T)}, 0x3f803f80', f'v_cmp_ge_u32 vcc, {sC}, {V(vS2)}',
            f'v_mul_u32_u24 {V(vA)}, {KVSLOT}, {V(vA)}', f'v_add_u32 {V(vA)}, {L_KV + 4096}, {V(vA)}',
            f'v_cndmask_b32 {V(T)}, 0, {V(T)}, vcc'] + [f'v_mov_b32 {V(T+r)}, {V(T)}' for r in range(1, 4)] +
           [f'ds_write_b128 {V(vA)}, {V(T,4)}',
            f's_lshl_b32 {sT[0]}, {sJ}, 7', f's_lshl2_add_u32 {sT[0]}, {sW}, {sT[0]}', f's_add_u32 {sT[0]}, {sT[0]}, {sFB}', f's_add_u32 {sT[0]}, {sT[0]}, {LY.F_KV}',
            f's_add_u32 {sT[1]}, {sXCC}, {(L + 1) << 8}',
            f'v_mov_b32 {V(vS1)}, {sT[1]}', f'v_mov_b32 {V(vC)}, 0', f'v_mul_f32 {V(vNM)}, {f32(0.25 * LOG2E)}, {V(vRS)}'])
    tagged = (not first) or OPT.get('tag0', 0)
    sHF, sHD, sHF2, sHD2, sM1, sM2 = sU[2], sU[3], sU[4], sU[5], sU[7], sU[8]
    vHA, vHS_ = av + 8, av + 9
    F.adds([f's_sub_u32 {sHF}, {sT[0]}, 8192', f's_sub_u32 {sHF2}, {sT[0]}, 16384', f's_sub_u32 {sHD2}, {sHD}, 32768', f's_sub_u32 {sHD}, {sHD}, 16384'])
    F.add(lambda: emit([f's_cmp_lt_u32 {sC}, 1', f's_cselect_b32 {sHF}, {sT[0]}, {sHF}', f's_cselect_b32 {sHD}, 0x7ff00000, {sHD}']), 12)
    F.add(lambda: emit([f's_cmp_lt_u32 {sC}, 2', f's_cselect_b32 {sHF2}, {sHF}, {sHF2}', f's_cselect_b32 {sHD2}, 0x7ff00000, {sHD2}']), 12)
    F.adds([f's_mul_i32 {sM2}, {sW}, {KVSLOT}', f's_add_u32 {sM2}, {sM2}, {L_KV}', f's_add_u32 {sM1}, {sM2}, {8*KVSLOT}'])
    def halo_dma():
        A(f's_mov_b32 m0, {sM1}')
        for f in range(4): L0['t1'] = A(f'buffer_load_dwordx4 {V(vL16)}, {SWS}, {sHD} offen offset:{1024*f} sc1 lds')
        A(f's_mov_b32 m0, {sM2}')
        for f in range(4): L0['t2'] = A(f'buffer_load_dwordx4 {V(vL16)}, {SWS}, {sHD2} offen offset:{1024*f} sc1 lds')
    L0['halo_dma'] = halo_dma; L0['t1'] = None
    for ks in range(16, 32):
        if ks + 1 < 32: wread(ks + 1, [0])
        A(f'{MFMA} {V(aq,16)}, {V(wreg(ks,0),4)}, {xop(ks)}, {V(aq,16)}')
        F.run(OPT.get('qtb', 56) if len(kvtok) < 4 else 20)
        if tagged and ks == OPT.get('hdk', 99):
            F.flush()
            if first: flag_check(L0['filv'], L0['fila'], L0['fils'], 1, sleep=2)
            halo_dma()
    F.flush()
    if OPT.get('p1st'): stamp('qtail')
    QEPI[:] = [f'v_pk_mul_f32 {V(aq+r,2)}, {V(aq+r,2)}, {V(vNM,2)} op_sel_hi:[1,0]' for r in range(0, 16, 2)] + \
              [f'v_cvt_pk_bf16_f32 {V(P2Q + r//2)}, {V(aq+r)}, {V(aq+r+1)}' for r in range(0, 16, 2)]
    A(f'v_mov_b32 {V(ak+12)}, {V(vS1)}'); A(f's_mov_b32 {sU[6]}, {sT[0]}')
    L0['kvtok'] = kvtok[-1]; L0['vKVV'] = ak + 12
    if first:
        if not tagged:
            A.wait_vm(kvtok[-1]); flag_set(vS1, vC, sT[0], fastok=False)
            flag_set(vONE, vZERO, sFL, fastok=False, imm=2048)
        L0.update(cvtok=cvtok, vONE=vONE, vZERO=vZERO, vWF=vWF, vWV=vWV, vPT=vPT, vL4=vL4)
    stamp('p1end')

def cs_final_ops(T, n, dst_lds):
    ops = []
    while n > 1:
        n //= 2
        ops += [f'v_add_f32 {V(T+i)}, {V(T+i)}, {V(T+n+i)}' for i in range(n)]
    ops += [f'v_mov_b32 {V(T+1)}, {V(T)}', f'v_cmp_gt_u32 vcc, 32, {V(vLANE)}', f'v_lshl_add_u32 {V(T+3)}, {V(vLANE)}, 2, {dst_lds}',
            f'v_permlane32_swap_b32 {V(T+1)}, {V(T)}', f'v_add_f32 {V(T)}, {V(T)}, {V(T+1)}']
    return ops + cs_pack_ops(T + 1, T, T + 2) + [f'ds_write_b32 {V(T+3)}, {V(T+1)}']

sBAD = 's[96:97]' if not STAMPS else 's[34:35]'
def p2(L):
    first = (L == 0)
    vKR, vV0, vV1, vPM, vA, vB, vKM, vD = vP
    vVA = [vV0, vV1]
    sWS_, sO, sHF, sHD, sHF2, sHD2 = sU[0], sU[1], sU[2], sU[3], sU[4], sU[5]
    tagged = (not first) or OPT.get('tag0', 0)
    if not tagged:
        A(f'v_and_b32 {V(vA)}, 1, {V(vLANE)}'); A(f's_sub_u32 {sT[1]}, {sHF}, {sHF2}'); A(f'v_mul_lo_u32 {V(vA)}, {V(vA)}, {sT[1]}')
    emit(QEPI)
    A(f's_mul_i32 {sWS_}, {sW}, {KVSLOT}')
    A(f'v_add_u32 {V(vKM)}, {L_KV}, {V(vL16)}'); A(f'v_add_u32 {V(vKR)}, {sWS_}, {V(vKM)}')
    A(f'v_add_u32 {V(vPM)}, {L_PMASK}, {V(vL16)}')
    A(f's_mul_i32 {sO}, {sRBG}, {ORB}'); A(f's_lshl_b32 {sT[1]}, {sJ}, 11'); A(f's_add_u32 {sO}, {sO}, {sT[1]}'); A(f's_add_u32 {sO}, {sO}, {O_BASE}')
    A(f's_mov_b64 {sBAD}, 0')
    vstate = [None, None]
    def vset(f, hd, aset, t0=None, t1=None):
        t0 = vA if t0 is None else t0; t1 = vB if t1 is None else t1
        st = vstate[f]
        if st == (hd, aset): return
        if st is not None and st[0] == hd:
            A(f'v_add_u32 {V(vVA[f])}, {sWS_}, {V(vVA[f])}' if aset == 'o' else f'v_subrev_u32 {V(vVA[f])}, {sWS_}, {V(vVA[f])}')
        else:
            kb = vKR if aset == 'o' else vKM
            A(f'v_bfe_u32 {V(t0)}, {V(vLANE)}, 4, 1'); A(f'v_cmp_eq_u32 vcc, {hd}, {V(t0)}')
            A(f'v_sub_u32 {V(t0)}, {V(kb)}, {V(vL16)}'); A(f'v_add_u32 {V(t1)}, {2048 + 1024*f}, {V(kb)}'); A(f'v_add_u32 {V(t0)}, 4096, {V(t0)}')
            A(f'v_cndmask_b32 {V(vVA[f])}, {V(t0)}, {V(t1)}, vcc')
        vstate[f] = (hd, aset)
    vset(0, 0, 'm', P2SA, P2SA + 1); vset(1, 0, 'm', P2SA, P2SA + 1)
    if not tagged:
        smp = [P2SB, P2SB + 1, P2SB + 2, P2SB + 3]
        for k, r in enumerate(smp):
            A(f's_sleep {OPT.get("hs0", 2) if k == 0 else OPT.get("hs1", 3)}')
            flag_issue(r, vA, sHF2)
        flag_check_multi(smp, [3, 2, 1, 0], vA, sHF2, (L + 1) << 8)
    stamp('halopoll')
    sM1, sM2 = sU[7], sU[8]
    if L0['t1'] is None:
        if first and tagged: flag_check(L0['filv'], L0['fila'], L0['fils'], 1, sleep=2)
        L0['halo_dma']()
    t1, t2 = L0['t1'], L0['t2']
    if tagged:
        A.wait_vm(L0['kvtok']); flag_set(L0['vKVV'], vD, sU[6], fastok=False)
        if first: flag_set(L0['vONE'], L0['vZERO'], sU[9], fastok=False, imm=2048)
    def halo_read_ops(T, off):
        return [f'ds_read_b128 {V(T + 4*f, 4)}, {V(vKR)} offset:{off + 1024*f}' for f in range(4)]
    def halo_max_ops(T):
        return [f'v_max3_u32 {V(T)}, {V(T)}, {V(T+1)}, {V(T+2)}', f'v_max3_u32 {V(T+3)}, {V(T+3)}, {V(T+4)}, {V(T+5)}',
                f'v_max3_u32 {V(T+6)}, {V(T+6)}, {V(T+7)}, {V(T+8)}', f'v_max3_u32 {V(T+9)}, {V(T+9)}, {V(T+10)}, {V(T+11)}',
                f'v_max3_u32 {V(T+12)}, {V(T+12)}, {V(T+13)}, {V(T+14)}', f'v_max3_u32 {V(T)}, {V(T)}, {V(T+3)}, {V(T+6)}',
                f'v_max3_u32 {V(T+9)}, {V(T+9)}, {V(T+12)}, {V(T+15)}', f'v_max_u32 {V(T)}, {V(T)}, {V(T+9)}', f'v_cmp_eq_u32 vcc, -1, {V(T)}']
    def halo_check(T, off, sm, sd, sf):
        rt = A.newlabel('Lhre'); bk = A.newlabel('Lhok')
        emit(halo_max_ops(T)); A(f's_cbranch_vccnz {rt}'); A.label(bk)
        txt = f'''{rt}:
    s_mov_b32 {sSPIN}, 0
{rt}_l:
    v_mov_b32 {V(T+1)}, 0
    s_add_u32 {sSPIN}, {sSPIN}, 1
    s_cmp_gt_u32 {sSPIN}, 0x20000
    s_cbranch_scc1 L_exit
    s_and_b32 {sT[6]}, {sSPIN}, 7
    s_cmp_lg_u32 {sT[6]}, 0
    s_mov_b32 {sT[6]}, 0
    s_cbranch_scc1 {rt}_d
    buffer_load_dword {V(T)}, {V(T+1)}, {SWS}, {sf} offen sc1
    s_waitcnt vmcnt(0)
    v_readfirstlane_b32 {sT[6]}, {V(T)}
{rt}_d:
    s_mov_b32 m0, {sm}
    s_nop 0
'''
        txt += ''.join(f'    buffer_load_dwordx4 {V(vL16)}, {SWS}, {sd} offen offset:{1024*f} sc1 lds\n' for f in range(4))
        txt += f'    s_waitcnt vmcnt(0)\n    s_cmp_ge_u32 {sT[6]}, {(L + 1) << 8}\n    s_cbranch_scc1 {bk}\n'
        txt += ''.join(f'    {o}\n' for o in halo_read_ops(T, off)) + '    s_waitcnt lgkmcnt(0)\n' + ''.join(f'    {o}\n' for o in halo_max_ops(T))
        txt += f'    s_cbranch_vccz {bk}\n    s_branch {rt}_l'
        OOL.append(txt)
    BG = Fill()
    for g_ in range(1, 4):
        if not first and g_ <= OPT.get('woe', 0): emit(wo_load_ops(g_))
        else: BG.adds(wo_load_ops(g_))
    if first:
        vCA, vCV = 248, 249
        A(f'v_lshrrev_b32 {V(P2P)}, 2, {V(vLANE)}'); A(f'v_lshlrev_b32 {V(P2P)}, 7, {V(P2P)}'); A(f'v_and_b32 {V(P2P+1)}, 3, {V(vLANE)}')
        A(f'v_lshl_add_u32 {V(vCA)}, {V(P2P+1)}, 2, {V(P2P)}')
        A(f's_add_u32 {sU[13]}, {sFB}, {LY.F_KV}')
        A(f'buffer_load_dword a35, {V(L0["vPT"])}, {SWS}, 0 offen sc1')
        if OPT.get('hpt') == 1:
            A(f's_mul_i32 {sT[4]}, {sC}, {4*112*1024}'); A(f's_lshl2_add_u32 {sT[3]}, {sJ}, {sW}'); A(f's_min_u32 {sT[3]}, {sT[3]}, 55'); A(f's_lshl_b32 {sT[3]}, {sT[3]}, 11')
            A(f's_add_u32 {sT[4]}, {sT[4]}, {sT[3]}'); A(f's_add_u32 {sT[4]}, {sT[4]}, {LY.H_OFF}')
            A(f'v_lshrrev_b32 {V(P2P)}, 4, {V(vLANE)}'); A(f'v_mul_u32_u24 {V(P2P)}, {112*1024}, {V(P2P)}')
            A(f'v_and_b32 {V(P2P+1)}, 15, {V(vLANE)}'); A(f'v_lshl_add_u32 {V(P2P)}, {V(P2P+1)}, 7, {V(P2P)}')
            A(f'buffer_load_dword a223, {V(P2P)}, {SWS}, {sT[4]} offen sc1')
        BG.q[0:0] = [(o, 4) for o in [f's_lshl2_add_u32 {sT[3]}, {sJ}, {sW}', f's_min_u32 {sT[3]}, {sT[3]}, 55', f's_lshl_b32 {sT[3]}, {sT[3]}, 10', f's_add_u32 {sT[3]}, {sT[3]}, {LY.CS1_OFF}'] +
                     [f'buffer_load_dword {V(244+t_)}, {V(L0["vL4"])}, {SWS}, {sT[3]} offen offset:{256*t_} sc1' for t_ in range(4)]]
        for ks in range(min(W1EARLY, 24)): BG.adds(w1_load_ops(ks))
        BG.adds([f's_lshl_b32 {sT[2]}, {sW}, 8', f's_add_u32 {sT[2]}, {sT[2]}, {L_CS1}'])
        BG.add(lambda: emit(cs_final_ops(244, 4, sT[2])))
        for ks in range(24, W1EARLY): BG.adds(w1_load_ops(ks))
        for t_ in range(W2EARLY): BG.adds(w2_load_ops(t_))
    A.wait_vm(t1)
    if tagged: emit(halo_read_ops(P2SB, 8*KVSLOT)); halo_check(P2SB, 8*KVSLOT, sM1, sHD, sHF)
    A.wait_lgkm(); A('s_barrier')
    stamp('halodma')
    Sb = [P2SA, P2SB]
    mid = lambda hd: [(hd, 'f', 'm', p) for p in (8, 9, 10, 11)]
    out = lambda hd: [(hd, 'x', 'o', 4)] + [(hd, 'f', 'o', d) for d in (3, 2, 1)]
    units = mid(0) + out(0) + out(1) + mid(1)
    def kread(hd, aset, p): A(f'ds_read_b128 {V(P2K,4)}, {V(vKR if aset == "o" else vKM)} offset:{p*KVSLOT + 1024*hd}')
    def vread(f, hd, aset, p, base):
        vset(f, hd, aset)
        A(f'ds_read_b128 {V(base,4)}, {V(vVA[f])} offset:{p*KVSLOT}')
    qk = lambda hd, s: A(f'{MFMA} {V(s,16)}, {V(P2K,4)}, {V(P2Q + 4*hd, 4)}, 0')
    def pv(vb, pb, start=False):
        A(f'{MFMA} {V(P2O,16)}, {V(vb,4)}, {V(pb,4)}, {"0" if start else V(P2O,16)}')
    otok = []
    def o_epilogue_ops(hd, tmp):
        ob, lb = (P2O, P2O + 8) if hd == 0 else (P2O + 8, P2O)
        ops = [f'v_rcp_f32 {V(vA)}, {V(lb)}', f'v_subrev_u32 {V(lb+4)}, {(127-40) << 23}, {V(lb)}']
        ops += [f'v_mul_f32 {V(ob+r)}, {V(ob+r)}, {V(vA)}' for r in range(8)]
        ops += [f'v_cmp_lt_u32 vcc, {80 << 23}, {V(lb+4)}']
        ops += [f'v_cvt_pk_bf16_f32 {V(tmp + r//2)}, {V(ob+r)}, {V(ob+r+1)}' for r in range(0, 8, 2)]
        ops += [f's_or_b64 {sBAD}, {sBAD}, vcc']
        ops.append(lambda: otok.append(store_dual([f'buffer_store_dwordx4 {V(tmp,4)}, {V(vL16)}, {SWS}, {sO} offen offset:{1024*hd}'])))
        return ops
    u0, u1 = units[0], units[1]
    kread(u0[0], u0[2], u0[3]); vread(0, u0[0], u0[2], u0[3], P2V); qk(0, Sb[0]); kread(u1[0], u1[2], u1[3])
    bgb = 0 if first else 4
    pendPV1 = None
    for n, (hd, kind, aset, d) in enumerate(units):
        if OPT.get('p2st') and L == 1 and n % 2 == 0: stamp(f'u{n}')
        s = Sb[n & 1]; nxt = Sb[(n + 1) & 1]
        nu = units[n + 1] if n + 1 < len(units) else None
        nu2 = units[n + 2] if n + 2 < len(units) else None
        start = (n % 8 == 0)
        E = lambda r: A(f'v_exp_f32 {V(s+r)}, {V(s+r)}')
        C = lambda t: A(f'v_cvt_pk_bf16_f32 {V(P2P + t)}, {V(s+2*t)}, {V(s+2*t+1)}')
        def posA():
            if pendPV1: pv(*pendPV1)
            vread(1, hd, aset, d, P2V + 4)
            if n == 3 and tagged: A.wait_vm(t2); emit(halo_read_ops(P2SC, 0))
        def posB():
            if nu:
                qk(nu[0], nxt)
                if n == 3:
                    if not tagged: A.wait_vm(t2)
                    else: halo_check(P2SC, 0, sM2, sHD2, sHF2)
                    A('s_barrier')
                if nu[1] == 'x': kread(nu[0], 'o', 0)
                elif nu2: kread(nu2[0], nu2[2], nu2[3])
        def posB2():
            if nu and nu[1] == 'x':
                qk(nu[0], P2SC); kread(nu2[0], nu2[2], nu2[3])
        def posC_next_v0():
            if nu: vread(0, nu[0], nu[2], nu[3], P2V)
        if kind == 'f':
            E(0); E(1); posA(); E(2); E(3); C(0); E(4); E(5); BG.run(bgb); C(1); posB(); E(6); E(7); C(2); E(8); C(3); E(9); E(10)
            pv(P2V, P2P, start); posC_next_v0()
            E(11); C(4); E(12); E(13); BG.run(bgb); C(5); posB2(); E(14); E(15); C(6); BG.run(bgb); C(7)
            pendPV1 = (P2V + 4, P2P + 4)
        else:
            M = lambda r: A(f'v_cndmask_b32 {V(s+r)}, {V(P2SC+r)}, {V(s+r)}, s[{SMASK0+2*r}:{SMASK0+2*r+1}]')
            M(0); M(1); posA()
            for r in range(2, 16): M(r)
            A(f'ds_read_b128 {V(P2SC,4)}, {V(vPM)}'); A(f'ds_read_b128 {V(P2SC+4,4)}, {V(vPM)} offset:1024')
            vread(0, hd, 'o', 0, P2SC + 8); vread(1, hd, 'o', 0, P2SC + 12)
            posB()
            if hd == 1: emit(o_epilogue_ops(0, P2O + 8))
            E(0); E(1); E(2); E(3); C(0); E(4); E(5); C(1); E(6); E(7); C(2); E(8); C(3); E(9)
            for t in range(4): A(f'v_and_b32 {V(P2SC+t)}, {V(P2SC+t)}, {V(P2P+t)}')
            E(10); E(11)
            pv(P2V, P2SC, start); posC_next_v0()
            for t in range(4): A(f'v_xor_b32 {V(P2P+t)}, {V(P2SC+t)}, {V(P2P+t)}')
            C(4); E(12); E(13)
            pv(P2SC + 8, P2P)
            C(5); E(14); E(15); C(6); BG.run(bgb); C(7)
            for t in range(4, 8): A(f'v_and_b32 {V(P2SC+t)}, {V(P2SC+t)}, {V(P2P+t)}')
            for t in range(4, 6): A(f'v_xor_b32 {V(P2P+t)}, {V(P2SC+t)}, {V(P2P+t)}')
            pv(P2V + 4, P2SC + 4)
            for t in range(6, 8): A(f'v_xor_b32 {V(P2P+t)}, {V(P2SC+t)}, {V(P2P+t)}')
            pendPV1 = (P2SC + 12, P2P + 4)
        if first and n == OPT.get('wfi', 0): flag_issue(L0['vWV'], L0['vWF'], '0'); flag_issue(vCV, vCA, sU[13])
        if first and n == OPT.get('wfc', 3):
            flag_check(L0['vWV'], L0['vWF'], '0', 1, sleep=2); bgb = OPT.get('bgb', 8)
            flag_check(vCV, vCA, sU[13], 256)
            A(f'v_and_b32 {V(vCV)}, 255, {V(vCV)}'); A(f'v_cmp_ne_u32 vcc, {sXCC}, {V(vCV)}')
            A(f's_cmp_eq_u64 vcc, 0'); A(f's_cselect_b32 {sFAST}, {0 if FORCE_SLOW else 1}, 0')
        if n == 9:
            BG.q[0:0] = [(o, 4) for o in wo_load_ops(0)]
    pv(*pendPV1)
    BG.flush()
    A(f's_lshl_b32 {sT[0]}, {sW}, 6'); A(f's_lshl2_add_u32 {sT[0]}, {sJ}, {sT[0]}'); A(f's_add_u32 {sT[0]}, {sT[0]}, {sFB}')
    emit(o_epilogue_ops(1, P2SA))
    fb = A.newlabel('Lsafe'); bk = A.newlabel('Lsafeback')
    A(f's_cmp_lg_u64 {sBAD}, 0' if not OPT.get('forcesafe') else 's_cmp_eq_u32 s2, s2'); A(f's_cbranch_scc1 {fb}')
    A.label(bk)
    OOL.append(safe_softmax(fb, bk, vKR, vKM, sWS_, sO))
    A(f'v_mov_b32 {V(vB)}, {L + 1}'); A(f'v_mov_b32 {V(vD)}, 0')
    A('s_barrier')
    return dict(flag=(vB, vD, sT[0]), tok=otok)

def safe_softmax(entry, back, vKR, vKM, sWS_, sO):
    B = Asm()
    Q, S_, P_, K_, V_, O_, vM, vT, vAD, vVD = 60, 28, 44, 64, 72, 80, 52, 53, 54, 55
    sH, sI, sOFFS, sPASS = sT[1], sT[2], sT[3], sT[4]
    sA_, sB_, sMK = 's[46:47]', 's[48:49]', 'vcc'
    sPASS = sSPIN
    B.label(entry)
    B('s_waitcnt vmcnt(0) lgkmcnt(0)'); B('s_nop 15')
    B(f's_mov_b32 {sH}, 0')
    B.label(entry + '_h')
    B(f's_cmp_eq_u32 {sH}, 1'); B('s_cselect_b64 vcc, -1, 0')
    for r in range(4): B(f'v_cndmask_b32 {V(Q+r)}, {V(P2Q+r)}, {V(P2Q+4+r)}, vcc')
    B(f'v_mov_b32 {V(vM)}, 0xff800000')
    for r in range(16): B(f'v_mov_b32 {V(O_+r)}, 0')
    B(f's_mov_b32 {sPASS}, 0')
    B.label(entry + '_p')
    B(f's_mov_b32 {sI}, 0')
    B.label(entry + '_b')
    B(f's_add_u32 {sOFFS}, {sI}, {sW}'); B(f's_add_u32 s46, {sI}, 3'); B(f's_cmp_lt_u32 {sI}, 5'); B(f's_cselect_b32 {sOFFS}, {sOFFS}, s46')
    B(f's_lshr_b32 s46, {sOFFS}, 2'); B('s_mov_b32 s47, 0'); B('s_cmp_eq_u32 s46, 0'); B('s_cselect_b32 s47, 2, s47'); B('s_cmp_eq_u32 s46, 2'); B('s_cselect_b32 s47, 1, s47')
    B(f's_cmp_lt_u32 {sC}, s47'); B(f's_cbranch_scc1 {entry}_n')
    B(f's_mul_i32 {sOFFS}, {sOFFS}, {KVSLOT}')
    B(f'v_add_u32 {V(vAD)}, {sOFFS}, {V(vKM)}')
    B(f's_lshl_b32 s46, {sH}, 10'); B(f'v_add_u32 {V(vT)}, s46, {V(vAD)}')
    B(f'ds_read_b128 {V(K_,4)}, {V(vT)}')
    B(f'v_bfe_u32 {V(vT)}, {V(vLANE)}, 4, 1'); B(f'v_cmp_eq_u32 vcc, {sH}, {V(vT)}')
    B(f'v_sub_u32 {V(vT)}, {V(vAD)}, {V(vL16)}'); B(f'v_add_u32 {V(vT)}, 4096, {V(vT)}')
    for f in range(2):
        B(f'v_add_u32 {V(vVD+f)}, {2048 + 1024*f}, {V(vAD)}'); B(f'v_cndmask_b32 {V(vVD+f)}, {V(vT)}, {V(vVD+f)}, vcc')
        B(f'ds_read_b128 {V(V_+4*f,4)}, {V(vVD+f)}')
    B(f'{MFMA} {V(S_,16)}, {V(K_,4)}, {V(Q,4)}, 0')
    B(f's_cmp_lg_u32 {sI}, 0'); B(f's_cselect_b64 {sA_}, -1, 0')
    B(f's_cmp_lg_u32 {sI}, 4'); B(f's_cselect_b64 {sB_}, -1, 0')
    B(f'v_mov_b32 {V(vT)}, 0xff800000')
    for r in range(16):
        m = f's[{SMASK0+2*r}:{SMASK0+2*r+1}]'
        B(f's_and_b64 vcc, {m}, {sA_}'); B(f's_andn2_b64 {sBAD}, {sB_}, {m}'); B(f's_or_b64 vcc, vcc, {sBAD}')
        B(f'v_cndmask_b32 {V(S_+r)}, {V(vT)}, {V(S_+r)}, vcc')
    B(f's_cmp_eq_u32 {sPASS}, 1'); B(f's_cbranch_scc1 {entry}_2')
    for r in range(0, 16, 2): B(f'v_max3_f32 {V(vM)}, {V(S_+r)}, {V(S_+r+1)}, {V(vM)}')
    B(f's_branch {entry}_n')
    B.label(entry + '_2')
    for r in range(16): B(f'v_sub_f32 {V(S_+r)}, {V(S_+r)}, {V(vM)}')
    for r in range(16): B(f'v_exp_f32 {V(S_+r)}, {V(S_+r)}')
    for t in range(8): B(f'v_cvt_pk_bf16_f32 {V(P_+t)}, {V(S_+2*t)}, {V(S_+2*t+1)}')
    for f in range(2): B(f'{MFMA} {V(O_,16)}, {V(V_+4*f,4)}, {V(P_+4*f,4)}, {V(O_,16)}')
    B.label(entry + '_n')
    B('s_waitcnt lgkmcnt(0)'); B('s_nop 15')
    B(f's_add_u32 {sI}, {sI}, 1'); B(f's_cmp_lt_u32 {sI}, 9'); B(f's_cbranch_scc1 {entry}_b')
    B(f'v_mov_b32 {V(vT)}, {V(vM)}'); B(f'v_permlane32_swap_b32 {V(vT)}, {V(vM)}'); B(f'v_max_f32 {V(vM)}, {V(vM)}, {V(vT)}')
    B(f's_add_u32 {sPASS}, {sPASS}, 1'); B(f's_cmp_lt_u32 {sPASS}, 2'); B(f's_cbranch_scc1 {entry}_p')
    B(f's_cmp_eq_u32 {sH}, 1'); B('s_cselect_b64 vcc, -1, 0')
    B(f'v_cndmask_b32 {V(vT)}, {V(O_+8)}, {V(O_)}, vcc'); B(f'v_rcp_f32 {V(vT)}, {V(vT)}')
    for r in range(8): B(f'v_cndmask_b32 {V(S_+r)}, {V(O_+r)}, {V(O_+8+r)}, vcc')
    for r in range(8): B(f'v_mul_f32 {V(S_+r)}, {V(S_+r)}, {V(vT)}')
    for t in range(4): B(f'v_cvt_pk_bf16_f32 {V(P_+t)}, {V(S_+2*t)}, {V(S_+2*t+1)}')
    B(f's_lshl_b32 s46, {sH}, 10'); B(f's_add_u32 s46, s46, {sO}')
    B(f'buffer_store_dwordx4 {V(P_,4)}, {V(vL16)}, {SWS}, s46 offen sc1')
    B('s_waitcnt vmcnt(0)')
    B(f's_add_u32 {sH}, {sH}, 1'); B(f's_cmp_lt_u32 {sH}, 2'); B(f's_cbranch_scc1 {entry}_h')
    B(f's_branch {back}')
    return B.finalize().rstrip('\n')

def red_addr_ops(vw, vr, area):
    ops = []
    for q in (1, 2, 3):
        ops += [f's_xor_b32 {sT[7]}, {sW}, {q}', f's_mul_i32 {sT[7]}, {sT[7]}, 6144', f's_add_u32 {sT[7]}, {sT[7]}, {area + (q-1)*2048}',
                f'v_add_u32 {V(vw + q - 1)}, {sT[7]}, {V(vL16)}']
    ops += [f's_mul_i32 {sT[7]}, {sW}, 6144', f's_add_u32 {sT[7]}, {sT[7]}, {area}', f'v_add_u32 {V(vr)}, {sT[7]}, {V(vL16)}']
    return ops
def send_ops(acc, vw, off):
    return [f'ds_write_b128 {V(vw + q - 1)}, {V(acc + 8*q + 4*h, 4)} offset:{off + 1024*h}' for q in (1, 2, 3) for h in range(2)]
def recv_ops(dst, vr, off):
    return [f'ds_read_b128 {V(dst + 4*k, 4)}, {V(vr)} offset:{off + 1024*k}' for k in range(6)]
def unpack_ops(dst, X):
    ops = []
    for t in range(4):
        ops += [f'v_lshlrev_b32 {V(dst + 2*t)}, 16, {V(vRES + 4*X + t)}', f'v_and_b32 {V(dst + 2*t + 1)}, 0xffff0000, {V(vRES + 4*X + t)}']
    return ops
def add8_ops(y, a, b, pk):
    if pk: return [f'v_pk_add_f32 {V(y+r,2)}, {V(a+r,2)}, {V(b+r,2)}' for r in range(0, 8, 2)]
    return [f'v_add_f32 {V(y+r)}, {V(a+r)}, {V(b+r)}' for r in range(8)]

def finish_ops(y, part, X, pk, sxo, toks, last=False, vout=None):
    ops = add8_ops(part, part, part + 8, pk) + add8_ops(y, y, part + 16, pk) + add8_ops(y, y, part, pk)
    ops += [f'v_cvt_pk_bf16_f32 {V(vRES + 4*X + r//2)}, {V(y+r)}, {V(y+r+1)}' for r in range(0, 8, 2)]
    if last:
        ops.append(lambda: toks.append(A(f'buffer_store_dwordx4 {V(vRES + 4*X, 4)}, {V(vout)}, {SOUT}, {sxo} offen' + (' sc1' if (OPT.get('outsc', 0) >> X) & 1 else ''))))
        return ops
    ops.append(lambda: toks.append(store_dual([f'buffer_store_dwordx4 {V(vRES + 4*X, 4)}, {V(vL16)}, {SWS}, {sxo} offen'])))
    return ops + spart_ops(y, part, X, pk)

def out_scalars_ops(sxo, sfl, xoff, foff):
    return [f's_lshl2_add_u32 {sT[6]}, {sC}, {sRH}', f's_lshl2_add_u32 {sT[7]}, {sCB}, {sW}',
            f's_lshl_b32 {sxo}, {sT[6]}, 5', f's_add_u32 {sxo}, {sxo}, {sT[7]}', f's_lshl_b32 {sxo}, {sxo}, 10', f's_add_u32 {sxo}, {sxo}, {xoff}',
            f's_lshl_b32 {sfl}, {sRH}, 5', f's_add_u32 {sfl}, {sfl}, {sT[7]}', f's_lshl2_add_u32 {sfl}, {sfl}, {sFB}', f's_add_u32 {sfl}, {sfl}, {foff}']

def ffn(L, otok, oflag):
    first = (L == 0); last = (L == 1)
    vRW, vRR, vFA, vON, vF, vZ = vP[0], vP[3], vP[4], vP[5], vP[6], vP[7]
    assert (vON, vZ) == oflag[:2]
    sXO, sFL, sSA, sSB, sPF = sU[0], sU[2], sU[3], sU[4], sU[5]
    sXS, sLD, sHO, sHFL, sST, sSF = sU[1], sU[6], sU[7], sU[8], sU[9], sU[13]
    def p4_scalars():
        A(f's_lshl_b32 {sXS}, {sC}, 17'); A(f's_lshl_b32 {sT[2]}, {sW}, 11'); A(f's_add_u32 {sXS}, {sXS}, {sT[2]}'); A(f's_add_u32 {sXS}, {sXS}, {LY.X1_OFF}')
        A(f's_add_u32 {sLD}, {sT[2]}, {L_S}')
        A(f's_mul_i32 {sHO}, {sC}, {4*112*1024}'); A(f's_lshl2_add_u32 {sT[3]}, {sJ}, {sW}'); A(f's_lshl_b32 {sT[2]}, {sT[3]}, 11')
        A(f's_add_u32 {sHO}, {sHO}, {sT[2]}'); A(f's_add_u32 {sHO}, {sHO}, {LY.H_OFF}')
        A(f's_lshl2_add_u32 {sHFL}, {sT[3]}, {sFB}')
        A(f's_cmp_ge_u32 {sJ}, 14'); A(f's_cselect_b32 {sXS}, 0x70000000, {sXS}'); A(f's_cselect_b32 {sHO}, 0x70000000, {sHO}')
        A(f's_lshl_b32 {sST}, {sRBG}, 11'); A(f's_add_u32 {sST}, {sST}, {LY.ST1_OFF}')
        A(f's_lshl_b32 {sSF}, {sW}, 5'); A(f's_add_u32 {sSF}, {sSF}, {sFB}'); A(f's_add_u32 {sSF}, {sSF}, {LY.F_S1}')
    A(f'v_bfe_u32 {V(vFA)}, {V(vLANE)}, 2, 1'); A(f'v_lshlrev_b32 {V(vFA)}, 7, {V(vFA)}')
    A(f'v_and_b32 {V(vF)}, 3, {V(vLANE)}'); A(f'v_lshl_add_u32 {V(vFA)}, {V(vF)}, 2, {V(vFA)}')
    A(f's_lshl_b32 {sPF}, {sRH}, 6'); A(f's_lshl_b32 {sT[1]}, {sW}, 4'); A(f's_add_u32 {sPF}, {sPF}, {sT[1]}'); A(f's_add_u32 {sPF}, {sPF}, {sFB}')
    A(f's_lshl2_add_u32 {sSA}, {sC}, {sRH}'); A(f's_mul_i32 {sSA}, {sSA}, {ORB}'); A(f's_lshl_b32 {sT[1]}, {sW}, 13'); A(f's_add_u32 {sSA}, {sSA}, {sT[1]}')
    A(f's_add_u32 {sSA}, {sSA}, {O_BASE}'); A(f's_add_u32 {sSB}, {sSA}, {2*ORB}'); A(f's_add_u32 {sT[4]}, {sSA}, 4096'); A(f's_add_u32 {sT[5]}, {sSB}, 4096')
    emit(red_addr_ops(vRW, vRR, L_S))
    emit(out_scalars_ops(sXO, sFL, LY.X1_OFF, LY.F_X1))
    A.wait_vm(otok[-1]); flag_set(*oflag, imm=LY.F_O)
    stamp('p2end')
    p4_scalars()
    def h_pretouch():
        A(f'v_lshrrev_b32 {V(90)}, 4, {V(vLANE)}'); A(f'v_mul_u32_u24 {V(90)}, {112*1024}, {V(90)}')
        A(f'v_and_b32 {V(91)}, 15, {V(vLANE)}'); A(f'v_lshl_add_u32 {V(90)}, {V(91)}, 7, {V(90)}')
        A(f'buffer_load_dword a223, {V(90)}, {SWS}, {sHO} offen sc1')
    smp = [92, 93, 94]
    for k, r in enumerate(smp):
        if k or OPT.get('os0', 0): A(f's_sleep {OPT.get("os0", 0) if k == 0 else OPT.get("os1", 2)}')
        flag_issue(r, vFA, sPF)
    flag_check_multi(smp, [2, 1, 0], vFA, sPF, L + 1)
    stamp('p3poll')
    ACC = 20
    slot = {}
    def oload(n, base):
        X, i = divmod(n, 8); slot[n] = base
        so = [[sSA, sT[4]], [sSB, sT[5]]][X][i >> 2]
        A(f'buffer_load_dwordx4 {V(base,4)}, {V(vL16)}, {SWS}, {so} offen offset:{(i & 3)*1024} sc1')
    for n in range(11): oload(n, 52 + 4 * n)
    A(f'v_lshlrev_b32 {V(vFA)}, 2, {V(vLANE)}')
    A(f's_add_u32 {sPF}, {sFB}, {LY.F_X1}')
    F = Fill()
    tokA, tokB, stA, stB = [], [], [], []
    yA = 72
    for n in range(16):
        X, i = divmod(n, 8)
        if OPT.get('p3st') and L == 1 and n in (0, 1, 4, 8, 12): stamp(f'a{n}')
        if n == 8:
            emit(unpack_ops(yA, 0)); emit(send_ops(ACC, vRW, 0)); emit(add8_ops(yA, yA, ACC, True))
            if OPT.get('p3st') and L == 1: stamp('sendA')
        for nh in range(2):
            A(f'{MFMA} {V(ACC + 16*nh, 16)}, {WOREG(i, nh)}, {V(slot[n],4)}, {"0" if i == 0 else V(ACC + 16*nh, 16)}')
            F.run(24)
        if n < 5: oload(11 + n, slot[n])
        if first and n == 5:
            for ks in range(W1EARLY, 32): F.adds(w1_load_ops(ks))
        if n == 10:
            A.wait_lgkm(); A('s_barrier')
            F.adds(recv_ops(96, vRR, 0)); F.adds(finish_ops(yA, 96, 0, False, sXO, tokA))
    if OPT.get('p3st') and L == 1: stamp('p3m')
    yB = 52
    while not tokA: F._do(F.q.pop(0)[0])
    emit(unpack_ops(yB, 1))
    emit(send_ops(ACC, vRW, 24576)); emit(add8_ops(yB, yB, ACC, True))
    F.flush()
    A(f's_add_u32 {sXO}, {sXO}, 65536')
    A.wait_vm(tokA[-1]); flag_set(vON, vZ, sFL)
    A.wait_lgkm(); A('s_barrier')
    if OPT.get('p3st') and L == 1: stamp('barB')
    emit(recv_ops(124, vRR, 24576))
    fin = finish_ops(yB, 124, 1, True, sXO, tokB)
    k_ = OPT.get('x1i', 12)
    emit(fin[:k_]); flag_issue(vF, vFA, sPF); emit(fin[k_:])
    stamp('p3end')
    if STOP <= 5 * L + 3:
        A.wait_vm(); return False
    ACC4 = [20, 36, 144]; XR = 52; NXR = 8; CSW = 84; NMW = 88; NMS = 92; SA = 96; E = 100; HP = 116
    vXA, vSA, vNL, vSF = vP[0], vP[1], vP[2], vP[3]
    NS = 6; tok = {}
    def dma_m0(s): A(f's_add_u32 m0, {sLD}, {(s % NS) * 8192}')
    def dma1(s, f):
        tok[s] = A(f'buffer_load_dwordx4 {V(vL16)}, {SWS}, {sXS} offen offset:{1024*f} sc1 lds')
        if f == 1: A(f's_add_u32 {sXS}, {sXS}, 8192')
    A(f'v_add_u32 {V(vXA)}, {L_S}, {V(vL16)}')
    A(f'v_mov_b32 {V(vNL)}, {f32(-LOG2E)}')
    A.wait_lgkm(); A('s_barrier')
    emit(scomb_ops(100, LY.ST1_OFF, stA))
    flag_check(vF, vFA, sPF, L + 1)
    for s in range(4): dma_m0(s); dma1(s, 0); dma1(s, 1)
    A.wait_vm(tokB[-1]); flag_set(vON, vZ, sFL, imm=256)
    emit(stat_addr_ops(vSA, vSF))
    A(f'v_and_b32 {V(vSF)}, 7, {V(vLANE)}'); A(f'v_lshlrev_b32 {V(vSF)}, 2, {V(vSF)}')
    for r in (1, 2, 3, 5, 6, 7): A(f'v_mov_b32 {V(CSW + r)}, 0')
    A(f's_lshl_b32 {sT[7]}, {sW}, 8'); A(f's_add_u32 {sT[7]}, {sT[7]}, {L_CS1}'); A(f'v_lshl_add_u32 {V(94)}, {V(vLANE)}, 2, {sT[7]}')
    A(f'ds_read_b32 {V(CSW)}, {V(94)}')
    sflag(vON, vZ, stA, LY.F_S1)
    stamp('p4poll')
    LA = OPT.get('la', 6)
    xslots = [XR + 4 * k for k in range(8)] + ([124, 128] if LA > 7 else [])
    xr = lambda n: V(xslots[n % len(xslots)], 4)
    xtok = {}
    def xread(n):
        s, t = divmod(n, 8); c = 4
        if t == 0 and not (OPT.get('x_nobar') and s > 5 and L == 1):
            if s in tok: A.wait_vm(tok[s])
            A('s_barrier'); c += 8
        nd = None
        if s + 4 < 16 and not (OPT.get('x_nodma') and s > 1 and L == 1):
            if t == 1: nd = (s + 4, 0)
            if t == 5: nd = (s + 4, 1)
        if nd and nd[1] == 0: dma_m0(nd[0])
        xtok[n] = A(f'ds_read_b128 {xr(n)}, {V(vXA)} offset:{(s % NS) * 8192 + t * 1024}')
        if nd: dma1(*nd); c += 8
        return c
    htok = {}
    AB = [0, 2, 1, 0]
    def epi_ops(rb):
        a = ACC4[AB[rb]]; sa = SA + rb
        st = [[f'v_mul_f32 {V(a+r)}, {V(a+r)}, {V(sa)}' for r in range(16)],
              [f'v_exp_f32 {V(E+r)}, {V(a+r)}' for r in range(16)],
              [f'v_fma_f32 {V(E+r)}, {V(E+r)}, {V(vNL)}, {V(vNL)}' for r in range(16)],
              [f'v_rcp_f32 {V(E+r)}, {V(E+r)}' for r in range(16)],
              [f'v_mul_f32 {V(a+r)}, {V(a+r)}, {V(E+r)}' for r in range(16)]]
        ops = []
        for step in range(16 + 2 * 5):
            for k in range(5):
                r = step - 2 * k
                if 0 <= r < 16: ops.append(st[k][r])
            r = step - 10
            if 0 <= r < 16 and r & 1:
                ops.append(f'v_cvt_pk_bf16_f32 {V(HP + r//2)}, {V(a+r-1)}, {V(a+r)}')
        def hstore():
            lines = [f'buffer_store_dwordx4 {V(HP + 4*f, 4)}, {V(vL16)}, {SWS}, {sHO} offen offset:{1024*f}' for f in range(2)]
            if OPT.get('hsc1', 1) >> L & 1:
                for l_ in lines: htok[rb] = A(l_ + ' sc1')
            else: htok[rb] = store_dual(lines)
            A(f's_add_u32 {sHO}, {sHO}, {112*1024}')
        return ops, hstore
    def hflag(rb):
        A.wait_vm(htok[rb]); flag_set(vON, vZ, sHFL, imm=LY.F_H + 256 * rb)
    sHA, sHB, sP5F = sU[3], sU[4], sU[14]
    p5setup = [f's_lshl2_add_u32 {sHA}, {sC}, {sRH}', f's_mul_i32 {sHA}, {sHA}, {112*1024}', f's_mul_i32 {sT[6]}, {sW}, {28*1024}',
               f's_add_u32 {sHA}, {sHA}, {sT[6]}', f's_add_u32 {sHA}, {sHA}, {LY.H_OFF}', f's_add_u32 {sHB}, {sHA}, {2*112*1024}',
               f's_mul_i32 {sP5F}, {sW}, 56', f's_add_u32 {sP5F}, {sP5F}, {sFB}',
               f's_add_u32 {sP5F}, {sP5F}, {LY.F_H + 256}',
               f'v_min_u32 {V(vFA)}, 13, {V(vLANE)}', f'v_lshlrev_b32 {V(vFA)}, 2, {V(vFA)}']
    if last: p5setup += own_tile_rowmajor(sXO)
    else: p5setup += out_scalars_ops(sXO, sFL, X2_BASE, LY.F_X2)
    free = [132, 136, 140] + ([] if LA > 7 else [124, 128])
    hslot = {}; hnext = [0]; hlimit = [0]
    hlast = [-1000]; inp5 = [False]
    def hload(force=False):
        n = hnext[0]
        if n >= hlimit[0] or not free: return False
        if not force and clock[0] < hlast[0] + (OPT.get('hgap', 40) if inp5[0] else OPT.get('hgap4', 80)): return False
        hlast[0] = clock[0]
        X, i = divmod(n, 28); so = [sHA, sHB][X]; b = free.pop(0); hslot[n] = b; hnext[0] += 1
        A(f'buffer_load_dwordx4 {V(b,4)}, {V(vL16)}, {SWS}, {so} offen offset:{(i & 3)*1024} sc1')
        if i & 3 == 3: A(f's_add_u32 {so}, {so}, 4096')
        return True
    F = Fill(); BG = Fill()
    if first:
        for t_ in range(W2EARLY, 56): BG.adds(w2_load_ops(t_))
    for n in range(LA): xread(n)
    A(f's_add_u32 {sPF}, {sPF}, 256')
    S1, S2 = HP, HP + 1
    NV = 40 - LA
    clock = [0]; ev = {}; todo = []
    hd_ = OPT.get('hdel', 750) if OPT.get('hsc1', 1) >> L & 1 else OPT.get('hdelp', 360)
    def at(t, fn): todo.append((t, fn)); todo.sort(key=lambda x: x[0])
    def tick(dt):
        clock[0] += dt
        while todo and todo[0][0] <= clock[0]: todo.pop(0)[1]()
    def stored(rb):
        if OPT.get('dbgs'): print(f'L{L} H{rb} stored at clock {clock[0]}', file=sys.stderr)
        if rb & 1: at(clock[0] + hd_, lambda: flagged(rb))
        if rb >= 1: free.extend(ACC4[AB[rb]] + 4 * k for k in range(4))
        if rb == 3:
            F.adds(red_addr_ops(vP[0], vP[3], L_S))
    def flagged(rb):
        hflag(rb)
        if rb in (1, 3):
            def smp():
                if rb == 3: A(f's_add_u32 {sP5F}, {sP5F}, 512')
                flag_issue(vF, vFA, sP5F); at(clock[0] + OPT.get('p5c', 300), chk)
            def chk():
                flag_check(vF, vFA, sP5F, L + 1); hlimit[0] = 28 if rb == 1 else 56
                if rb == 1: ev['Aload'] = clock[0]
                if OPT.get('dbgs'): print(f'L{L} loads of stream {rb>>1} start at clock {clock[0]}', file=sys.stderr)
            at(clock[0] + OPT.get('p5i', 300), smp)
    def queue_epi(rb):
        ops, hs = epi_ops(rb); F.adds(ops); F.add(hs, 20); F.add(lambda: stored(rb), 0)
    F.adds(p5setup[:-2 - (5 if last else 10)])
    for n in range(128):
        rb, ks = divmod(n, 32); a = ACC4[AB[rb]]
        if n == OPT.get('nsi', 3): F.q.insert(0, ((lambda: flag_issue(vF, vSF, sSF)), 4))
        if n == OPT.get('nsc', 12):
            flag_check(vF, vSF, sSF, L + 1)
            for o in stat_load_ops(E, E + 4, vSA, sST): F.add(o, 12)
            F.adds([f's_lshl_b32 {sT[0]}, {sW}, 8', f's_add_u32 {sT[0]}, {sT[0]}, {L_STAT}',
                    f'v_and_b32 {V(vSF)}, 31, {V(vLANE)}', f'v_lshlrev_b32 {V(vSF)}, 2, {V(vSF)}', f'v_add_u32 {V(E+8)}, {sT[0]}, {V(vSF)}', f'v_add_u32 {V(vSF)}, {L_STAT}, {V(vSF)}'])
        if n == OPT.get('nsr', 23):
            F.adds(stat_reduce_ops(E, E + 4, S1, S2))
            F.adds(stats_finish_ops(S1, S2, E, E + 1, E + 2, E + 3)); F.adds(split_pack_ops(E + 2, E + 2, E))
            F.adds([f'v_mul_f32 {V(E+3)}, {V(vNL)}, {V(E+3)}', f'ds_write2_b32 {V(E+8)}, {V(E+2)}, {V(E+3)} offset0:0 offset1:32'])
        if n == 14: F.q.insert(0, ((lambda: flag_issue(E + 12, vFA, sPF)), 4))
        if n == 32 - LA: flag_check(E + 12, vFA, sPF, L + 1); F.adds(p5setup[-2 - (5 if last else 10):])
        if n == NV: F.flush(); A.wait_lgkm()
        if n == 96:
            while 0 not in htok: F._do(F.q.pop(0)[0])
        if OPT.get('p4st') and L == OPT.get('stl', 1) and n % OPT['p4st'] == 0: stamp(f'b{n}')
        if n % 2 == 0 and n + 1 in xtok: A.wait_lgkm(xtok[n + 1])
        A(f'{MFMA} {V(a,16)}, {W1REG(ks)}, {xr(n)}, {"0" if ks == 0 else V(a,16)}')
        used = 2
        if n + LA < 128: used += xread(n + LA)
        if n == NV:
            A(f'ds_read_b32 {V(NMW)}, {V(vSF)}')
            A(f'ds_read2st64_b32 {V(NMS,2)}, {V(vSF)} offset0:0 offset1:1'); A(f'ds_read2st64_b32 {V(NMS+2,2)}, {V(vSF)} offset0:2 offset1:3')
            A(f'ds_read2_b32 {V(SA,2)}, {V(vSF)} offset0:32 offset1:96'); A(f'ds_read2_b32 {V(SA+2,2)}, {V(vSF)} offset0:160 offset1:224')
            used = 26
        if n == NV + 3: A(f'{MFMA} {V(ACC4[0],16)}, {V(CSW,4)}, {V(NMW,4)}, {V(ACC4[0],16)}')
        if rb > 0 and ks == 28: A(f'v_mov_b32 {V(NMW)}, {V(NMS + rb)}'); used += 4
        if rb > 0 and ks == 30:
            F.run(16); A(f'{MFMA} {V(a,16)}, {V(CSW,4)}, {V(NMW,4)}, {V(a,16)}'); used = 2
        if (ks == 2 and rb > 1) or n == NV + 5: queue_epi(rb - 1)
        tick(40)
        F.run((OPT.get('p4b', 32) if 1 not in htok else OPT.get('p4b2', 26)) - used)
        if first and n % 2 == 1 and (n + LA) % 4 == 3: BG.run(8)
        if first and n % 4 == 0: BG.run(4)
        if hlimit[0]: hload()
    BG.flush()
    stamp('p4main')
    A5 = [52, 84]; inp5[0] = True
    if OPT.get('dbgs'): print(f'L{L} P5 starts at clock {clock[0]}, pending ops {len(F.q)}', file=sys.stderr)
    if LA > 7: free.extend([124, 128])
    queue_epi(3)
    vRW, vRR, vOUT = vP[0], vP[3], vFA
    tokA, tokB, stA, stB = [], [], [], []
    while hlimit[0] == 0 or clock[0] < ev['Aload'] + OPT.get('p5lat', 400):
        before = len(F.q)
        F.run(40); tick(40)
        if hlimit[0]: hload()
        if not F.q and hlimit[0]: break
    for n in range(56):
        X, i = divmod(n, 28); a = A5[X]
        if OPT.get('p5st') and L == OPT.get('stl', 1) and n % 7 == 0: stamp(f'c{n}')
        if n == 20: A('s_barrier')
        if n == 28:
            F.flush()
            while hlimit[0] < 56: tick(100)
        while n not in hslot: assert hload(True)
        for nh in range(2):
            A(f'{MFMA} {V(a + 16*nh, 16)}, {W2REG(i, nh)}, {V(hslot[n],4)}, {"0" if i == 0 else V(a + 16*nh, 16)}')
            bud = OPT.get('p5b', 48) if 3 not in htok else 20
            rem = F.run(bud); tick(max(OPT.get('p5t', 32), 12 + bud - rem))
            if nh == 0: hload()
        free.append(hslot[n])
        if n == 28 and first:
            F.adds([f's_lshl_b32 {sT[4]}, {sJ}, 6', f's_add_u32 {sT[4]}, {sT[4]}, {sRBG}', f's_lshl_b32 {sT[4]}, {sT[4]}, 12', f's_add_u32 {sT[4]}, {sT[4]}, {LY.KV_OFF + LY.KV_LAYER}'])
            F.adds([f'v_mov_b32 {V(116 + r)}, -1' for r in range(4)])
            for f in range(4): F.add(f'buffer_store_dwordx4 {V(116, 4)}, {V(vL16)}, {SWS}, {sT[4]} offen offset:{1024*f} sc1', 20)
            F.adds([f's_lshl_b32 {sT[4]}, {sJ}, 7', f's_lshl2_add_u32 {sT[4]}, {sW}, {sT[4]}', f's_add_u32 {sT[4]}, {sT[4]}, {sFB}', f's_add_u32 {sT[4]}, {sT[4]}, {LY.F_KV}'])
        if n == 29:
            if last: F.adds(rowmajor_addr(vOUT, vF))
            F.adds(unpack_ops(116, 0))
            for o in send_ops(A5[0], vRW, 24576): F.add(o, 20); F.add('s_nop 0', 20) if OPT.get('sgap', 1) else None
            F.adds(add8_ops(A5[0], A5[0], 116, False))
            F.add(lambda: (A.wait_lgkm(), A('s_barrier')), 8)
            F.adds(recv_ops(A5[0] + 8, vRR, 24576))
            for _ in range(3): F.add('s_nop 0', 20)
            F.adds(finish_ops(A5[0], A5[0] + 8, 0, False, sXO, tokA, last, vOUT))
            F.add(f's_add_u32 {sXO}, {sXO}, 65536')
            F.adds(unpack_ops(116, 1))
        if n == 52 and not last:
            F.flush(); A.wait_vm(tokA[-1]); flag_set(vON, vZ, sFL)
        if n == 55 and first: flag_set(vON, vZ, sT[4], fastok=False, imm=2048 + 16)
        hload()
    assert hlimit[0] == 56
    F.flush()
    a = A5[1]
    emit(send_ops(a, vRW, 0)); emit(add8_ops(a, a, 116, True))
    A.wait_lgkm(); A('s_barrier')
    emit(recv_ops(a + 8, vRR, 0))
    emit(finish_ops(a, a + 8, 1, True, sXO, tokB, last, vOUT))
    if not last:
        A.wait_lgkm(); A('s_barrier')
        emit(scomb_ops(A5[0], LY.ST2_OFF, stB))
        A.wait_vm(tokB[-1]); flag_set(vON, vZ, sFL, imm=256)
        PENDING.append(lambda: sflag(156, 157, stB, LY.F_S2))
        A(f'v_mov_b32 v156, {L + 2}'); A(f'v_mov_b32 v157, 0')
    stamp('p5end')
    return True
PENDING = []

def main():
    startup()
    if STOP == 0: return
    for L in range(2):
        p1(L)
        if STOP <= 5 * L + 1: return
        r = p2(L)
        if STOP <= 5 * L + 2:
            A.wait_vm(); return
        if not ffn(L, r['tok'], r['flag']): return
        if STOP <= 5 * L + 5: return
main()
finish()

hdr = open('cdna_kernels/' + NAME + '.s.ref').read().split('\n')
hdr = [l for l in hdr if l.startswith(';') and '@launch' not in l]
src = '\n'.join(hdr) + f'\n; @launch grid=(256,1,1) block=(256,1,1) lds={LDS_BYTES}\n'
src += f'''.amdgcn_target "amdgcn-amd-amdhsa--gfx950"
.text
.globl {NAME}_kernel
.p2align 8
.type {NAME}_kernel,@function
{NAME}_kernel:
'''
body = A.finalize()
src += body.replace('CODE_SPAN', '(L_codeend-L_pcref)')
src += f'''.section .rodata,"a"
.p2align 6
.amdhsa_kernel {NAME}_kernel
  .amdhsa_next_free_vgpr 512
  .amdhsa_next_free_sgpr 102
  .amdhsa_accum_offset 256
  .amdhsa_group_segment_fixed_size 0
  .amdhsa_kernarg_size 72
  .amdhsa_user_sgpr_count 2
  .amdhsa_user_sgpr_kernarg_segment_ptr 1
  .amdhsa_system_sgpr_workgroup_id_x 1
.end_amdhsa_kernel
'''
out = [a for a in sys.argv[1:] if a.endswith('.s')]
open(out[0] if out else 'k.s', 'w').write(src)
if STAMPS: open((out[0] if out else 'k.s') + '.names', 'w').write(' '.join(stamp_names))
```
